```python
import torch

def _softmax(x, axis=-1):
    return torch.softmax(x, dim=axis)
def _gelu(x):
    return torch.nn.functional.gelu(x, approximate="tanh")
def _silu(x):
    return torch.nn.functional.silu(x)
def _sigmoid(x):
    return torch.sigmoid(x)
def _layernorm(x, axis=-1, eps=1e-5):
    m = x.mean(dim=axis, keepdim=True)
    v = x.var(dim=axis, keepdim=True, unbiased=False)
    return (x - m) / torch.sqrt(v + eps)
def _scatter_add(tgt, idx, src, axis=0):
    return tgt.clone().index_add_(axis, idx, src)
def _segment_sum(src, seg, n):
    out = torch.zeros((n,) + src.shape[1:], dtype=src.dtype)
    return out.index_add_(0, seg, src)
def _pad(x, pw):
    flat = tuple(v for pair in reversed(pw) for v in pair)
    return torch.nn.functional.pad(x, flat)

kernel_name = 'parallel_sum__sliding_block__mixer_channel_mlp__prompt'

def setup_inputs():

    _w = (lambda a: (lambda t: t.to(torch.bfloat16) if t.is_floating_point() else t)(torch.as_tensor(a)))
    def _A_setup():
        B, S, D = 1, 2048, 512
        return {
            "x": _w((lambda *s: torch.randn(*s, dtype=torch.bfloat16) * 0.05)(B, S, D)),
            "wqkv": _w((lambda *s: torch.randn(*s, dtype=torch.bfloat16) * 0.05)(D, 3 * D)),
            "wo": _w((lambda *s: torch.randn(*s, dtype=torch.bfloat16) * 0.05)(D, D)),
        }
    _A_in = _A_setup()

    def _B_setup():
        B, S, D, F = 1, 2048, 512, 1376
        return {
            "x": _w((lambda *s: torch.randn(*s, dtype=torch.bfloat16) * 0.05)(B, S, D)),
            "w1": _w((lambda *s: torch.randn(*s, dtype=torch.bfloat16) * 3.2)(D, F) * (D ** -0.5)),
            "b1": _w((lambda *s: torch.randn(*s, dtype=torch.bfloat16) * 1.6)(F)),
            "w2": _w((lambda *s: torch.randn(*s, dtype=torch.bfloat16) * 0.2)(F, D) * (F ** -0.5)),
            "b2": _w((lambda *s: torch.randn(*s, dtype=torch.bfloat16) * 0.2)(D)),
        }
    _B_in = _B_setup()

    return {
        "A_x": _A_in["x"],
        "A_wqkv": _A_in["wqkv"],
        "A_wo": _A_in["wo"],
        "B_x": _B_in["x"],
        "B_w1": _B_in["w1"],
        "B_b1": _B_in["b1"],
        "B_w2": _B_in["w2"],
        "B_b2": _B_in["b2"],
    }

def reference(A_x, A_wqkv, A_wo, B_x, B_w1, B_b1, B_w2, B_b2):
    def _A_ref(x, wqkv, wo):
        B, S, D = x.shape
        H = 32; Dh = D // H; W = 256
        qkv = (lambda x, *d: x.permute(*d))((x @ wqkv).reshape(B, S, 3, H, Dh), 2, 0, 3, 1, 4)
        q, k, v = qkv[0], qkv[1], qkv[2]
        scores = torch.einsum("bhqd,bhkd->bhqk", q, k) * (Dh ** -0.5)
        idx = torch.arange(S)
        mask = (idx[:, None] - idx[None, :] >= 0) & (idx[:, None] - idx[None, :] < W)
        scores = torch.where(mask[None, None], scores, -1e9)
        p = _softmax(scores, axis=-1)
        o = torch.einsum("bhqk,bhkd->bhqd", p, v)
        return (lambda x, *d: x.permute(*d))(o, 0, 2, 1, 3).reshape(B, S, D) @ wo

    def _B_ref(x, w1, b1, w2, b2):
        y = _layernorm(x, axis=-1)
        h = _gelu(torch.einsum("bsd,df->bsf", y, w1) + b1)
        return torch.einsum("bsf,fd->bsd", h, w2) + b2

    x = A_x
    xn = _layernorm(x, axis=-1)
    return x + _A_ref(xn, A_wqkv, A_wo) + _B_ref(xn, B_w1, B_b1, B_w2, B_b2)
```

```python
import re
KN = "parallel_sum__sliding_block__mixer_channel_mlp__prompt"

HEADER = """; Kernarg layout for this problem (88 bytes, ptrs only, base s[0:1]):
"""

def vr(b, n=1):
    return f"v{b}" if n == 1 else f"v[{b}:{b+n-1}]"
def sr(b, n=1):
    return f"s{b}" if n == 1 else f"s[{b}:{b+n-1}]"

class Asm:
    def __init__(self):
        self.lines = []
        self.uid = 0
        self.vm = []
        self.lg = []
    def __call__(self, s):
        for l in s.split("\n"):
            l = l.strip()
            if l:
                self.lines.append(l)
    def c(self, s):
        self.lines.append("; " + s)
    def label(self, base):
        self.uid += 1
        return f"L_{base}_{self.uid}"
    def vmem(self, s, tag=None):
        self(s); self.vm.append(tag)
    def lds(self, s, tag=None):
        self(s); self.lg.append(tag)
    def _cnt(self, q, tags):
        if not isinstance(tags, (list, set)): tags = [tags]
        last = -1
        for i, t in enumerate(q):
            if t in tags: last = i
        return last
    def wait(self, vm=None, lg=None):
        parts = []
        if vm is not None:
            last = len(self.vm) - 1 if vm == "all" else self._cnt(self.vm, vm)
            if last >= 0:
                n = len(self.vm) - 1 - last
                n = min(n, 63)
                parts.append(f"vmcnt({n})")
                self.vm = self.vm[len(self.vm) - n:] if n else []
        if lg is not None:
            last = len(self.lg) - 1 if lg == "all" else self._cnt(self.lg, lg)
            if last >= 0:
                n = len(self.lg) - 1 - last
                n = min(n, 15)
                parts.append(f"lgkmcnt({n})")
                self.lg = self.lg[len(self.lg) - n:] if n else []
        if parts:
            self("s_waitcnt " + " ".join(parts))
    def stamp(self, cfg, i, name=None):
        if cfg.get("stamp"):
            self(f"{'s_memtime' if cfg.get('stamp') == 'cyc' else 's_memrealtime'} s[{68+2*i}:{69+2*i}]")
    def text(self, fix=True):
        lines = fix_hazards(self.lines) if fix else self.lines
        return "\n".join(("" if l.endswith(":") else "    ") + l for l in lines) + "\n"

_REG = re.compile(r"\b([vsa])(\d+)\b|\b([vsa])\[(\d+):(\d+)\]|\b(vcc|exec|m0)\b")
def regs_of(op):
    out = set()
    for m in _REG.finditer(op):
        if m.group(1): out.add((m.group(1), int(m.group(2))))
        elif m.group(3):
            for i in range(int(m.group(4)), int(m.group(5)) + 1): out.add((m.group(3), i))
        else: out.add((m.group(6), 0))
    return out

TRANS = ("v_exp_", "v_log_", "v_rcp_", "v_rsq_", "v_sqrt_", "v_sin_", "v_cos_")
def parse(line):
    l = line.split(";")[0].strip()
    if not l or l.endswith(":") or l.startswith("."): return None
    sp = l.split(None, 1)
    op = sp[0]; rest = sp[1] if len(sp) > 1 else ""
    ops = [o.strip() for o in re.split(r",(?![^\[]*\])", rest)] if rest else []
    d = dict(op=op, w=set(), r=set(), kind="other", srcc=set(), ab=set(), line=l)
    if op.startswith("v_mfma"):
        d["kind"] = "mfma"; d["w"] = regs_of(ops[0]); d["ab"] = regs_of(ops[1]) | regs_of(ops[2]); d["srcc"] = regs_of(ops[3].split()[0])
        d["r"] = d["ab"] | d["srcc"]; d["passes"] = 8 if "32x32" in op else 4
        d["dst"] = ops[0]; d["c"] = ops[3].split()[0]
    elif op.startswith("v_"):
        d["kind"] = "valu"
        if op.startswith("v_cmp"):
            d["w"] = regs_of(ops[0]); d["r"] = set().union(*[regs_of(o) for o in ops[1:]])
        elif op.startswith("v_permlane") and "swap" in op:
            d["w"] = regs_of(ops[0]) | regs_of(ops[1]); d["r"] = set(d["w"]); d["perm"] = True
        elif op.startswith(("v_add_co", "v_sub_co", "v_addc_co", "v_subb_co")):
            d["w"] = regs_of(ops[0]) | regs_of(ops[1]); d["r"] = set().union(*[regs_of(o) for o in ops[2:]])
        else:
            d["w"] = regs_of(ops[0]); d["r"] = set().union(set(), *[regs_of(o) for o in ops[1:]])
            if op.startswith(("v_fmac", "v_dot2c", "v_pk_fmac")) or "dpp" in op or "sdwa" in op or op.startswith("v_writelane"): d["r"] |= d["w"]
        d["trans"] = op.startswith(TRANS)
        d["dot"] = op.startswith("v_dot")
        d["dpp"] = "dpp" in op or "quad_perm" in l or "row_" in l
        d["rl"] = op.startswith(("v_readlane", "v_readfirstlane"))
        d["opsel"] = ("sdwa" in op and "dst_sel" in l and "dst_sel:DWORD" not in l)
    elif op.startswith(("buffer_", "global_", "flat_")):
        d["kind"] = "vmem"
        allr = set().union(set(), *[regs_of(o) for o in ops])
        islds = bool(re.search(r"\blds\b", l)) or "load_lds" in op
        if "load" in op and not islds:
            d["w"] = regs_of(ops[0]); d["r"] = set().union(set(), *[regs_of(o) for o in ops[1:]])
        elif "atomic" in op and "sc0" in l:
            d["w"] = regs_of(ops[0]); d["r"] = allr
        else:
            d["r"] = allr
        if islds: d["r"].add(("m0", 0)); d["dma"] = True
        if "store" in op and ("x4" in op or "x3" in op):
            d["wide"] = regs_of(ops[0]) if op.startswith("buffer_") else regs_of(ops[1])
    elif op.startswith("ds_"):
        d["kind"] = "ds"
        if op.startswith(("ds_read", "ds_bpermute", "ds_permute", "ds_swizzle")) or "_rtn" in op:
            d["w"] = regs_of(ops[0]); d["r"] = set().union(set(), *[regs_of(o) for o in ops[1:]])
        else:
            d["r"] = set().union(set(), *[regs_of(o) for o in ops])
    elif op.startswith("s_"):
        d["kind"] = "salu"
        if op == "s_nop": d["nop"] = int(ops[0], 0) + 1
        elif op.startswith(("s_cmp", "s_cbranch", "s_branch", "s_waitcnt", "s_barrier", "s_endpgm", "s_setprio", "s_sleep", "s_bitcmp")):
            d["r"] = set().union(set(), *[regs_of(o) for o in ops])
        else:
            d["w"] = regs_of(ops[0]) if ops else set(); d["r"] = set().union(set(), *[regs_of(o) for o in ops[1:]])
            if "saveexec" in op: d["w"].add(("exec", 0))
    return d

def need_states(p, c):
    n = 0
    pv = {x for x in p["w"] if x[0] in "va"}
    ps = {x for x in p["w"] if x[0] == "s" or x[0] == "vcc"}
    if p["kind"] == "valu":
        if c["kind"] == "mfma" and pv & c["r"]: n = max(n, 3 if p["dot"] else 2)
        if c["kind"] == "valu":
            if p["trans"] and not c["trans"] and pv & c["r"]: n = max(n, 1)
            if p["dot"] and pv & (c["r"] | c["w"]):
                if c["op"] == p["op"]:
                    m = c["line"].split(None, 1)[1].split(",")
                    ab = regs_of(m[1]) | regs_of(m[2])
                    if pv & ab: n = max(n, 3)
                else: n = max(n, 3)
            if c.get("rl") and pv & c["r"]: n = max(n, 1)
            if c.get("perm") and pv & c["r"]: n = max(n, 2)
            if c.get("dpp") and pv & c["r"]: n = max(n, 2)
            if p.get("opsel") and pv & (c["r"] | c["w"]): n = max(n, 1)
            if ps & c["r"]: n = max(n, 4 if c["op"].startswith(("v_readlane", "v_writelane")) else 2)
        if c["kind"] in ("vmem", "ds") and p["dot"] and pv & c["r"]: n = max(n, 3)
        if c["kind"] in ("vmem", "ds") and p["trans"] and pv & c["r"]: n = max(n, 1)
        if c["kind"] == "vmem" and ps & c["r"]: n = max(n, 5)
    if p["kind"] == "mfma":
        big = 12 if p["passes"] == 8 else 8
        if c["kind"] == "mfma":
            if pv & c["ab"]: n = max(n, big)
            if pv & c["srcc"] and not (c["c"] == p["dst"] and c["passes"] == p["passes"]): n = max(n, big - 2)
            if pv & c["w"] and not (c["dst"] == p["dst"] and c["passes"] == p["passes"]): n = max(n, big)
        elif c["kind"] in ("valu", "vmem", "ds"):
            if pv & (c["r"] | c["w"]): n = max(n, big)
        if c["kind"] in ("valu", "ds", "vmem") and p["srcc"] & c["w"]: n = max(n, 7 if p["passes"] == 8 else 3)
    if p["kind"] == "vmem" and p.get("wide"):
        if c["kind"] in ("valu", "mfma") and p["wide"] & c["w"]: n = max(n, 2)
        elif p["wide"] & c["w"]: n = max(n, 1)
    if p["kind"] == "salu" and ("m0", 0) in p["w"] and c.get("dma"): n = max(n, 1)
    return n

def fix_hazards(lines):
    out = []
    hist = []
    for l in lines:
        d = parse(l)
        if d is None:
            out.append(l); continue
        need = 0
        dist = 0
        for p in reversed(hist):
            k = need_states(p, d) - dist
            if k > need: need = k
            dist += p.get("nop", 1)
            if dist > 20: break
        while need > 0:
            k = min(need, 16)
            out.append(f"s_nop {k-1}")
            hist.append(dict(op="s_nop", kind="salu", w=set(), r=set(), nop=k))
            need -= k
        out.append(l); hist.append(d)
        if len(hist) > 32: hist = hist[-32:]
    return out

def kernel_text(name, body, vgpr, sgpr=102, agpr=0):
    acc_off = (vgpr + 3) // 4 * 4
    nfv = acc_off + agpr if agpr else vgpr
    t = f""".text
.globl {name}
.p2align 8
.type {name},@function
{name}:
{body}"""
    d = f""".amdhsa_kernel {name}
  .amdhsa_next_free_vgpr {nfv}
  .amdhsa_next_free_sgpr {sgpr}
  .amdhsa_accum_offset {acc_off}
  .amdhsa_group_segment_fixed_size 0
  .amdhsa_kernarg_size 88
  .amdhsa_user_sgpr_count 2
  .amdhsa_user_sgpr_kernarg_segment_ptr 1
  .amdhsa_system_sgpr_workgroup_id_x 1
  .amdhsa_float_denorm_mode_32 3
.end_amdhsa_kernel
"""
    return t, d

def file_text(kernels, launches):
    out = HEADER
    if len(launches) == 1 and launches[0][0] == KN + "_kernel":
        n, g, b, l = launches[0]
        out += f"; @launch grid=({g},1,1) block=({b},1,1) lds={l}\n"
    else:
        for n, g, b, l in launches:
            out += f"; @launch kernel={n} grid=({g},1,1) block=({b},1,1) lds={l}\n"
    out += '.amdgcn_target "amdgcn-amd-amdhsa--gfx950"\n'
    ds = []
    for k in kernels:
        t, d = kernel_text(*k)
        out += t
        ds.append(d)
    out += '.section .rodata,"a"\n'
    for d in ds:
        out += ".p2align 6\n" + d
    return out
```

```python
WS_STAMP = 0x0
WS_FLAG  = 0x80000
WS_QK    = 0x100000
WS_V     = 0x500000
WS_O     = 0x700000
WS_H     = 0x900000
WS_END   = WS_H + 64 * 86 * 1024
EPS = 1e-5
import math, struct
def f32(x): return "0x%08x" % struct.unpack("<I", struct.pack("<f", x))[0]
LOG2E = math.log2(math.e)
QSCALE = 0.25 * LOG2E
GELU_A = -2.0 * LOG2E * math.sqrt(2.0 / math.pi)
GELU_B = GELU_A * 0.044715
```

```python
from asmlib import *
from layout import *

L_X = 0x0; L_W = 0x10000; L_CS = 0x20000; L_MEAN = 0x20400; L_RSTD = 0x20600; L_CNT = 0x20800
P1_LDS = 0x20880

sX, sU0, sU1, sUB, sWS, sB1, sT = 16, 20, 24, 28, 32, 36, 40
sW = 44
sw4 = 45
sRB, sCB, sROT = 46, 47, 48
sStr0, sStr1 = 49, 50
sCol0, sCol1, sColB = 51, 52, 53
sM0, sO = 54, 55
sKC = 56
sT0 = 57
sOnes = 58
sTmp, sTmp2 = 59, 60
sLdsW = 61

def mapping(a, mode):
    a("s_and_b32 s62, s2, 7"); a("s_lshr_b32 s63, s2, 3")
    if mode == "8x4":
        a("s_lshr_b32 s64, s62, 2"); a("s_lshl_b32 s64, s64, 3"); a("s_lshr_b32 s65, s63, 2"); a(f"s_add_u32 s{sRB}, s64, s65")
        a("s_and_b32 s64, s62, 3"); a("s_and_b32 s66, s63, 3"); a("s_lshl_b32 s67, s66, 2"); a(f"s_add_u32 s{sCB}, s64, s67")
        a("s_lshl_b32 s66, s66, 1"); a(f"s_add_u32 s{sROT}, s65, s66"); a(f"s_and_b32 s{sROT}, s{sROT}, 7")
    elif mode == "4x8":
        a("s_lshr_b32 s64, s62, 1"); a("s_lshl_b32 s64, s64, 2"); a("s_lshr_b32 s65, s63, 3"); a(f"s_add_u32 s{sRB}, s64, s65")
        a("s_and_b32 s64, s62, 1"); a("s_and_b32 s66, s63, 7"); a("s_lshl_b32 s67, s66, 1"); a(f"s_add_u32 s{sCB}, s64, s67")
        a("s_lshl_b32 s65, s65, 1"); a(f"s_add_u32 s{sROT}, s65, s66"); a(f"s_and_b32 s{sROT}, s{sROT}, 7")
    elif mode == "2x16":
        a("s_lshl_b32 s64, s62, 1"); a("s_lshr_b32 s65, s63, 4"); a(f"s_add_u32 s{sRB}, s64, s65")
        a(f"s_and_b32 s{sCB}, s63, 15")
        a("s_lshl_b32 s65, s65, 2"); a(f"s_add_u32 s{sROT}, s65, s{sCB}"); a(f"s_and_b32 s{sROT}, s{sROT}, 7")
    else:
        raise ValueError(mode)

def srd(a, d, lo, hi, size):
    a(f"s_mov_b32 s{d}, {lo}"); a(f"s_mov_b32 s{d+1}, {hi}"); a(f"s_mov_b32 s{d+2}, {size}"); a(f"s_mov_b32 s{d+3}, 0x20000")

SPIN_MAX = 200000
def lds_spin(a, vaddr, vtmp, target):
    lp = a.label("spin"); lq = a.label("spinx")
    a("s_mov_b32 s66, 0")
    a(f"{lp}:")
    a(f"ds_read_b32 v{vtmp}, v{vaddr}")
    a("s_add_u32 s66, s66, 1"); a(f"s_cmp_gt_u32 s66, {SPIN_MAX}"); a(f"s_cbranch_scc1 {lq}")
    a("s_waitcnt lgkmcnt(0)"); a(f"v_readfirstlane_b32 s67, v{vtmp}"); a(f"s_cmp_lt_u32 s67, {target}"); a(f"s_cbranch_scc1 {lp}")
    a(f"{lq}:")
    a("s_waitcnt lgkmcnt(0)")

def prologue(a, cfg):
    a("s_load_dwordx4 s[4:7], s[0:1], 0")
    a("s_load_dwordx4 s[8:11], s[0:1], 32")
    a("s_load_dwordx2 s[12:13], s[0:1], 80")
    a("v_lshrrev_b32 v1, 6, v0")
    a("v_and_b32 v0, 63, v0")
    a(f"v_readfirstlane_b32 s{sW}, v1")
    mapping(a, cfg["map1"])
    if not cfg.get("rot", True): a(f"s_mov_b32 s{sROT}, 0")
    a(f"s_and_b32 s{sw4}, s{sW}, 3")
    a(f"s_mov_b32 s{sOnes}, 0x3f803f80")
    a(f"s_lshl_b32 s{sColB}, s{sCB}, 7")
    a(f"s_mov_b32 s{sStr0}, 2752")
    a(f"s_cmp_lt_u32 s{sCB}, 8")
    a(f"s_cbranch_scc0 L_p1_t2map")
    a(f"s_lshl_b32 s{sT0}, s{sCB}, 2")
    a(f"s_lshl_b32 s{sCol0}, s{sT0}, 6"); a(f"s_add_u32 s{sCol1}, s{sCol0}, 128")
    a(f"s_mov_b32 s{sStr1}, 2752")
    a("s_branch L_p1_mapdone")
    a("L_p1_t2map:")
    a(f"s_sub_u32 s{sTmp}, s{sCB}, 8")
    a(f"s_lshl_b32 s{sT0}, s{sTmp}, 1"); a(f"s_add_u32 s{sT0}, s{sT0}, 32")
    a(f"s_lshl_b32 s{sCol0}, s{sT0}, 6")
    a(f"s_lshl_b32 s{sCol1}, s{sTmp}, 7"); a(f"s_add_u32 s{sCol1}, s{sCol1}, 2048")
    a(f"s_mov_b32 s{sStr1}, 3072")
    a("L_p1_mapdone:")
    a("s_waitcnt lgkmcnt(0)")
    srd(a, sX, "s4", "s5", 0x200000)
    srd(a, sUB, "s6", "s7", 1572864)
    srd(a, sWS, "s12", "s13", 0x10000000)
    srd(a, sB1, "s10", "s11", 2752)
    srd(a, sU0, "s8", "s9", 1409024)
    a(f"s_cmp_lt_u32 s{sT0}, 43"); a(f"s_cselect_b32 s{sU0+2}, s{sU0+2}, 0")
    a(f"s_cmp_lt_u32 s{sCB}, 8")
    a(f"s_cselect_b32 s{sU1}, s8, s6"); a(f"s_cselect_b32 s{sU1+1}, s9, s7")
    a(f"s_mov_b32 s{sTmp}, 1572864"); a(f"s_cselect_b32 s{sU1+2}, 1409024, s{sTmp}"); a(f"s_mov_b32 s{sU1+3}, 0x20000")

def chunk_k(a, c):
    a(f"s_add_u32 s{sKC}, s{sROT}, {c}"); a(f"s_and_b32 s{sKC}, s{sKC}, 7")

def dma(a, vaddr, srdreg, tag, aux):
    a.vmem(f"buffer_load_dwordx4 v{vaddr}, s[{srdreg}:{srdreg+3}], s{sO} offen {aux} lds".replace("  ", " "), tag)

def dma_wb(a, st, vWB, cfg):
    a(f"s_lshr_b32 s{sTmp}, s{sW}, 1"); a(f"s_add_u32 s{sKC}, s{sTmp}, {4*st}"); a(f"s_add_u32 s{sKC}, s{sKC}, s{sROT}"); a(f"s_and_b32 s{sKC}, s{sKC}, 7")
    a(f"s_and_b32 s{sTmp2}, s{sW}, 1"); a(f"s_lshl_b32 s{sTmp2}, s{sTmp2}, 5")
    a(f"s_lshl_b32 s{sKC}, s{sKC}, 6"); a(f"s_add_u32 s{sKC}, s{sKC}, s{sTmp2}"); a(f"s_mul_i32 s{sKC}, s{sKC}, 3072"); a(f"s_add_u32 s{sKC}, s{sKC}, s{sColB}")
    a(f"s_lshr_b32 s{sM0}, s{sW}, 2"); a(f"s_lshl_b32 s{sM0}, s{sM0}, 16")
    a(f"s_and_b32 s{sTmp}, s{sW}, 3"); a(f"s_lshl_b32 s{sTmp}, s{sTmp}, 12"); a(f"s_add_u32 s{sM0}, s{sM0}, s{sTmp}")
    for g in range(4):
        a(f"s_add_u32 m0, s{sM0}, {st*16384 + g*1024}")
        a(f"s_add_u32 s{sO}, s{sKC}, {g*8*3072}")
        dma(a, vWB, sUB, ("st", 8 + st), cfg["aux_w"])

def tr_addr(a, dst, j_s, tmp):
    a(f"v_lshrrev_b32 v{tmp}, 5, v0"); a(f"v_lshlrev_b32 v{dst}, 10, v{tmp}")
    a(f"v_bfe_u32 v{tmp}, v0, 2, 2"); a(f"v_lshl_add_u32 v{dst}, v{tmp}, 7, v{dst}")
    a(f"v_bfe_u32 v{tmp}, v0, 3, 1"); a(f"v_lshl_add_u32 v{dst}, v{tmp}, 6, v{dst}")
    a(f"v_bfe_u32 v{tmp}, v0, 4, 1"); a(f"v_lshl_add_u32 v{dst}, v{tmp}, 5, v{dst}")
    a(f"v_and_b32 v{tmp}, 3, v0"); a(f"v_lshl_add_u32 v{dst}, v{tmp}, 3, v{dst}")
    a(f"s_lshl_b32 s{sTmp}, {j_s}, 11")
    a(f"v_add_u32 v{dst}, s{sTmp}, v{dst}")
    a(f"v_xor_b32 v{dst+1}, 64, v{dst}")

def x_addr(a, dst, j_s, tmp):
    a(f"v_lshrrev_b32 v{tmp}, 5, v0")
    a(f"s_lshl_b32 s{sTmp}, {j_s}, 1")
    a(f"v_add_u32 v{tmp}, s{sTmp}, v{tmp}")
    a(f"v_bfe_u32 v{dst}, v0, 1, 3")
    a(f"v_xor_b32 v{tmp}, v{tmp}, v{dst}")
    a(f"v_lshlrev_b32 v{tmp}, 4, v{tmp}")
    a(f"v_and_b32 v{dst}, 31, v0")
    a(f"v_lshl_add_u32 v{dst}, v{dst}, 7, v{tmp}")
    a(f"s_lshl_b32 s{sTmp}, s{sw4}, 12")
    a(f"v_add_u32 v{dst}, s{sTmp}, v{dst}")

def split_hi_lo(a, v, hi, lo, t):
    a(f"v_cvt_pk_bf16_f32 v{hi}, v{v}, v{v}")
    a(f"v_and_b32 v{t}, 0xffff0000, v{hi}")
    a(f"v_sub_f32 v{t}, v{v}, v{t}")
    a(f"v_cvt_pk_bf16_f32 v{lo}, v{t}, v{t}")

def pack2(a, dst, lo_src, hi_src):
    a(f"v_bfi_b32 v{dst}, s{sTmp2}, v{lo_src}, v{hi_src}")

def w_aug(a, dst, cs, bias, t0, t1, t2):
    a(f"s_mov_b32 s{sTmp2}, 0xffff")
    split_hi_lo(a, cs, t0, t1, t2)
    pack2(a, dst, t0, t1)
    if bias is None:
        a(f"v_and_b32 v{dst+1}, 0xffff, v{t0}")
        a(f"v_mov_b32 v{dst+2}, 0")
    else:
        a(f"v_and_b32 v{t0}, 0xffff, v{t0}")
        a(f"v_lshl_or_b32 v{dst+1}, v{bias}, 16, v{t0}")
        a(f"v_mov_b32 v{dst+2}, v{bias}")
    a(f"v_mov_b32 v{dst+3}, 0")

def x_aug(a, dst, mean, inv, t0, t1, t2, t3):
    a(f"s_mov_b32 s{sTmp2}, 0xffff")
    a(f"v_sub_f32 v{t3}, 0, v{mean}")
    split_hi_lo(a, t3, t0, t1, t2)
    a(f"v_mov_b32 v{dst}, v{t0}")
    if inv is None:
        a(f"v_and_b32 v{dst+1}, 0xffff, v{t1}")
        a(f"v_mov_b32 v{dst+2}, 0")
    else:
        split_hi_lo(a, inv, t0, t3, t2)
        pack2(a, dst + 1, t1, t0)
        a(f"v_and_b32 v{dst+2}, 0xffff, v{t3}")
    a(f"v_mov_b32 v{dst+3}, 0")
    a("v_cmp_gt_u32 vcc, 32, v0")
    for i in range(3): a(f"v_cndmask_b32 v{dst+i}, 0, v{dst+i}, vcc")

def setA(a, typ, cfg):
    ACC = 16
    XF = 80
    WF = 88
    vXs = 2
    vWB = 4
    vXA = 120
    vWA = 124
    vCS = 132
    vBias = 136
    T = 140
    a("v_lshrrev_b32 v5, 3, v0")
    a("v_lshrrev_b32 v6, 4, v0")
    a("v_and_b32 v7, 7, v0"); a("v_xor_b32 v7, v7, v6"); a("v_lshlrev_b32 v7, 4, v7")
    a(f"s_lshl_b32 s{sTmp}, s{sRB}, 7"); a(f"s_lshl_b32 s{sTmp2}, s{sw4}, 5"); a(f"s_add_u32 s{sTmp}, s{sTmp}, s{sTmp2}")
    a(f"v_add_u32 v6, s{sTmp}, v5"); a(f"v_lshl_add_u32 v{vXs}, v6, 10, v7"); a(f"v_xor_b32 v{vXs+1}, 64, v{vXs}")
    a(f"s_lshl_b32 s{sLdsW}, s{sw4}, 12")
    def dma_x(c):
        chunk_k(a, c); a(f"s_lshl_b32 s{sKC}, s{sKC}, 7")
        for g in range(4):
            a(f"s_add_u32 m0, s{sLdsW}, {L_X + (c & 3)*16384 + g*1024}")
            a(f"s_add_u32 s{sO}, s{sKC}, {g*8192}")
            dma(a, vXs + (g & 1), sX, ("st", c), cfg["aux_x"])
    for c in range(4): dma_x(c)
    a("v_bfe_u32 v6, v0, 4, 1"); a("v_lshlrev_b32 v6, 2, v6"); a("v_and_b32 v7, 7, v0"); a("v_xor_b32 v7, v7, v6"); a("v_lshlrev_b32 v7, 4, v7")
    a(f"v_mul_u32_u24 v6, 3072, v5"); a(f"v_add_u32 v{vWB}, v6, v7")
    nb = 4 if typ == 1 else 2
    a("v_and_b32 v6, 31, v0"); a("v_lshlrev_b32 v6, 1, v6")
    a(f"s_lshl_b32 s{sTmp}, s{sT0}, 6"); a(f"v_add_u32 v6, s{sTmp}, v6")
    for t in range(nb):
        a.vmem(f"buffer_load_ushort v{vBias+t}, v6, s[{sB1}:{sB1+3}], 0 offen offset:{t*64}", "bias")
    for i in range(4):
        a(f"s_xor_b32 s{sKC}, s{sw4}, {i}")
        x_addr(a, vXA + i, f"s{sKC}", T)
        tr_addr(a, vWA + 2*i, f"s{sKC}", T)
        a(f"v_add_u32 v{vWA+2*i}, {L_W}, v{vWA+2*i}"); a(f"v_add_u32 v{vWA+2*i+1}, {L_W}, v{vWA+2*i+1}")
    for t in range(4): a(f"v_mov_b32 v{vCS+t}, 0")
    def reads(n):
        c, i = n >> 2, n & 3; b = n & 1; so = (c & 3) * 16384
        r = [f"ds_read_b128 {vr(XF+4*b,4)}, v{vXA+i} offset:{so}"]
        for t in range(4):
            for sec in range(2):
                r.append(f"ds_read_b64_tr_b16 {vr(WF+16*b+4*t+2*sec,2)}, v{vWA+2*i+(t&1)} offset:{so + (t>>1)*8192 + sec*512}")
        return r
    a.wait(vm=("st", 0)); a("s_barrier")
    for r in reads(0): a.lds(r, ("f", 0))
    for n in range(32):
        c, i = n >> 2, n & 3; b = n & 1
        a.wait(lg=("f", n))
        if i == 3:
            if c == 7:
                a("v_and_b32 v5, 31, v0"); a("v_lshlrev_b32 v5, 2, v5")
                a(f"v_add_u32 v5, {L_CS}, v5")
                for t in range(4): a.lds(f"ds_add_f32 v5, v{vCS+t} offset:{t*128}", "cs")
                a.wait(lg="all")
            a.wait(vm=("st", c + 1)); a("s_barrier")
            if c + 4 < 8: dma_x(c + 4)
            elif c + 4 < 10: dma_wb(a, c + 4 - 8, vWB, cfg)
        nxt = reads(n + 1) if n < 31 else []
        k = 0
        for t in range(4):
            wf = vr(WF + 16*b + 4*t, 4); xf = vr(XF + 4*b, 4); acc = vr(ACC + 16*t, 16)
            cin = "0" if n == 0 else acc
            if typ == 2 and t >= 2: a(f"v_mfma_f32_32x32x16_bf16 {acc}, {xf}, {wf}, {cin}")
            else: a(f"v_mfma_f32_32x32x16_bf16 {acc}, {wf}, {xf}, {cin}")
            if i == 0:
                for q in range(4): a(f"v_dot2c_f32_bf16 v{vCS+t}, s{sOnes}, v{WF+16*b+4*t+q}")
            take = 3 if t == 0 else 2
            for r in nxt[k:k+take]: a.lds(r, ("f", n + 1))
            k += take
    vMean, vRstd, vS, vInv = T, T + 1, T + 2, T + 3
    CSV = 88
    a("v_and_b32 v5, 31, v0"); a("v_lshlrev_b32 v5, 2, v5")
    a(f"s_lshl_b32 s{sTmp}, s{sw4}, 7"); a(f"v_add_u32 v6, s{sTmp}, v5"); a(f"v_add_u32 v6, {L_MEAN}, v6"); a(f"v_add_u32 v5, {L_CS}, v5")
    a.lds(f"ds_read_b32 v{vMean}, v6", "st"); a.lds(f"ds_read_b32 v{vRstd}, v6 offset:{L_RSTD-L_MEAN}", "st")
    for t in range(4): a.lds(f"ds_read_b32 v{vCS+t}, v5 offset:{t*128}", "st")
    RR = 160
    if typ == 2:
        a("v_lshrrev_b32 v7, 5, v0"); a("v_lshlrev_b32 v7, 4, v7"); a(f"v_add_u32 v7, s{sTmp}, v7"); a(f"v_add_u32 v7, {L_RSTD}, v7")
        for j in range(4): a.lds(f"ds_read_b128 {vr(RR+4*j,4)}, v7 offset:{j*32}", "st")
    a.wait(lg="all", vm="bias")
    a(f"v_mul_f32 v{vS}, v{vRstd}, v{vRstd}")
    a(f"v_mov_b32 v{vInv}, {f32(1.0+EPS)}")
    a(f"v_fmamk_f32 v{vS}, v{vS}, {f32(-EPS)}, v{vInv}")
    a(f"v_rsq_f32 v{vS}, v{vS}")
    a(f"v_mul_f32 v{vS}, v{vS}, v{vRstd}")
    a(f"v_rcp_f32 v{vInv}, v{vS}")
    XA = 80; WA = 96
    x_aug(a, XA, vMean, vInv, T + 4, T + 5, T + 6, T + 7)
    for t in range(4):
        w_aug(a, WA + 4*t, vCS + t, (vBias + t) if t < nb else None, T + 4, T + 5, T + 6)
    for t in range(4):
        acc = vr(ACC + 16*t, 16)
        if typ == 2 and t >= 2: a(f"v_mfma_f32_32x32x16_bf16 {acc}, {vr(XA,4)}, {vr(WA+4*t,4)}, {acc}")
        else: a(f"v_mfma_f32_32x32x16_bf16 {acc}, {vr(WA+4*t,4)}, {vr(XA,4)}, {acc}")
    vA1, vB1, vI = T + 8, T + 10, T + 12
    a(f"v_mul_f32 v{vA1}, {f32(GELU_A)}, v{vS}")
    a(f"v_mul_f32 v{vB1}, v{vS}, v{vS}"); a(f"v_mul_f32 v{vB1}, v{vB1}, v{vS}"); a(f"v_mul_f32 v{vB1}, {f32(GELU_B)}, v{vB1}")
    a(f"v_mov_b32 v{vI}, v{vInv}")
    a("v_lshlrev_b32 v5, 4, v0")
    a(f"s_lshl_b32 s{sKC}, s{sRB}, 2"); a(f"s_add_u32 s{sKC}, s{sKC}, s{sw4}")
    PK = 176
    G = 192
    for t in range(4):
        pk = PK + 8 * (t & 1)
        z = ACC + 16 * t
        if t < nb:
            gelu_tile(a, z, pk, G, vA1, vB1, vI)
            a(f"s_add_u32 s{sTmp}, s{sT0}, {t}"); a(f"s_cmp_lt_u32 s{sTmp}, 43")
            a(f"s_mov_b32 s{sT}, s{sWS}"); a(f"s_mov_b32 s{sT+1}, s{sWS+1}"); a(f"s_cselect_b32 s{sT+2}, s{sWS+2}, 0"); a(f"s_mov_b32 s{sT+3}, 0x20000")
            a(f"s_mul_i32 s{sO}, s{sKC}, 86"); a(f"s_lshl_b32 s{sTmp}, s{sTmp}, 1"); a(f"s_add_u32 s{sO}, s{sO}, s{sTmp}"); a(f"s_lshl_b32 s{sO}, s{sO}, 10"); a(f"s_add_u32 s{sO}, s{sO}, {WS_H}")
            for s in range(2):
                a.vmem(f"buffer_store_dwordx4 {vr(pk+4*s,4)}, v5, s[{sT}:{sT+3}], s{sO} offen offset:{s*1024} {cfg['aux_st']}", "out")
        else:
            for q in range(8):
                a(f"v_pk_mul_f32 {vr(z+2*q,2)}, {vr(z+2*q,2)}, {vr(RR+2*q,2)}")
            for q in range(8):
                a(f"v_cvt_pk_bf16_f32 v{pk+q}, v{z+2*q}, v{z+2*q+1}")
            if t == 2:
                a("v_bfe_u32 v6, v0, 4, 1"); a("v_lshlrev_b32 v6, 16, v6"); a("v_lshrrev_b32 v7, 5, v0"); a("v_lshl_add_u32 v6, v7, 8, v6")
                a("v_and_b32 v7, 15, v0"); a("v_lshl_add_u32 v6, v7, 4, v6")
            a(f"s_sub_u32 s{sTmp}, s{sCB}, 8"); a(f"s_lshl_b32 s{sTmp}, s{sTmp}, 2"); a(f"s_add_u32 s{sTmp}, s{sTmp}, {2*(t-2)}")
            a(f"s_lshl_b32 s{sTmp}, s{sTmp}, 6"); a(f"s_add_u32 s{sTmp}, s{sTmp}, s{sKC}"); a(f"s_lshl_b32 s{sO}, s{sTmp}, 10"); a(f"s_add_u32 s{sO}, s{sO}, {WS_V}")
            for s in range(2):
                a.vmem(f"buffer_store_dwordx4 {vr(pk+4*s,4)}, v6, s[{sWS}:{sWS+3}], s{sO} offen offset:{s*512} {cfg['aux_st']}", "out")
        if t == 1:
            a.wait(vm=("st", 9)); a("s_barrier")

def gelu_tile(a, z, pk, G, vA1, vB1, vI):
    for q0 in range(0, 8, 2):
        t = [G + 4 * k for k in range(2)]
        for k in range(2): a(f"v_pk_mul_f32 {vr(t[k],2)}, {vr(z+2*(q0+k),2)}, {vr(z+2*(q0+k),2)}")
        for k in range(2): a(f"v_pk_fma_f32 {vr(t[k],2)}, {vr(t[k],2)}, {vr(vB1,2)}, {vr(vA1,2)} op_sel_hi:[1,0,0]")
        for k in range(2): a(f"v_pk_mul_f32 {vr(t[k],2)}, {vr(t[k],2)}, {vr(z+2*(q0+k),2)}")
        for k in range(2):
            a(f"v_exp_f32 v{t[k]}, v{t[k]}"); a(f"v_exp_f32 v{t[k]+1}, v{t[k]+1}")
        for k in range(2): a(f"v_pk_fma_f32 {vr(t[k],2)}, {vr(t[k],2)}, {vr(vI,2)}, {vr(vI,2)} op_sel_hi:[1,0,0]")
        for k in range(2):
            a(f"v_rcp_f32 v{t[k]}, v{t[k]}"); a(f"v_rcp_f32 v{t[k]+1}, v{t[k]+1}")
        for k in range(2): a(f"v_pk_mul_f32 {vr(t[k],2)}, {vr(t[k],2)}, {vr(z+2*(q0+k),2)}")
        for k in range(2): a(f"v_cvt_pk_bf16_f32 v{pk+q0+k}, v{t[k]}, v{t[k]+1}")

def setB(a, cfg):
    XR = 128
    ACC = 16
    WF = 48
    vU = 2
    vWB = 4
    vXA = 64
    vWA = 68
    vWX = 76
    vSum = 84
    vCS = 88
    T = 92
    a("v_lshrrev_b32 v5, 3, v0")
    a("v_bfe_u32 v6, v0, 4, 1"); a("v_lshlrev_b32 v6, 2, v6"); a("v_and_b32 v7, 7, v0"); a("v_xor_b32 v7, v7, v6"); a("v_lshlrev_b32 v7, 4, v7")
    a(f"v_mul_lo_u32 v6, v5, s{sStr0}"); a(f"v_add_u32 v{vU}, v6, v7")
    a(f"v_mul_lo_u32 v6, v5, s{sStr1}"); a(f"v_add_u32 v{vU+1}, v6, v7")
    a(f"v_mul_u32_u24 v6, 3072, v5"); a(f"v_add_u32 v{vWB}, v6, v7")
    a(f"s_lshl_b32 s{sLdsW}, s{sw4}, 11")
    def dma_w(c):
        chunk_k(a, c); a(f"s_lshl_b32 s{sKC}, s{sKC}, 6"); a(f"s_lshl_b32 s{sTmp}, s{sw4}, 4"); a(f"s_add_u32 s{sKC}, s{sKC}, s{sTmp}")
        for kb in range(2):
            for u in range(2):
                st, col, srdr = ((sStr0, sCol0, sU0), (sStr1, sCol1, sU1))[u]
                a(f"s_add_u32 s{sTmp}, s{sKC}, {kb*8}"); a(f"s_mul_i32 s{sTmp}, s{sTmp}, s{st}")
                a(f"s_add_u32 m0, s{sLdsW}, {L_W + (c & 3)*16384 + u*8192 + kb*1024}")
                a(f"s_add_u32 s{sO}, s{sTmp}, s{col}")
                dma(a, vU + u, srdr, ("st", c), cfg["aux_w"])
    for c in range(4): dma_w(c)
    a("v_mov_b32 v6, 0"); a("v_lshlrev_b32 v7, 2, v0"); a(f"s_lshl_b32 s{sTmp}, s{sw4}, 8"); a(f"v_add_u32 v7, s{sTmp}, v7"); a(f"v_add_u32 v7, {L_CS}, v7")
    a.lds("ds_write_b32 v7, v6", "z")
    a(f"v_mov_b32 v7, {L_CNT}"); a.lds("ds_write_b32 v7, v6", "z")
    for i in range(4):
        a(f"s_xor_b32 s{sKC}, s{sw4}, {i}")
        x_addr(a, vXA + i, f"s{sKC}", T)
        tr_addr(a, vWX + 2*i, f"s{sKC}", T)
        a(f"v_add_u32 v{vWA+2*i}, {L_W}, v{vWX+2*i}"); a(f"v_add_u32 v{vWA+2*i+1}, {L_W}, v{vWX+2*i+1}")
    for q in range(4): a(f"v_mov_b32 v{vSum+q}, 0")
    for q in range(2): a(f"v_mov_b32 v{vCS+q}, 0")
    a.wait(vm=("st", 0), lg="all"); a("s_barrier")
    for c in range(8):
        for i in range(4):
            a.lds(f"ds_read_b128 {vr(XR+16*c+4*i,4)}, v{vXA+i} offset:{(c&3)*16384}", ("x", c, i))
        for i in range(4):
            a.wait(lg=("x", c, i))
            for q in range(4):
                r = XR + 16*c + 4*i + q
                a(f"v_dot2c_f32_bf16 v{vSum+(q&1)}, s{sOnes}, v{r}")
                a(f"v_dot2c_f32_bf16 v{vSum+2+(q&1)}, v{r}, v{r}")
        if c == 7:
            a(f"v_add_f32 v{T}, v{vSum}, v{vSum+1}"); a(f"v_add_f32 v{T+1}, v{vSum+2}, v{vSum+3}")
            a(f"v_mov_b32 v{T+2}, v{T}"); a(f"v_mov_b32 v{T+3}, v{T+1}")
            a(f"v_permlane32_swap_b32 v{T}, v{T+2}"); a(f"v_permlane32_swap_b32 v{T+1}, v{T+3}")
            a(f"v_add_f32 v{T}, v{T}, v{T+2}"); a(f"v_add_f32 v{T+1}, v{T+1}, v{T+3}")
            a(f"v_mul_f32 v{T}, {f32(1/512)}, v{T}")
            a(f"v_mul_f32 v{T+2}, v{T}, v{T}")
            a(f"v_mov_b32 v{T+3}, {f32(1/512)}")
            a(f"v_fma_f32 v{T+1}, v{T+1}, v{T+3}, -v{T+2}")
            a(f"v_max_f32 v{T+1}, 0, v{T+1}")
            a(f"v_add_f32 v{T+1}, {f32(EPS)}, v{T+1}")
            a(f"v_rsq_f32 v{T+1}, v{T+1}")
            a("v_and_b32 v5, 31, v0"); a("v_lshlrev_b32 v5, 2, v5")
            a(f"s_lshl_b32 s{sTmp}, s{sw4}, 7"); a(f"v_add_u32 v6, s{sTmp}, v5"); a(f"v_add_u32 v6, {L_MEAN}, v6")
            a.lds(f"ds_write_b32 v6, v{T}", "st"); a.lds(f"ds_write_b32 v6, v{T+1} offset:{L_RSTD-L_MEAN}", "st")
            a.wait(lg="all")
        a.wait(vm=("st", c + 1)); a("s_barrier")
        if c + 4 < 8: dma_w(c + 4)
        elif c + 4 < 10: dma_wb(a, c + 4 - 8, vWB, cfg)
    vMean, vRstd = T, T + 1
    def reads(n):
        c, i = n >> 2, n & 3; b = n & 1
        st, q = c >> 2, c & 3
        base = (vWX if q < 2 else vWA); so = st * 16384 + (q & 1) * 8192
        return [f"ds_read_b64_tr_b16 {vr(WF+8*b+4*t+2*sec,2)}, v{base+2*i+t} offset:{so + sec*512}" for t in range(2) for sec in range(2)]
    for r in reads(0): a.lds(r, ("f", 0))
    if cfg.get("prio", True): a("s_setprio 1")
    for n in range(32):
        c, i = n >> 2, n & 3; b = n & 1
        a.wait(lg=("f", n))
        if n == 15:
            a.wait(vm=("st", 9)); a("s_barrier")
        nxt = reads(n + 1) if n < 31 else []
        for t in range(2):
            acc = vr(ACC + 16*t, 16)
            a(f"v_mfma_f32_32x32x16_bf16 {acc}, {vr(WF+8*b+4*t,4)}, {vr(XR+4*n,4)}, {'0' if n == 0 else acc}")
            for r in nxt[2*t:2*t+2]: a.lds(r, ("f", n + 1))
            if i == 0:
                for q in range(4): a(f"v_dot2c_f32_bf16 v{vCS+t}, s{sOnes}, v{WF+8*b+4*t+q}")
        if n == 28:
            a(f"v_add_u32 v5, {L_CS + 512}, v5")
            for t in range(2): a.lds(f"ds_add_f32 v5, v{vCS+t} offset:{t*128}", "cs")
            a(f"v_mov_b32 v6, {L_CNT}"); a("v_mov_b32 v7, 1")
            a("s_mov_b64 s[62:63], exec"); a("s_mov_b64 exec, 1")
            a.lds("ds_add_u32 v6, v7", "cs")
            a("s_mov_b64 exec, s[62:63]")
    XA = 96; WA = 100
    x_aug(a, XA, vMean, None, T + 20, T + 21, T + 22, T + 23)
    a.wait(lg="all")
    lds_spin(a, 6, 7, 4)
    for t in range(2): a.lds(f"ds_read_b32 v{vCS+t}, v5 offset:{t*128}", "cs2")
    a.wait(lg="all")
    for t in range(2):
        w_aug(a, WA + 4*t, vCS + t, None, T + 20, T + 21, T + 22)
        acc = vr(ACC + 16*t, 16)
        a(f"v_mfma_f32_32x32x16_bf16 {acc}, {vr(WA+4*t,4)}, {vr(XA,4)}, {acc}")
    vSc = T + 2
    a(f"s_cmp_lt_u32 s{sCB}, 8"); a(f"s_cselect_b32 s{sTmp}, {f32(QSCALE)}, 1.0")
    a(f"v_mul_f32 v{vSc}, s{sTmp}, v{vRstd}")
    a("v_lshlrev_b32 v5, 4, v0")
    a(f"s_lshl_b32 s{sKC}, s{sRB}, 2"); a(f"s_add_u32 s{sKC}, s{sKC}, s{sw4}")
    a(f"s_lshl_b32 s{sTmp}, s{sCB}, 8"); a(f"s_add_u32 s{sKC}, s{sKC}, s{sTmp}"); a(f"s_lshl_b32 s{sKC}, s{sKC}, 10"); a(f"s_add_u32 s{sKC}, s{sKC}, {WS_QK}")
    PK = 64
    for t in range(2):
        z = ACC + 16*t
        for q in range(8): a(f"v_pk_mul_f32 {vr(z+2*q,2)}, {vr(z+2*q,2)}, {vr(vSc,2)} op_sel_hi:[1,0]")
        for q in range(8): a(f"v_cvt_pk_bf16_f32 v{PK+8*t+q}, v{z+2*q}, v{z+2*q+1}")
        for hh in range(2):
            a(f"s_add_u32 s{sO}, s{sKC}, {(2*t+hh)*65536}")
            a.vmem(f"buffer_store_dwordx4 {vr(PK+8*t+4*hh,4)}, v5, s[{sWS}:{sWS+3}], s{sO} offen {cfg['aux_st']}", "out")
    if cfg.get("prio", True): a("s_setprio 0")

def build_k1(cfg):
    a = Asm()
    a("s_cmp_ge_u32 s2, 256"); a("s_cbranch_scc1 L_k1_end")
    if cfg.get("stamp"): a("s_memrealtime s[90:91]")
    prologue(a, cfg)
    a(f"s_cmp_ge_u32 s{sW}, 4"); a("s_cbranch_scc1 L_k1_B")
    a(f"s_cmp_ge_u32 s{sCB}, 8"); a("s_cbranch_scc1 L_k1_A2")
    parts = []
    for lab, fn in (("L_k1_A1", lambda x: setA(x, 1, cfg)), ("L_k1_A2", lambda x: setA(x, 2, cfg)), ("L_k1_B", lambda x: setB(x, cfg))):
        b = Asm(); b.uid = 100 * (len(parts) + 1)
        b(f"{lab}:"); fn(b)
        if cfg.get("k1_tail"): cfg["k1_tail"](b, lab)
        b("s_endpgm")
        parts.append(b.text())
    a2 = Asm(); a2("L_k1_end:"); a2("s_endpgm")
    return a.text() + "".join(parts) + a2.text()
```

```python
from asmlib import *
from layout import *
from p1 import srd, lds_spin, SPIN_MAX

L2_RING = 0x0; L2_WO = 0x10000; L2_EX = 0x20000; L2_CNT = 0x24000
P2_LDS = 0x24080
BOUND2 = 64.0 * 64.0
NEG = float("-inf")

sWS, sK, sV, sQ, sW2, sWO, sH0, sH1, sXO = 32, 16, 20, 24, 16, 28, 20, 24, 36
sW, sw4 = 44, 45
sRB, sCB = 46, 47
sO, sTmp, sTmp2, sM = 55, 59, 60, 54
sTT, sHD = 48, 49

def mapping2(a, mode):
    a("s_and_b32 s62, s2, 7"); a("s_lshr_b32 s63, s2, 3")
    if mode == "4x8":
        a("s_lshl_b32 s64, s62, 2"); a("s_lshr_b32 s65, s63, 3"); a(f"s_add_u32 s{sRB}, s64, s65"); a(f"s_and_b32 s{sCB}, s63, 7")
    elif mode == "8x4":
        a("s_lshr_b32 s64, s62, 1"); a("s_lshl_b32 s64, s64, 3"); a("s_lshr_b32 s65, s63, 2"); a(f"s_add_u32 s{sRB}, s64, s65")
        a("s_and_b32 s64, s62, 1"); a("s_lshl_b32 s64, s64, 2"); a("s_and_b32 s65, s63, 3"); a(f"s_add_u32 s{sCB}, s64, s65")
    elif mode == "16x2":
        a("s_lshr_b32 s64, s62, 2"); a("s_lshl_b32 s64, s64, 4"); a("s_lshr_b32 s65, s63, 1"); a(f"s_add_u32 s{sRB}, s64, s65")
        a("s_and_b32 s64, s62, 3"); a("s_lshl_b32 s64, s64, 1"); a("s_and_b32 s65, s63, 1"); a(f"s_add_u32 s{sCB}, s64, s65")
    else: raise ValueError(mode)

def prologue2(a, cfg):
    a("s_load_dwordx2 s[4:5], s[0:1], 0"); a("s_load_dwordx2 s[6:7], s[0:1], 16")
    a("s_load_dwordx4 s[8:11], s[0:1], 48"); a("s_load_dwordx2 s[12:13], s[0:1], 80"); a("s_load_dwordx2 s[14:15], s[0:1], 64")
    a("v_lshrrev_b32 v1, 6, v0"); a("v_and_b32 v0, 63, v0"); a(f"v_readfirstlane_b32 s{sW}, v1")
    mapping2(a, cfg["map2"])
    a(f"s_and_b32 s{sw4}, s{sW}, 3")
    a(f"s_lshl_b32 s{sTT}, s{sRB}, 1")
    a(f"v_mov_b32 v2, {L2_CNT}"); a("v_mov_b32 v3, 0"); a("ds_write_b32 v2, v3")
    a("s_waitcnt lgkmcnt(0)")
    srd(a, sWS, "s12", "s13", 0x10000000)
    a("s_barrier")

def w_src_addr(a, dst):
    a("v_lshrrev_b32 v5, 3, v0")
    a("v_bfe_u32 v6, v0, 4, 1"); a("v_lshlrev_b32 v6, 2, v6"); a("v_and_b32 v7, 7, v0"); a("v_xor_b32 v7, v7, v6"); a("v_lshlrev_b32 v7, 4, v7")
    a(f"v_lshl_add_u32 v{dst}, v5, 10, v7")
    a(f"s_lshl_b32 s{sTmp}, s{sCB}, 7"); a(f"v_add_u32 v{dst}, s{sTmp}, v{dst}")

def tr_addr2(a, dst, base_s):
    a(f"v_lshrrev_b32 v5, 5, v0"); a(f"v_lshlrev_b32 v{dst}, 9, v5")
    a(f"v_bfe_u32 v5, v0, 2, 2"); a(f"v_lshl_add_u32 v{dst}, v5, 7, v{dst}")
    a(f"v_bfe_u32 v5, v0, 3, 1"); a(f"v_lshl_add_u32 v{dst}, v5, 6, v{dst}")
    a(f"v_bfe_u32 v5, v0, 4, 1"); a(f"v_lshl_add_u32 v{dst}, v5, 5, v{dst}")
    a(f"v_and_b32 v5, 3, v0"); a(f"v_lshl_add_u32 v{dst}, v5, 3, v{dst}")
    a(f"v_add_u32 v{dst}, {base_s}, v{dst}")
    a(f"v_xor_b32 v{dst+1}, 64, v{dst}")

def sub_srd(a, d, off_s, size):
    a(f"s_add_u32 s{d}, s12, {off_s}"); a(f"s_addc_u32 s{d+1}, s13, 0"); a(f"s_mov_b32 s{d+2}, {size}"); a(f"s_mov_b32 s{d+3}, 0x20000")

KF, VF, QF, CD, CF, SB, PB, OA = 16, 56, 136, 144, 160, 176, 208, 224

def attn_tiles():
    return [(b, j) for b in range(2) for j in range(b, b + 9)]

def attn_epilogue(a, b, cfg):
    o = OA + 16 * b
    a(f"v_rcp_f32 v8, v{o+8}")
    for q in range(4): a(f"v_pk_mul_f32 {vr(o+2*q,2)}, {vr(o+2*q,2)}, v[8:9] op_sel_hi:[1,0]")
    for q in range(4): a(f"v_cvt_pk_bf16_f32 v{o+8+q}, v{o+2*q}, v{o+2*q+1}")
    a(f"s_add_u32 s{sO}, s{sTT}, {b}"); a(f"s_lshl_b32 s{sO}, s{sO}, 5"); a(f"s_add_u32 s{sO}, s{sO}, s{sHD}"); a(f"s_lshl_b32 s{sO}, s{sO}, 10"); a(f"s_add_u32 s{sO}, s{sO}, {WS_O}")
    a.vmem(f"buffer_store_dwordx4 {vr(o+8,4)}, v2, s[{sWS}:{sWS+3}], s{sO} offen sc1", "ost")

def s_mfma(a, n, tiles):
    b, j = tiles[n]
    c = vr(CF, 16) if j == b else (vr(CD, 16) if j == b + 8 else "0")
    a(f"v_mfma_f32_32x32x16_bf16 {vr(SB+16*(n&1),16)}, {vr(KF+4*j,4)}, {vr(QF+4*b,4)}, {c}")

def pv_mfma(a, n, s, tiles):
    b, j = tiles[n]; o = vr(OA + 16 * b, 16)
    first = (j == b and s == 0)
    a(f"v_mfma_f32_32x32x16_bf16 {o}, {vr(VF+8*j+4*s,4)}, {vr(PB+8*(n&1)+4*s,4)}, {'0' if first else o}")

def attn_fast(a, cfg):
    tiles = attn_tiles()
    s_mfma(a, 0, tiles)
    for n in range(18):
        b, j = tiles[n]
        S = SB + 16 * (n & 1); P = PB + 8 * (n & 1)
        if n + 1 < 18: s_mfma(a, n + 1, tiles)
        for s in range(2):
            for q in range(8): a(f"v_exp_f32 v{S+8*s+q}, v{S+8*s+q}")
            for q in range(4): a(f"v_cvt_pk_bf16_f32 v{P+4*s+q}, v{S+8*s+2*q}, v{S+8*s+2*q+1}")
            if s == 0:
                a.wait(vm=("v", j))
                if n > 0: pv_mfma(a, n - 1, 1, tiles)
            else:
                pv_mfma(a, n, 0, tiles)
        if n == 10: attn_epilogue(a, 0, cfg)
    pv_mfma(a, 17, 1, tiles)
    attn_epilogue(a, 1, cfg)

def attn_slow(a, cfg):
    tiles = attn_tiles()
    a.wait(vm=[("v", j) for j in range(10)])
    for b in range(2):
        a("v_mov_b32 v10, 0xff800000")
        for n, (bb, j) in enumerate(tiles):
            if bb != b: continue
            skip = a.label("skip")
            a(f"s_add_i32 s{sTmp}, s{sTT}, {j-8}"); a(f"s_cmp_lt_i32 s{sTmp}, 0"); a(f"s_cbranch_scc1 {skip}")
            s_mfma(a, n, tiles)
            S = SB + 16 * (n & 1)
            for q in range(8): a(f"v_max3_f32 v10, v10, v{S+2*q}, v{S+2*q+1}")
            a(f"{skip}:")
            a("s_nop 7"); a("s_nop 7")
        a("v_mov_b32 v11, v10"); a("v_permlane32_swap_b32 v10, v11"); a("v_max_f32 v10, v10, v11")
        for n, (bb, j) in enumerate(tiles):
            if bb != b: continue
            s_mfma(a, n, tiles)
            S = SB + 16 * (n & 1); P = PB + 8 * (n & 1)
            for q in range(16):
                a(f"v_sub_f32 v{S+q}, v{S+q}, v10"); a(f"v_min_f32 v{S+q}, 0, v{S+q}"); a(f"v_exp_f32 v{S+q}, v{S+q}")
            for q in range(8): a(f"v_cvt_pk_bf16_f32 v{P+q}, v{S+2*q}, v{S+2*q+1}")
            pv_mfma(a, n, 0, tiles); pv_mfma(a, n, 1, tiles)
        attn_epilogue(a, b, cfg)

def wave_max32(a, v):
    for m in ("quad_perm:[1,0,3,2] row_mask:0xf bank_mask:0xf", "quad_perm:[2,3,0,1] row_mask:0xf bank_mask:0xf",
              "row_half_mirror row_mask:0xf bank_mask:0xf", "row_mirror row_mask:0xf bank_mask:0xf", "row_bcast:15 row_mask:0xa bank_mask:0xf"):
        a(f"v_max_f32_dpp v{v}, v{v}, v{v} {m}")

def setA2(a, cfg):
    ax = cfg["aux_i"]
    a(f"s_lshl_b32 s{sHD}, s{sCB}, 2"); a(f"s_add_u32 s{sHD}, s{sHD}, s{sw4}")
    a(f"s_lshl_b32 s{sTmp}, s{sHD}, 16")
    a(f"s_add_u32 s{sTmp2}, s{sTmp}, {WS_QK}"); sub_srd(a, sQ, f"s{sTmp2}", 65536)
    a(f"s_add_u32 s{sTmp2}, s{sTmp}, {WS_QK + 32*65536}"); sub_srd(a, sK, f"s{sTmp2}", 65536)
    a(f"s_add_u32 s{sTmp2}, s{sTmp}, {WS_V}"); sub_srd(a, sV, f"s{sTmp2}", 65536)
    a("v_lshlrev_b32 v2, 4, v0")
    a(f"s_lshl_b32 s{sM}, s{sTT}, 10")
    for b in range(2):
        a.vmem(f"buffer_load_dwordx4 {vr(QF+4*b,4)}, v2, s[{sQ}:{sQ+3}], s{sM} offen offset:{b*1024} {ax}", "q")
    for j in range(10):
        a(f"s_add_u32 s{sO}, s{sM}, {(j-8)*1024 & 0xffffffff}")
        a.vmem(f"buffer_load_dwordx4 {vr(KF+4*j,4)}, v2, s[{sK}:{sK+3}], s{sO} offen {ax}", "k")
    a("v_and_b32 v3, 27, v0"); a("v_cmp_eq_u32 vcc, 16, v3")
    a("v_mov_b32 v4, 0x3f803f80"); a("v_cndmask_b32 v4, 0, v4, vcc")
    a("v_lshrrev_b32 v3, 5, v0"); a("v_lshlrev_b32 v3, 8, v3"); a("v_and_b32 v5, 15, v0"); a("v_lshl_add_u32 v3, v5, 4, v3")
    for j in range(10):
        a(f"s_add_i32 s{sTmp}, s{sTT}, {j-8}"); a(f"s_cmp_ge_i32 s{sTmp}, 0"); a(f"s_cselect_b32 s{sTmp}, -1, 0")
        for q in range(8): a(f"v_and_b32 v{VF+8*j+q}, s{sTmp}, v4")
        a("s_mov_b32 exec_lo, 0xffff"); a("s_mov_b32 exec_hi, 0xffff")
        a(f"s_add_u32 s{sO}, s{sM}, {(j-8)*1024 & 0xffffffff}")
        for s in range(2):
            a.vmem(f"buffer_load_dwordx4 {vr(VF+8*j+4*s,4)}, v3, s[{sV}:{sV+3}], s{sO} offen offset:{s*512} {ax}", ("v", j))
        a("s_mov_b64 exec, -1")
    srd(a, sWO, "s6", "s7", 524288)
    w_src_addr(a, 8)
    a(f"s_lshl_b32 s{sTmp2}, s{sw4}, 14"); a(f"s_lshl_b32 s{sTmp}, s{sw4}, 17")
    for g in range(16):
        a(f"s_add_u32 m0, s{sTmp2}, {L2_WO + g*1024}")
        a(f"s_add_u32 s{sO}, s{sTmp}, {g*8192}")
        a.vmem(f"buffer_load_dwordx4 v8, s[{sWO}:{sWO+3}], s{sO} offen {cfg['aux_w2']} lds", "wo")
    a("v_and_b32 v5, 31, v0"); a("v_lshrrev_b32 v6, 5, v0"); a("v_lshlrev_b32 v6, 2, v6"); a("v_sub_u32 v5, v5, v6")
    a(f"v_mov_b32 v6, {f32(NEG)}")
    for r in range(16):
        a(f"v_cmp_le_i32 vcc, {8*(r>>2) + (r&3)}, v5")
        a(f"v_cndmask_b32_e64 v{CD+r}, v6, 0, vcc")
        a(f"v_cndmask_b32_e64 v{CF+r}, 0, v6, vcc")
    a.wait(vm="k")
    a("v_mov_b32 v10, 0"); a("v_mov_b32 v11, 0")
    for j in range(12):
        base = (KF + 4*j) if j < 10 else (QF + 4*(j-10))
        t = 12 + (j & 1)
        a(f"v_dot2_f32_bf16 v{t}, v{base}, v{base}, 0")
        for q in range(1, 4): a(f"v_dot2_f32_bf16 v{t}, v{base+q}, v{base+q}, v{t}")
        if j > 0:
            pj = j - 1; d = 10 if pj < 10 else 11
            a(f"v_max_f32 v{d}, v{d}, v{12+(pj&1)}")
    a("v_max_f32 v11, v11, v13")
    wave_max32(a, 10); wave_max32(a, 11)
    a("v_readlane_b32 s62, v10, 31"); a("v_readlane_b32 s63, v10, 63"); a("v_readlane_b32 s64, v11, 31"); a("v_readlane_b32 s65, v11, 63")
    a("v_mov_b32 v10, s62"); a("v_mov_b32 v11, s64"); a("v_add_f32 v10, s63, v10"); a("v_add_f32 v11, s65, v11")
    a("v_mul_f32 v10, v10, v11")
    a(f"v_cmp_nge_f32 vcc, {f32(cfg.get('bound2', BOUND2))}, v10")
    a("s_nop 4")
    a("s_cmp_lg_u64 vcc, 0")
    a("s_cbranch_scc1 L_attn_slow")
    saved = list(a.vm)
    attn_fast(a, cfg)
    a("L_attn_done:")
    a("s_waitcnt vmcnt(0)"); a.vm = []
    a(f"s_lshl_b32 s{sO}, s{sRB}, 5"); a(f"s_add_u32 s{sO}, s{sO}, s{sHD}"); a(f"s_lshl_b32 s{sO}, s{sO}, 7"); a(f"s_add_u32 s{sO}, s{sO}, {WS_FLAG}")
    a("v_mov_b32 v4, 0"); a("v_mov_b32 v5, 1"); a(f"v_mov_b32 v6, {L2_CNT}")
    a("s_mov_b64 exec, 1")
    a.vmem(f"buffer_store_dword v5, v4, s[{sWS}:{sWS+3}], s{sO} offen sc1", "flag")
    a.lds("ds_add_u32 v6, v5", "cnt")
    a("s_mov_b64 exec, -1")
    OF, WF, ACC, XR = 16, 80, 96, 128
    sKH, sT1 = 50, 51
    a(f"s_lshr_b32 s{sKH}, s{sw4}, 1"); a(f"s_and_b32 s{sT1}, s{sw4}, 1"); a(f"s_add_u32 s{sT1}, s{sT1}, s{sTT}")
    srd(a, sXO, "s4", "s5", 0x200000); srd(a, sK, "s10", "s11", 1024)
    a(f"s_lshl_b32 s{sTmp}, s{sCB}, 7"); a(f"s_lshl_b32 s{sTmp2}, s{sKH}, 6"); a(f"s_add_u32 s{sTmp}, s{sTmp}, s{sTmp2}")
    a("v_lshrrev_b32 v7, 5, v0"); a("v_lshlrev_b32 v8, 3, v7"); a(f"v_add_u32 v8, s{sTmp}, v8")
    a("v_and_b32 v9, 31, v0"); a(f"s_lshl_b32 s{sTmp2}, s{sT1}, 5"); a(f"v_add_u32 v9, s{sTmp2}, v9"); a("v_lshlrev_b32 v9, 10, v9")
    a("v_add_u32 v10, v9, v8")
    a("v_lshl_add_u32 v11, v7, 3, v10")
    for j in range(4):
        a.vmem(f"buffer_load_dwordx2 {vr(XR+2*j,2)}, v10, s[{sXO}:{sXO+3}], 0 offen offset:{j*16}", "xb")
        a.vmem(f"buffer_load_dwordx2 {vr(XR+8+2*j,2)}, v8, s[{sK}:{sK+3}], 0 offen offset:{j*16}", "xb")
    a(f"s_lshl_b32 s{sO}, s{sRB}, 5"); a(f"s_lshl_b32 s{sTmp}, s{sKH}, 4"); a(f"s_add_u32 s{sO}, s{sO}, s{sTmp}"); a(f"s_lshl_b32 s{sO}, s{sO}, 7"); a(f"s_add_u32 s{sO}, s{sO}, {WS_FLAG}")
    a("v_and_b32 v12, 15, v0"); a("v_lshlrev_b32 v12, 7, v12")
    a.wait(vm="xb")
    for j in range(4):
        for d in range(2):
            x, bb, o = XR + 2*j + d, XR + 8 + 2*j + d, ACC + 4*j + 2*d
            a(f"v_lshlrev_b32 v13, 16, v{x}"); a(f"v_lshlrev_b32 v14, 16, v{bb}"); a(f"v_add_f32 v{o}, v13, v14")
            a(f"v_and_b32 v13, 0xffff0000, v{x}"); a(f"v_and_b32 v14, 0xffff0000, v{bb}"); a(f"v_add_f32 v{o+1}, v13, v14")
    a(f"s_lshl_b32 s{sTmp}, s{sKH}, 15"); a(f"s_add_u32 s{sTmp}, s{sTmp}, {L2_WO}")
    tr_addr2(a, 14, f"s{sTmp}")
    a(f"s_lshl_b32 s{sTmp}, s{sKH}, 6"); a(f"v_xor_b32 v14, s{sTmp}, v14"); a(f"v_xor_b32 v15, s{sTmp}, v15")
    lp = a.label("poll"); lq = a.label("pollx")
    a("s_mov_b32 s66, 0")
    a(f"{lp}:")
    a(f"buffer_load_dword v13, v12, s[{sWS}:{sWS+3}], s{sO} offen sc1")
    a("s_add_u32 s66, s66, 1"); a(f"s_cmp_gt_u32 s66, {SPIN_MAX}"); a(f"s_cbranch_scc1 {lq}")
    a("s_waitcnt vmcnt(0)")
    a("v_cmp_ne_u32 vcc, 1, v13")
    a("s_nop 4"); a("s_cmp_lg_u64 vcc, 0"); a(f"s_cbranch_scc1 {lp}")
    a(f"{lq}:")
    a.vm = []
    a(f"s_lshl_b32 s{sO}, s{sT1}, 5"); a(f"s_lshl_b32 s{sTmp}, s{sKH}, 4"); a(f"s_add_u32 s{sO}, s{sO}, s{sTmp}"); a(f"s_lshl_b32 s{sO}, s{sO}, 10"); a(f"s_add_u32 s{sO}, s{sO}, {WS_O}")
    for n in range(16):
        if n and n % 4 == 0: a(f"s_add_u32 s{sO}, s{sO}, 4096")
        a.vmem(f"buffer_load_dwordx4 {vr(OF+4*n,4)}, v2, s[{sWS}:{sWS+3}], s{sO} offen offset:{(n%4)*1024} sc1", ("o", n))
    lds_spin(a, 6, 7, 4)
    a.lg = []
    def reads(n):
        return [f"ds_read_b64_tr_b16 {vr(WF+8*(n&1)+4*t+2*sec,2)}, v{14+t} offset:{n*2048 + sec*1024}" for t in range(2) for sec in range(2)]
    for r in reads(0): a.lds(r, ("f", 0))
    for n in range(16):
        nxt = reads(n + 1) if n < 15 else []
        for r in nxt: a.lds(r, ("f", n + 1))
        a.wait(vm=("o", n), lg=("f", n))
        for t in range(2):
            acc = vr(ACC + 16*t, 16)
            a(f"v_mfma_f32_32x32x16_bf16 {acc}, {vr(WF+8*(n&1)+4*t,4)}, {vr(OF+4*n,4)}, {'0' if (n == 0 and t == 1) else acc}")
    a(f"s_lshl_b32 s{sTmp}, s{sw4}, 12"); a(f"s_add_u32 s{sTmp}, s{sTmp}, {L2_EX}"); a(f"v_add_u32 v12, s{sTmp}, v2")
    a(f"v_xor_b32 v13, 0x2000, v12")
    for q in range(4): a.lds(f"ds_write_b128 v12, {vr(ACC+16+4*q,4)} offset:{q*1024}", "ex")
    a(f"s_and_b32 s{sTmp}, s{sw4}, 1"); a(f"s_lshl_b32 s{sTmp}, s{sTmp}, 1"); a(f"s_add_u32 s{sTmp}, s{sTmp}, s{sKH}"); a(f"s_lshl_b32 s{sTmp}, s{sTmp}, 12")
    a(f"v_add_u32 v12, s{sTmp}, v2")
    a.wait(lg="all"); a("s_barrier")
    PT = 16
    for p in range(5):
        for q in range(4):
            if p < 4: a.lds(f"ds_read_b128 {vr(PT+16*p+4*q,4)}, v12 offset:{p*16384 + q*1024}", ("p", p))
            else: a.lds(f"ds_read_b128 {vr(PT+16*p+4*q,4)}, v13 offset:{q*1024}", ("p", p))
    for p in range(5):
        a.wait(lg=("p", p))
        for q in range(8): a(f"v_pk_add_f32 {vr(ACC+2*q,2)}, {vr(ACC+2*q,2)}, {vr(PT+16*p+2*q,2)}")
    for q in range(8): a(f"v_cvt_pk_bf16_f32 v{XR+q}, v{ACC+2*q}, v{ACC+2*q+1}")
    srd(a, sXO, "s14", "s15", 0x200000)
    for jp in range(2):
        a(f"v_permlane32_swap_b32 v{XR+4*jp}, v{XR+4*jp+2}"); a(f"v_permlane32_swap_b32 v{XR+4*jp+1}, v{XR+4*jp+3}")
        a.vmem(f"buffer_store_dwordx4 {vr(XR+4*jp,4)}, v11, s[{sXO}:{sXO+3}], 0 offen offset:{jp*32}", "out")
    return saved

def setB2(a, cfg):
    ACC, HR, WF = 16, 80, 144
    D = 8
    srd(a, sW2, "s8", "s9", 1409024)
    a(f"s_mul_i32 s{sTmp}, s{sTT}, {86*1024}"); a(f"s_add_u32 s{sTmp}, s{sTmp}, {WS_H}")
    sub_srd(a, sH0, f"s{sTmp}", 86 * 1024); a(f"s_add_u32 s{sTmp}, s{sTmp}, {86*1024}"); sub_srd(a, sH1, f"s{sTmp}", 86 * 1024)
    w_src_addr(a, 8)
    a("v_lshlrev_b32 v2, 4, v0")
    sKW, sKHh, sL = 50, 51, 52
    a(f"s_mul_i32 s{sKW}, s{sw4}, {22*16*1024}")
    a(f"s_mul_i32 s{sKHh}, s{sw4}, {22*1024}")
    a(f"s_lshl_b32 s{sL}, s{sw4}, 14")
    def issue(n):
        for kb in range(2):
            a(f"s_add_u32 m0, s{sL}, {L2_RING + (n % D)*2048 + kb*1024}")
            a(f"s_add_u32 s{sO}, s{sKW}, {n*16384 + kb*8192}")
            a.vmem(f"buffer_load_dwordx4 v8, s[{sW2}:{sW2+3}], s{sO} offen {cfg['aux_w2']} lds", ("s", n))
        a(f"s_add_u32 s{sO}, s{sKHh}, {n*1024}")
        for t in range(2):
            a.vmem(f"buffer_load_dwordx4 {vr(HR+8*(n%D)+4*t,4)}, v2, s[{(sH0,sH1)[t]}:{(sH0,sH1)[t]+3}], s{sO} offen {cfg['aux_i']}", ("s", n))
    for n in range(D): issue(n)
    tr_addr2(a, 10, f"s{sL}")
    def reads(n):
        return [f"ds_read_b64_tr_b16 {vr(WF+8*(n&1)+4*t+2*sec,2)}, v{10+t} offset:{(n%D)*2048 + sec*1024}" for t in range(2) for sec in range(2)]
    a.wait(vm=("s", 0))
    for r in reads(0): a.lds(r, ("f", 0))
    for n in range(22):
        if n < 21:
            a.wait(vm=("s", n + 1))
            for r in reads(n + 1): a.lds(r, ("f", n + 1))
        a.wait(lg=("f", n))
        for tt in range(2):
            for ft in range(2):
                acc = vr(ACC + 16*(2*tt+ft), 16)
                a(f"v_mfma_f32_32x32x16_bf16 {acc}, {vr(WF+8*(n&1)+4*ft,4)}, {vr(HR+8*(n%D)+4*tt,4)}, {'0' if n == 0 else acc}")
        if n + D < 22: issue(n + D)
    a(f"v_add_u32 v12, s{sL}, v2")
    for t in range(4):
        for q in range(4): a.lds(f"ds_write_b128 v12, {vr(ACC+16*t+4*q,4)} offset:{t*4096 + q*1024}", "d")
    a.wait(lg="all"); a("s_barrier")

def build_k2(cfg):
    a = Asm()
    a("s_cmp_ge_u32 s2, 256"); a("s_cbranch_scc1 L_k2_end")
    if cfg.get("stamp"): a("s_memrealtime s[90:91]")
    prologue2(a, cfg)
    a(f"s_cmp_ge_u32 s{sW}, 4"); a("s_cbranch_scc1 L_k2_B")
    A = Asm(); A.uid = 1000
    saved = setA2(A, cfg)
    if cfg.get("k2_tail"): cfg["k2_tail"](A, "A")
    A("s_endpgm")
    S = Asm(); S.uid = 2000; S.vm = saved
    S("L_attn_slow:"); attn_slow(S, cfg); S("s_branch L_attn_done")
    B = Asm(); B.uid = 3000
    B("L_k2_B:"); setB2(B, cfg)
    if cfg.get("k2_tail"): cfg["k2_tail"](B, "B")
    B("s_endpgm")
    E = Asm(); E("L_k2_end:"); E("s_endpgm")
    return a.text() + A.text() + S.text() + B.text() + E.text()
```

```python
import sys
from asmlib import *
from layout import *
import p1, p2
def default_cfg():
    return dict(map1="8x4", map2="4x8", rot=True, aux_x="", aux_w="", aux_st="", aux_i="", aux_w2="", prio=True)
def stamp_tail(slot_base):
    def f(a, lab):
        a("s_waitcnt vmcnt(0)")
        a("s_memrealtime s[92:93]"); a("s_waitcnt lgkmcnt(0)")
        a("s_lshl_b32 s94, s2, 3"); a("s_add_u32 s94, s94, s44"); a("s_lshl_b32 s94, s94, 4"); a(f"s_add_u32 s94, s94, {slot_base}")
        a("v_mov_b32 v4, s90"); a("v_mov_b32 v5, s92"); a("v_mov_b32 v6, s95"); a("v_mov_b32 v7, s96"); a("v_mov_b32 v8, 0")
        a("s_mov_b64 exec, 1")
        a("buffer_store_dwordx4 v[4:7], v8, s[32:35], s94 offen")
    return f
def build2k(cfg):
    cfg = dict(cfg)
    stamp = cfg.get("stamp")
    def k1_tail(a, lab):
        if lab == "L_k1_B":
            a(f"s_lshl_b32 s55, s2, 2"); a("s_add_u32 s55, s55, s45"); a("s_lshl_b32 s55, s55, 7"); a(f"s_add_u32 s55, s55, {WS_FLAG}")
            a("v_mov_b32 v4, 0"); a("s_mov_b64 exec, 1")
            a("buffer_store_dword v4, v4, s[32:35], s55 offen"); a("s_mov_b64 exec, -1")
        if stamp: stamp_tail(0)(a, lab)
    cfg["k1_tail"] = k1_tail
    if stamp: cfg["k2_tail"] = stamp_tail(0x10000)
    k1 = p1.build_k1(cfg); k2 = p2.build_k2(cfg)
    return file_text([("p1_kernel", k1, 256, 102, 0), ("p2_kernel", k2, 256, 102, 0)],
                     [("p1_kernel", 256, 512, p1.P1_LDS), ("p2_kernel", 256, 512, p2.P2_LDS)])
if __name__ == "__main__":
    cfg = default_cfg()
    for kv in sys.argv[2:]:
        k, v = kv.split("=", 1)
        cfg[k] = {"True": True, "False": False}.get(v, v)
    if "bound2" in cfg: cfg["bound2"] = float(cfg["bound2"])
    open(sys.argv[1], "w").write(build2k(cfg))
```

```python
from asmlib import *
from layout import *

L_X = 0x0; L_W = 0x10000
L_CS = 0x20000; L_PS = 0x20c00; L_RSTD = 0x21c00; L_CNT = 0x21e00
L_EX = 0x22000
LDS_BYTES = 0x26000
C_CS, C_ST9, C_RING, C_WO, C_POLL = 0, 4, 8, 12, 16
WO_BASE = (0x8000, 0x18000)
SPIN_MAX = 400000
BOUND2 = 64.0 * 64.0
NEG = float("-inf")
WS_EPOCH = 0x70000
WS_F1 = 0x80000
WS_F2 = 0xA0000

pX, pQKV, pWO, pW1, pB1, pW2, pB2, pOUT, pDBG, pWS = 4, 6, 8, 12, 14, 16, 18, 20, 22, 24
R0, sWS, R2, R3, R4, R5, R6 = 28, 32, 36, 40, 44, 48, 52
sW, sw4, sRB, sCB, sROT, sN = 56, 57, 58, 59, 60, 61
sO, sKC, sTmp, sTmp2, sA, sB = 62, 63, 64, 65, 66, 67
sStr1, sCol0, sCol1, sTA, sTB, sLdsW, sLdsX, sLdsB = 68, 69, 70, 71, 72, 73, 74, 75
sRB2, sCB2, sTT = 76, 77, 78
sHD, sM, sKH, sT1, sKW, sKHh, sL = 68, 69, 70, 71, 72, 73, 74
STAMP0 = 80; NSTAMP = 11

def stamp(a, cfg, i):
    if cfg.get("stamp"):
        a(f"{'s_memtime' if cfg.get('stamp') == 'cyc' else 's_memrealtime'} s[{STAMP0+2*i}:{STAMP0+2*i+1}]")
def stamp_dump(a, cfg, base, v):
    if not cfg.get("stamp"): return
    a("s_waitcnt lgkmcnt(0)"); a.lg = []
    a(f"s_lshl_b32 s{sA}, s2, 3"); a(f"s_add_u32 s{sA}, s{sA}, s{sW}"); a(f"s_lshl_b32 s{sA}, s{sA}, 6"); a(f"s_add_u32 s{sA}, s{sA}, {base}")
    for i in range(12): a(f"v_mov_b32 v{v+i}, {'s%d' % (STAMP0+2*i) if i < NSTAMP else 0}")
    a(f"v_mov_b32 v{v+12}, 0"); a("s_mov_b64 exec, 1")
    for q in range(3): a.vmem(f"buffer_store_dwordx4 {vr(v+4*q,4)}, v{v+12}, s[{sWS}:{sWS+3}], s{sA} offen offset:{16*q}", "stamp")
    a("s_mov_b64 exec, -1")
    for i in range(NSTAMP): a(f"s_mov_b32 s{STAMP0+2*i}, 0")

def srd(a, d, p, size):
    a(f"s_mov_b32 s{d}, s{p}"); a(f"s_mov_b32 s{d+1}, s{p+1}"); a(f"s_mov_b32 s{d+2}, {size}"); a(f"s_mov_b32 s{d+3}, 0x20000")
def sub_srd(a, d, off_s, size):
    a(f"s_add_u32 s{d}, s{pWS}, {off_s}"); a(f"s_addc_u32 s{d+1}, s{pWS+1}, 0"); a(f"s_mov_b32 s{d+2}, {size}"); a(f"s_mov_b32 s{d+3}, 0x20000")

def lds_spin(a, vaddr, vtmp, off, target, sleep=0):
    lp = a.label("spin"); lq = a.label("spinx")
    a(f"s_mov_b32 s{sA}, 0")
    a(f"{lp}:")
    a(f"ds_read_b32 v{vtmp}, v{vaddr} offset:{off}")
    a(f"s_add_u32 s{sA}, s{sA}, 1"); a(f"s_cmp_gt_u32 s{sA}, {SPIN_MAX}"); a(f"s_cbranch_scc1 {lq}")
    a("s_waitcnt lgkmcnt(0)"); a(f"v_readfirstlane_b32 s{sB}, v{vtmp}"); a(f"s_cmp_ge_u32 s{sB}, {target}"); a(f"s_cbranch_scc1 {lq}")
    if sleep: a(f"s_sleep {sleep}")
    a(f"s_branch {lp}")
    a(f"{lq}:")
    a("s_waitcnt lgkmcnt(0)"); a.lg = []
def lds_count(a, vaddr, vone, off):
    a("s_mov_b64 exec, 1"); a.lds(f"ds_add_u32 v{vaddr}, v{vone} offset:{off}", "cnt"); a("s_mov_b64 exec, -1")

def flag_poll(a, vaddr, vdat, nl, sleep=6):
    lp = a.label("poll"); lq = a.label("pollx")
    a(f"s_mov_b32 s{sA}, 0")
    a(f"{lp}:")
    a(f"buffer_load_dword v{vdat}, v{vaddr}, s[{sWS}:{sWS+3}], 0 offen sc1")
    a(f"s_add_u32 s{sA}, s{sA}, 1"); a(f"s_cmp_gt_u32 s{sA}, {SPIN_MAX}"); a(f"s_cbranch_scc1 {lq}")
    a("s_waitcnt vmcnt(0)")
    a(f"v_cmp_ne_u32 vcc, s{sN}, v{vdat}")
    a("s_nop 4"); a("s_cmp_eq_u64 vcc, 0"); a(f"s_cbranch_scc1 {lq}")
    a(f"s_sleep {sleep}"); a(f"s_branch {lp}")
    a(f"{lq}:")
    a("s_waitcnt vmcnt(0)"); a.vm = []

def nonce_issue(a, v):
    srd(a, R6, pDBG, 256)
    a(f"v_mov_b32 v{v+2}, 0")
    a.vmem(f"buffer_load_dwordx2 {vr(v,2)}, v{v+2}, s[{R6}:{R6+3}], 0 offen sc1", "nonce")
def nonce_get(a, v):
    a.wait(vm="nonce")
    lp = a.label("nonce"); lq = a.label("noncex")
    a(f"s_mov_b32 s{sA}, 0")
    a(f"{lp}:")
    a(f"v_readfirstlane_b32 s{sB}, v{v+1}"); a(f"v_readfirstlane_b32 s{sN}, v{v}")
    a(f"s_cmp_eq_u32 s{sB}, 1"); a(f"s_cbranch_scc1 {lq}")
    a(f"s_add_u32 s{sA}, s{sA}, 1"); a(f"s_cmp_gt_u32 s{sA}, {SPIN_MAX}"); a(f"s_cbranch_scc1 {lq}")
    a(f"buffer_load_dwordx2 {vr(v,2)}, v{v+2}, s[{R6}:{R6+3}], 0 offen sc1"); a("s_waitcnt vmcnt(0)")
    a(f"s_branch {lp}")
    a(f"{lq}:")
def publish(a, off_s, v):
    a.wait(vm="all")
    a(f"v_mov_b32 v{v}, s{sN}"); a(f"v_mov_b32 v{v+1}, 0"); a("s_mov_b64 exec, 1")
    a.vmem(f"buffer_store_dword v{v}, v{v+1}, s[{sWS}:{sWS+3}], {off_s} offen sc1", "flag")
    a("s_mov_b64 exec, -1")
def f1_addr(a, cls):
    a(f"s_lshl_b32 s{sO}, s{sRB}, 4"); a(f"s_add_u32 s{sO}, s{sO}, s{sCB}"); a(f"s_mul_i32 s{sO}, s{sO}, 384")
    a(f"s_lshl_b32 s{sTmp}, s{sw4}, 2"); a(f"s_add_u32 s{sO}, s{sO}, s{sTmp}"); a(f"s_add_u32 s{sO}, s{sO}, {WS_F1 + cls*128}")

def mapping(a, cfg):
    m1, m2 = cfg["map1"], cfg["map2"]
    a(f"s_and_b32 s{sA}, s2, 7"); a(f"s_lshr_b32 s{sB}, s2, 3")
    t, u = sTmp, sTmp2
    if m1 == "8x4":
        a(f"s_lshr_b32 s{t}, s{sA}, 2"); a(f"s_lshl_b32 s{t}, s{t}, 3"); a(f"s_lshr_b32 s{u}, s{sB}, 2"); a(f"s_add_u32 s{sRB}, s{t}, s{u}")
        a(f"s_and_b32 s{t}, s{sB}, 3"); a(f"s_lshl_b32 s{sROT}, s{t}, 1"); a(f"s_add_u32 s{sROT}, s{sROT}, s{u}")
        a(f"s_lshl_b32 s{t}, s{t}, 2"); a(f"s_and_b32 s{u}, s{sA}, 3"); a(f"s_add_u32 s{sCB}, s{t}, s{u}")
    elif m1 == "4x8":
        a(f"s_lshr_b32 s{t}, s{sA}, 1"); a(f"s_lshl_b32 s{t}, s{t}, 2"); a(f"s_lshr_b32 s{u}, s{sB}, 3"); a(f"s_add_u32 s{sRB}, s{t}, s{u}")
        a(f"s_and_b32 s{t}, s{sB}, 7"); a(f"s_lshl_b32 s{sROT}, s{u}, 1"); a(f"s_add_u32 s{sROT}, s{sROT}, s{t}")
        a(f"s_lshl_b32 s{t}, s{t}, 1"); a(f"s_and_b32 s{u}, s{sA}, 1"); a(f"s_add_u32 s{sCB}, s{t}, s{u}")
    elif m1 == "2x16":
        a(f"s_lshl_b32 s{t}, s{sA}, 1"); a(f"s_lshr_b32 s{u}, s{sB}, 4"); a(f"s_add_u32 s{sRB}, s{t}, s{u}")
        a(f"s_and_b32 s{sCB}, s{sB}, 15"); a(f"s_lshl_b32 s{sROT}, s{u}, 2"); a(f"s_add_u32 s{sROT}, s{sROT}, s{sCB}")
    a(f"s_and_b32 s{sROT}, s{sROT}, {int(cfg.get('rotmask', 7))}")
    if m2 == "4x8":
        a(f"s_lshl_b32 s{t}, s{sA}, 2"); a(f"s_lshr_b32 s{u}, s{sB}, 3"); a(f"s_add_u32 s{sRB2}, s{t}, s{u}"); a(f"s_and_b32 s{sCB2}, s{sB}, 7")
    elif m2 == "8x4":
        a(f"s_lshr_b32 s{t}, s{sA}, 1"); a(f"s_lshl_b32 s{t}, s{t}, 3"); a(f"s_lshr_b32 s{u}, s{sB}, 2"); a(f"s_add_u32 s{sRB2}, s{t}, s{u}")
        a(f"s_and_b32 s{t}, s{sA}, 1"); a(f"s_lshl_b32 s{t}, s{t}, 2"); a(f"s_and_b32 s{u}, s{sB}, 3"); a(f"s_add_u32 s{sCB2}, s{t}, s{u}")
    elif m2 == "16x2":
        a(f"s_lshr_b32 s{t}, s{sA}, 2"); a(f"s_lshl_b32 s{t}, s{t}, 4"); a(f"s_lshr_b32 s{u}, s{sB}, 1"); a(f"s_add_u32 s{sRB2}, s{t}, s{u}")
        a(f"s_and_b32 s{t}, s{sA}, 3"); a(f"s_lshl_b32 s{t}, s{t}, 1"); a(f"s_and_b32 s{u}, s{sB}, 1"); a(f"s_add_u32 s{sCB2}, s{t}, s{u}")
    a(f"s_lshl_b32 s{sTT}, s{sRB2}, 1")

def prologue(a, cfg):
    a("s_load_dwordx16 s[4:19], s[0:1], 0")
    a("s_load_dwordx4 s[20:23], s[0:1], 64")
    a("s_load_dwordx2 s[24:25], s[0:1], 80")
    a("v_lshrrev_b32 v1, 6, v0"); a("v_and_b32 v0, 63, v0"); a(f"v_readfirstlane_b32 s{sW}, v1")
    mapping(a, cfg)
    a(f"s_and_b32 s{sw4}, s{sW}, 3")
    a(f"s_and_b32 s{sTmp}, s{sCB}, 7"); a(f"s_lshl_b32 s{sCol1}, s{sTmp}, 7"); a(f"s_lshl_b32 s{sTA}, s{sTmp}, 1")
    a(f"s_add_u32 s{sTB}, s{sCB}, 8"); a(f"s_lshl_b32 s{sTB}, s{sTB}, 1")
    a(f"s_cmp_lt_u32 s{sCB}, 8")
    a(f"s_cselect_b32 s{sTmp}, 1024, 0"); a(f"s_cselect_b32 s{sTmp2}, 2048, 0"); a(f"s_mov_b32 s{sStr1}, 2752"); a(f"s_cselect_b32 s{sStr1}, 3072, s{sStr1}")
    a(f"s_add_u32 s{sCol0}, s{sCol1}, s{sTmp}"); a(f"s_add_u32 s{sCol1}, s{sCol1}, s{sTmp2}")

def tr_addr(a, dst, j_s, tmp):
    a(f"v_lshrrev_b32 v{tmp}, 5, v0"); a(f"v_lshlrev_b32 v{dst}, 10, v{tmp}")
    a(f"v_bfe_u32 v{tmp}, v0, 2, 2"); a(f"v_lshl_add_u32 v{dst}, v{tmp}, 7, v{dst}")
    a(f"v_bfe_u32 v{tmp}, v0, 3, 1"); a(f"v_lshl_add_u32 v{dst}, v{tmp}, 6, v{dst}")
    a(f"v_bfe_u32 v{tmp}, v0, 4, 1"); a(f"v_lshl_add_u32 v{dst}, v{tmp}, 5, v{dst}")
    a(f"v_and_b32 v{tmp}, 3, v0"); a(f"v_lshl_add_u32 v{dst}, v{tmp}, 3, v{dst}")
def read_addrs(a, vXA, vWA, base, tmp):
    tr_addr(a, tmp + 1, None, tmp)
    a(f"v_and_b32 v{tmp+2}, 31, v0"); a(f"v_lshlrev_b32 v{tmp+2}, 7, v{tmp+2}"); a(f"s_lshl_b32 s{sTmp}, s{sw4}, 12"); a(f"v_add_u32 v{tmp+2}, s{sTmp}, v{tmp+2}")
    a(f"v_lshrrev_b32 v{tmp}, 5, v0"); a(f"v_bfe_u32 v{tmp+3}, v0, 1, 3"); a(f"v_xor_b32 v{tmp+3}, v{tmp+3}, v{tmp}")
    for i in range(4):
        a(f"s_xor_b32 s{sTmp2}, s{sw4}, {i}")
        a(f"s_lshl_b32 s{sTmp}, s{sTmp2}, 1"); a(f"v_xor_b32 v{tmp}, s{sTmp}, v{tmp+3}"); a(f"v_lshl_add_u32 v{vXA+i}, v{tmp}, 4, v{tmp+2}")
        a(f"s_lshl_b32 s{sTmp}, s{sTmp2}, 11"); a(f"s_add_u32 s{sTmp}, s{sTmp}, {base}")
        a(f"v_add_u32 v{vWA+2*i}, s{sTmp}, v{tmp+1}"); a(f"v_xor_b32 v{vWA+2*i+1}, 64, v{vWA+2*i}")
def split_hi_lo(a, v, hi, lo, t):
    a(f"v_cvt_pk_bf16_f32 v{hi}, v{v}, v{v}"); a(f"v_and_b32 v{t}, 0xffff0000, v{hi}"); a(f"v_sub_f32 v{t}, v{v}, v{t}"); a(f"v_cvt_pk_bf16_f32 v{lo}, v{t}, v{t}")
def w_aug(a, dst, cs, bias, t0, t1, t2, vM):
    split_hi_lo(a, cs, t0, t1, t2)
    a(f"v_bfi_b32 v{dst}, v{vM}, v{t0}, v{t1}")
    if bias is None:
        a(f"v_and_b32 v{dst+1}, 0xffff, v{t0}"); a(f"v_mov_b32 v{dst+2}, 0")
    else:
        a(f"v_and_b32 v{t0}, 0xffff, v{t0}"); a(f"v_lshl_or_b32 v{dst+1}, v{bias}, 16, v{t0}"); a(f"v_mov_b32 v{dst+2}, v{bias}")
    a(f"v_mov_b32 v{dst+3}, 0")
def x_aug(a, dst, mean, inv, t0, t1, t2, t3, vM):
    a(f"v_mov_b32 v{vM}, 0xffff")
    a(f"v_sub_f32 v{t3}, 0, v{mean}")
    split_hi_lo(a, t3, dst, t1, t2)
    if inv is None:
        a(f"v_and_b32 v{dst+1}, 0xffff, v{t1}"); a(f"v_mov_b32 v{dst+2}, 0")
    else:
        split_hi_lo(a, inv, t0, t3, t2)
        a(f"v_bfi_b32 v{dst+1}, v{vM}, v{t1}, v{t0}"); a(f"v_and_b32 v{dst+2}, 0xffff, v{t3}")
    a(f"v_mov_b32 v{dst+3}, 0")
    a("v_cmp_gt_u32 vcc, 32, v0")
    for i in range(3): a(f"v_cndmask_b32 v{dst+i}, 0, v{dst+i}, vcc")
def selector(a, dst):
    a("v_bfe_u32 v5, v0, 4, 1"); a("v_and_b32 v7, 15, v0"); a("v_cmp_eq_u32 vcc, v5, v7")
    a("v_mov_b32 v5, 0x3f803f80"); a(f"v_cndmask_b32 v{dst}, 0, v5, vcc")
    for q in range(1, 4): a(f"v_mov_b32 v{dst+q}, v{dst}")
def cs_publish(a, vCS, nt, t0):
    a(f"s_mul_i32 s{sTmp}, s{sw4}, 768"); a(f"s_add_u32 s{sTmp}, s{sTmp}, {L_CS + t0*128}")
    a("v_lshlrev_b32 v7, 2, v0"); a(f"v_add_u32 v7, s{sTmp}, v7")
    a("s_mov_b64 exec, 0xffff")
    for t in range(nt): a.lds(f"ds_write2_b32 v7, v{vCS+4*t}, v{vCS+4*t+1} offset0:{t*32} offset1:{t*32+16}", "cs")
    a("s_mov_b64 exec, -1")
def cs_read(a, dst, nt, t0, vaddr):
    for t in range(nt):
        for w in range(4): a.lds(f"ds_read_b32 v{dst+4*t+w}, v{vaddr} offset:{w*768 + (t0+t)*128}", "st")
def cs_sum(a, dst, nt):
    for t in range(nt):
        a(f"v_add_f32 v{dst+4*t}, v{dst+4*t}, v{dst+4*t+1}"); a(f"v_add_f32 v{dst+4*t+2}, v{dst+4*t+2}, v{dst+4*t+3}")
    for t in range(nt): a(f"v_add_f32 v{dst+4*t}, v{dst+4*t}, v{dst+4*t+2}")
def stat_ops(r, u, vSum):
    return [f"v_lshlrev_b32 v{u}, 16, v{r}", f"v_and_b32 v{u+1}, 0xffff0000, v{r}",
            f"v_add_f32 v{vSum}, v{vSum}, v{u}", f"v_add_f32 v{vSum+1}, v{vSum+1}, v{u+1}",
            f"v_fmac_f32 v{vSum+2}, v{u}, v{u}", f"v_fmac_f32 v{vSum+3}, v{u+1}, v{u+1}"]
def stat_publish(a, vSum, st, vaddr):
    a(f"v_add_f32 v{vSum}, v{vSum}, v{vSum+1}"); a(f"v_add_f32 v{vSum+2}, v{vSum+2}, v{vSum+3}")
    a(f"s_lshl_b32 s{sTmp}, s{sw4}, 8"); a(f"s_add_u32 s{sTmp}, s{sTmp}, {L_PS}")
    a(f"v_lshlrev_b32 v{vaddr}, 2, v0"); a(f"v_add_u32 v{vaddr}, s{sTmp}, v{vaddr}")
    a.lds(f"ds_write_b32 v{vaddr}, v{vSum} offset:{st*2048}", "ps"); a.lds(f"ds_write_b32 v{vaddr}, v{vSum+2} offset:{st*2048+1024}", "ps")
def stat_read(a, vSum, st, vaddr):
    a.lds(f"ds_read_b32 v{vSum+1}, v{vaddr} offset:{(1-st)*2048}", "st"); a.lds(f"ds_read_b32 v{vSum+3}, v{vaddr} offset:{(1-st)*2048+1024}", "st")
def stat_final(a, vSum, T):
    a(f"v_add_f32 v{T}, v{vSum}, v{vSum+1}"); a(f"v_add_f32 v{T+1}, v{vSum+2}, v{vSum+3}")
    a(f"v_mov_b32 v{T+2}, v{T}"); a(f"v_mov_b32 v{T+3}, v{T+1}")
    a(f"v_permlane32_swap_b32 v{T}, v{T+2}"); a(f"v_permlane32_swap_b32 v{T+1}, v{T+3}")
    a(f"v_add_f32 v{T}, v{T}, v{T+2}"); a(f"v_add_f32 v{T+1}, v{T+1}, v{T+3}")
    a(f"v_mul_f32 v{T}, {f32(1/512)}, v{T}")
    a(f"v_mul_f32 v{T+2}, v{T}, v{T}")
    a(f"v_mov_b32 v{T+3}, {f32(1/512)}")
    a(f"v_fma_f32 v{T+1}, v{T+1}, v{T+3}, -v{T+2}")
    a(f"v_max_f32 v{T+1}, 0, v{T+1}")
    a(f"v_add_f32 v{T+1}, {f32(EPS)}, v{T+1}")
    a(f"v_rsq_f32 v{T+1}, v{T+1}")
def mlp_scale(a, vRstd, vS, vInv, vA1, vB1):
    a(f"v_mul_f32 v{vS}, v{vRstd}, v{vRstd}"); a(f"v_mov_b32 v{vInv}, {f32(1.0+EPS)}")
    a(f"v_fmamk_f32 v{vS}, v{vS}, {f32(-EPS)}, v{vInv}"); a(f"v_rsq_f32 v{vS}, v{vS}")
    a(f"v_mul_f32 v{vS}, v{vS}, v{vRstd}"); a(f"v_rcp_f32 v{vInv}, v{vS}")
    a(f"v_mul_f32 v{vA1}, {f32(GELU_A)}, v{vS}")
    a(f"v_mul_f32 v{vB1}, v{vS}, v{vS}"); a(f"v_mul_f32 v{vB1}, v{vB1}, v{vS}"); a(f"v_mul_f32 v{vB1}, {f32(GELU_B)}, v{vB1}")
def gelu_pk(a, z, pk, G, vA1, vB1, vI):
    for q0 in range(0, 8, 2):
        t = [G + 2 * k for k in range(2)]
        for k in range(2): a(f"v_pk_mul_f32 {vr(t[k],2)}, {vr(z+2*(q0+k),2)}, {vr(z+2*(q0+k),2)}")
        for k in range(2): a(f"v_pk_fma_f32 {vr(t[k],2)}, {vr(t[k],2)}, {vr(vB1,2)}, {vr(vA1,2)} op_sel_hi:[1,0,0]")
        for k in range(2): a(f"v_pk_mul_f32 {vr(t[k],2)}, {vr(t[k],2)}, {vr(z+2*(q0+k),2)}")
        for k in range(2): a(f"v_exp_f32 v{t[k]}, v{t[k]}"); a(f"v_exp_f32 v{t[k]+1}, v{t[k]+1}")
        for k in range(2): a(f"v_pk_fma_f32 {vr(t[k],2)}, {vr(t[k],2)}, {vr(vI,2)}, {vr(vI,2)} op_sel_hi:[1,0,0]")
        for k in range(2): a(f"v_rcp_f32 v{t[k]}, v{t[k]}"); a(f"v_rcp_f32 v{t[k]+1}, v{t[k]+1}")
        for k in range(2): a(f"v_pk_mul_f32 {vr(t[k],2)}, {vr(t[k],2)}, {vr(z+2*(q0+k),2)}")
        for k in range(2): a(f"v_cvt_pk_bf16_f32 v{pk+q0+k}, v{t[k]}, v{t[k]+1}")
def gelu_sc(a, z, pk, G, vA1, vB1, vI):
    g = 4
    for q0 in range(0, 16, g):
        t = [G + k for k in range(g)]
        for k in range(g): a(f"v_mul_f32 v{t[k]}, v{z+q0+k}, v{z+q0+k}")
        for k in range(g): a(f"v_fma_f32 v{t[k]}, v{t[k]}, v{vB1}, v{vA1}")
        for k in range(g): a(f"v_mul_f32 v{t[k]}, v{t[k]}, v{z+q0+k}")
        for k in range(g): a(f"v_exp_f32 v{t[k]}, v{t[k]}")
        for k in range(g): a(f"v_fma_f32 v{t[k]}, v{t[k]}, v{vI}, v{vI}")
        for k in range(g): a(f"v_rcp_f32 v{t[k]}, v{t[k]}")
        for k in range(g): a(f"v_mul_f32 v{t[k]}, v{t[k]}, v{z+q0+k}")
        for k in range(0, g, 2): a(f"v_cvt_pk_bf16_f32 v{pk+(q0+k)//2}, v{t[k]}, v{t[k+1]}")
def h_store(a, pk, sT, dt, vL16, sTok):
    a(f"s_add_u32 s{sTmp}, s{sT}, {dt}"); a(f"s_cmp_lt_u32 s{sTmp}, 43")
    a(f"s_mov_b32 s{R5}, s{sWS}"); a(f"s_mov_b32 s{R5+1}, s{sWS+1}"); a(f"s_cselect_b32 s{R5+2}, s{sWS+2}, 0"); a(f"s_mov_b32 s{R5+3}, 0x20000")
    a(f"s_mul_i32 s{sO}, s{sTok}, 86"); a(f"s_lshl_b32 s{sTmp}, s{sTmp}, 1"); a(f"s_add_u32 s{sO}, s{sO}, s{sTmp}"); a(f"s_lshl_b32 s{sO}, s{sO}, 10"); a(f"s_add_u32 s{sO}, s{sO}, {WS_H}")
    for s in range(2):
        a.vmem(f"buffer_store_dwordx4 {vr(pk+4*s,4)}, v{vL16}, s[{R5}:{R5+3}], s{sO} offen offset:{s*1024} sc1", "out")
def bias_load(a, dst, sT, vtmp):
    srd(a, R4, pB1, 2752)
    a(f"v_and_b32 v{vtmp}, 31, v0"); a(f"v_lshlrev_b32 v{vtmp}, 1, v{vtmp}"); a(f"s_lshl_b32 s{sTmp}, s{sT}, 6"); a(f"v_add_u32 v{vtmp}, s{sTmp}, v{vtmp}")
    for t in range(2): a.vmem(f"buffer_load_ushort v{dst+t}, v{vtmp}, s[{R4}:{R4+3}], 0 offen offset:{t*64}", "bias")

def p1_A(a, typ, cfg):
    ACC, XF, NX, WF, NB = 16, 80, 3, 200, 3
    vXA, vWA, vCS, vSel, vBias, T = 120, 124, 160, 132, 136, 140
    vSum, vUn, XA, WA, PK, G, RR, vM, vNo = 112, 116, 100, 176, 200, 192, 232, 104, 108
    stamp(a, cfg, 1)
    a("s_waitcnt lgkmcnt(0)")
    srd(a, sWS, pWS, 0x10000000)
    lead = a.label("nolead")
    a(f"s_or_b32 s{sTmp}, s2, s{sW}"); a(f"s_cmp_lg_u32 s{sTmp}, 0"); a(f"s_cbranch_scc1 {lead}")
    a(f"s_add_u32 s{sA}, s{pWS}, {WS_EPOCH}"); a(f"s_addc_u32 s{sB}, s{pWS+1}, 0")
    a(f"s_load_dword s{sN}, s[{sA}:{sB}], 0"); srd(a, R6, pDBG, 256); a("s_waitcnt lgkmcnt(0)")
    a(f"s_mul_i32 s{sN}, s{sN}, 0x9e3779b1"); a(f"s_add_u32 s{sN}, s{sN}, 0x7f4a7c15")
    a(f"v_mov_b32 v2, s{sN}"); a("v_mov_b32 v3, 1"); a("v_mov_b32 v4, 0"); a(f"s_mov_b32 s{sTmp}, {WS_EPOCH}"); a("s_mov_b64 exec, 1")
    a(f"buffer_store_dwordx2 v[2:3], v4, s[{R6}:{R6+3}], 0 offen sc1")
    a(f"buffer_store_dword v2, v4, s[{sWS}:{sWS+3}], s{sTmp} offen sc1")
    a("s_mov_b64 exec, -1"); a("s_waitcnt vmcnt(0)")
    a(f"{lead}:")
    if typ == "Y": bias_load(a, vBias, sTA, 6)
    read_addrs(a, vXA, vWA, L_W, T)
    selector(a, vSel)
    for q in range(4): a(f"v_mov_b32 v{vSum+q}, 0")
    def reads(n):
        c, i = n >> 2, n & 3; b = n % NB; so = (c & 3) * 16384
        r = [f"ds_read_b128 {vr(XF+4*(n%NX),4)}, v{vXA+i} offset:{so}"]
        for t in range(4):
            for sec in range(2):
                r.append(f"ds_read_b64_tr_b16 {vr(WF+16*b+4*t+2*sec,2)}, v{vWA+2*i+(t&1)} offset:{so + (t>>1)*8192 + sec*512}")
        return r
    swap = lambda t: typ == "X" and t >= 2
    a("s_barrier")
    stamp(a, cfg, 2)
    for n in range(2):
        for r in reads(n): a.lds(r, ("f", n))
    for n in range(32):
        c, i = n >> 2, n & 3; b = n % NB
        if i == 2 and c < 7:
            a("s_barrier")
            if c in (0, 3): stamp(a, cfg, 3 + c // 3)
        if n == 30: cs_publish(a, vCS, 4, 0)
        a.wait(lg=("f", n))
        nxt = reads(n + 2) if n < 30 else []
        k = 0
        for t in range(4):
            wf = vr(WF + 16*b + 4*t, 4); xf = vr(XF + 4*(n % NX), 4); acc = vr(ACC + 16*t, 16)
            cin = "0" if n == 0 else acc
            a(f"v_mfma_f32_32x32x16_bf16 {acc}, {xf if swap(t) else wf}, {wf if swap(t) else xf}, {cin}")
            take = 3 if t == 0 else 2
            for r in nxt[k:k+take]: a.lds(r, ("f", n + 2))
            k += take
            if i == 0: a(f"v_mfma_f32_16x16x32_bf16 {vr(vCS+4*t,4)}, {vr(vSel,4)}, {wf}, {'0' if n == 0 else vr(vCS+4*t,4)}")
        if n == 30:
            a.wait(lg=("f", 31))
            for t in range(4):
                for o in stat_ops(XF + 4*(31 % NX) + t, vUn + 2*(t & 1), vSum): a(o)
            stat_publish(a, vSum, 0, 6)
            a.wait(lg="all"); a("s_barrier")
            stamp(a, cfg, 5)
            nonce_issue(a, vNo)
            stat_read(a, vSum, 0, 6)
            a("v_and_b32 v5, 31, v0"); a("v_lshlrev_b32 v5, 2, v5"); a(f"v_add_u32 v7, {L_CS}, v5")
            cs_read(a, vCS, 4, 0, 7)
    vMean, vRstd, vS, vInv, vA1, vB1 = T, T + 1, T + 2, T + 12, T + 8, T + 10
    a.wait(lg="all")
    stat_final(a, vSum, T)
    if typ == "X":
        a(f"s_lshl_b32 s{sTmp}, s{sw4}, 7"); a(f"s_add_u32 s{sTmp}, s{sTmp}, {L_RSTD}"); a(f"v_add_u32 v6, s{sTmp}, v5")
        a.lds(f"ds_write_b32 v6, v{vRstd}", "rr")
        a("v_lshrrev_b32 v7, 5, v0"); a("v_lshlrev_b32 v7, 4, v7"); a(f"v_add_u32 v7, s{sTmp}, v7")
        for j in range(4): a.lds(f"ds_read_b128 {vr(RR+4*j,4)}, v7 offset:{j*32}", "rr")
    cs_sum(a, vCS, 4)
    if typ == "Y":
        mlp_scale(a, vRstd, vS, vInv, vA1, vB1)
        a.wait(vm="bias")
    x_aug(a, XA, vMean, vInv if typ == "Y" else None, T + 4, T + 5, T + 6, T + 7, vM)
    for t in range(4):
        w_aug(a, WA + 4*t, vCS + 4*t, (vBias + t - 2) if (typ == "Y" and t >= 2) else None, T + 4, T + 5, T + 6, vM)
        acc = vr(ACC + 16*t, 16)
        a(f"v_mfma_f32_32x32x16_bf16 {acc}, {vr(XA,4) if swap(t) else vr(WA+4*t,4)}, {vr(WA+4*t,4) if swap(t) else vr(XA,4)}, {acc}")
    stamp(a, cfg, 6)
    a("v_lshlrev_b32 v2, 4, v0")
    a(f"s_lshl_b32 s{sKC}, s{sRB}, 2"); a(f"s_add_u32 s{sKC}, s{sKC}, s{sw4}")
    vSc = T + 4
    if typ == "Y": a(f"v_mul_f32 v{vSc}, {f32(QSCALE)}, v{vRstd}")
    else: vSc = vRstd
    a(f"s_and_b32 s{sTmp}, s{sCB}, 7"); a(f"s_lshl_b32 s{sTmp}, s{sTmp}, 8"); a(f"s_add_u32 s{sTmp}, s{sTmp}, s{sKC}"); a(f"s_lshl_b32 s{sTmp2}, s{sTmp}, 10")
    for t in range(2):
        z = ACC + 16*t; pk = PK + 8*t
        for q in range(16): a(f"v_mul_f32 v{z+q}, v{z+q}, v{vSc}")
        for q in range(8): a(f"v_cvt_pk_bf16_f32 v{pk+q}, v{z+2*q}, v{z+2*q+1}")
        for hh in range(2):
            a(f"s_add_u32 s{sO}, s{sTmp2}, {WS_QK + (32*65536 if typ == 'X' else 0) + (2*t+hh)*65536}")
            a.vmem(f"buffer_store_dwordx4 {vr(pk+4*hh,4)}, v2, s[{sWS}:{sWS+3}], s{sO} offen sc1", "out")
    if typ == "X":
        a("v_bfe_u32 v6, v0, 4, 1"); a("v_lshlrev_b32 v6, 16, v6"); a("v_lshrrev_b32 v7, 5, v0"); a("v_lshl_add_u32 v6, v7, 8, v6")
        a("v_and_b32 v7, 15, v0"); a("v_lshl_add_u32 v6, v7, 4, v6")
        a.wait(lg="all")
        for t in range(2, 4):
            z = ACC + 16*t; pk = PK + 8*t
            for q in range(16): a(f"v_mul_f32 v{z+q}, v{z+q}, v{RR+q}")
            for q in range(8): a(f"v_cvt_pk_bf16_f32 v{pk+q}, v{z+2*q}, v{z+2*q+1}")
            a(f"s_add_u32 s{sO}, s{sTmp2}, {WS_V + 2*(t-2)*65536}")
            for s in range(2):
                a.vmem(f"buffer_store_dwordx4 {vr(pk+4*s,4)}, v6, s[{sWS}:{sWS+3}], s{sO} offen offset:{s*512} sc1", "out")
        stamp(a, cfg, 7)
        nonce_get(a, vNo)
        f1_addr(a, 0); publish(a, f"s{sO}", 6)
        stamp(a, cfg, 8)
    else:
        stamp(a, cfg, 7)
        nonce_get(a, vNo)
        gelu_sc(a, ACC + 32, PK + 16, G, vA1, vB1, vInv)
        a.wait(vm="all")
        f1_addr(a, 0); publish(a, f"s{sO}", 6)
        h_store(a, PK + 16, sTA, 0, 2, sKC)
        gelu_sc(a, ACC + 48, PK + 24, G, vA1, vB1, vInv)
        h_store(a, PK + 24, sTA, 1, 2, sKC)
        stamp(a, cfg, 8)
        f1_addr(a, 2); publish(a, f"s{sO}", 6)
    stamp(a, cfg, 9)

def p1_B(a, cfg):
    XR, ACC, WF, NB = 128, 16, 48, 4
    vU, vWB, vXs = (2, 14), 16, 8
    vXA, vSum, vUn, T, XA, vCS, vWA, vWX, vSel = 80, 84, 88, 92, 96, 100, 108, 116, 124
    sX, sU0, sU1, sUB = R0, R2, R3, R4
    a("v_lshrrev_b32 v5, 3, v0"); a("v_lshrrev_b32 v6, 4, v0")
    a("v_and_b32 v10, 7, v0"); a("v_xor_b32 v7, v10, v6"); a("v_lshlrev_b32 v7, 4, v7")
    a(f"s_lshl_b32 s{sTmp}, s{sRB}, 7"); a(f"s_lshl_b32 s{sTmp2}, s{sw4}, 5"); a(f"s_add_u32 s{sTmp}, s{sTmp}, s{sTmp2}")
    a(f"v_add_u32 v4, s{sTmp}, v5"); a(f"v_lshl_add_u32 v{vXs}, v4, 10, v7")
    a("v_and_b32 v6, 1, v6"); a("v_lshlrev_b32 v6, 2, v6"); a("v_xor_b32 v7, v10, v6"); a("v_lshlrev_b32 v7, 4, v7")
    a(f"v_xor_b32 v{vXs+1}, 64, v{vXs}"); a(f"v_add_u32 v{vXs+2}, {2*7168}, v{vXs}"); a(f"v_add_u32 v{vXs+3}, {3*7168}, v{vXs+1}"); a(f"v_add_u32 v{vXs+1}, 7168, v{vXs+1}")
    a(f"s_lshl_b32 s{sLdsX}, s{sw4}, 12"); a(f"s_lshl_b32 s{sLdsW}, s{sw4}, 11"); a(f"s_add_u32 s{sLdsW}, s{sLdsW}, {L_W}")
    a(f"s_lshl_b32 s{sTmp}, s{sw4}, 4"); a(f"v_add_u32 v4, s{sTmp}, v5")
    a(f"v_mul_u32_u24 v6, 3072, v4"); a(f"v_add3_u32 v{vU[0]}, v6, v7, s{sCol0}"); a(f"v_add_u32 v{vU[0]+1}, {8*3072-1024}, v{vU[0]}")
    a(f"v_mul_lo_u32 v6, v4, s{sStr1}"); a(f"v_add3_u32 v{vU[1]}, v6, v7, s{sCol1}")
    a(f"s_lshl_b32 s{sTmp}, s{sStr1}, 3"); a(f"s_sub_u32 s{sTmp}, s{sTmp}, 1024"); a(f"v_add_u32 v{vU[1]+1}, s{sTmp}, v{vU[1]}")
    a(f"s_lshl_b32 s{sStr1}, s{sStr1}, 6")
    a("s_waitcnt lgkmcnt(0)")
    srd(a, sX, pX, 0x200000); srd(a, sU0, pQKV, 1572864)
    a(f"s_cmp_lt_u32 s{sCB}, 8"); a(f"s_cselect_b32 s{sU1}, s{pQKV}, s{pW1}"); a(f"s_cselect_b32 s{sU1+1}, s{pQKV+1}, s{pW1+1}")
    a(f"s_mov_b32 s{sU1+2}, 1409024"); a(f"s_cselect_b32 s{sU1+2}, 1572864, s{sU1+2}"); a(f"s_mov_b32 s{sU1+3}, 0x20000")
    def dma_i(vaddr, srdreg, off, tag, aux):
        a.vmem(f"buffer_load_dwordx4 v{vaddr}, s[{srdreg}:{srdreg+3}], s{sO} offen offset:{off} {aux} lds".replace("  ", " "), tag)
    def dma_ops(c):
        ops = []
        if c < 8:
            def x(g):
                if g == 0:
                    a(f"s_add_u32 s{sKC}, s{sROT}, {c}"); a(f"s_and_b32 s{sKC}, s{sKC}, 7")
                    a(f"s_add_u32 m0, s{sLdsX}, {L_X + (c & 3)*16384}"); a(f"s_lshl_b32 s{sO}, s{sKC}, 7")
                dma_i(vXs + g, sX, g * 1024, ("st", c), cfg["aux_x"])
            def w(u, kb):
                if kb == 0:
                    a(f"s_add_u32 m0, s{sLdsW}, {(c & 3)*16384 + u*8192}"); a(f"s_mul_i32 s{sO}, s{sKC}, {64*3072 if u == 0 else 's%d' % sStr1}")
                dma_i(vU[u] + kb, (sU0, sU1)[u], kb * 1024, ("st", c), cfg["aux_w"])
            for g in range(4): ops.append(lambda g=g: x(g))
            for g in range(4): ops.append(lambda g=g: w(g >> 1, g & 1))
        else:
            st = c - 8
            def wb(g):
                if g == 0:
                    a(f"s_add_u32 s{sKC}, s{sw4}, {4*st}"); a(f"s_add_u32 s{sKC}, s{sKC}, s{sROT}"); a(f"s_and_b32 s{sKC}, s{sKC}, 7")
                    a(f"s_add_u32 m0, s{sLdsB}, {st*16384}"); a(f"s_mul_i32 s{sO}, s{sKC}, {64*2752}")
                if g == 4:
                    a(f"s_add_u32 m0, s{sLdsB}, {st*16384 + 4096}"); a(f"s_add_u32 s{sO}, s{sO}, {32*2752}")
                dma_i(vWB + (g & 3), sUB, (g & 3) * 1024, ("st", c), cfg["aux_w"])
            for g in range(8): ops.append(lambda g=g: wb(g))
        return ops
    stamp(a, cfg, 1)
    if cfg.get("prio", True): a("s_setprio 1")
    for o in dma_ops(0): o()
    srd(a, sWS, pWS, 0x10000000)
    srd(a, sUB, pW1, 1409024)
    a(f"s_cmp_lt_u32 s{sTB}, 43"); a(f"s_cselect_b32 s{sUB+2}, s{sUB+2}, 0")
    a(f"s_lshl_b32 s{sTmp}, s{sTB}, 6"); a(f"v_mul_u32_u24 v6, 2752, v5"); a(f"v_add3_u32 v{vWB}, v6, v7, s{sTmp}")
    for g in range(1, 4): a(f"v_add_u32 v{vWB+g}, {g*(8*2752-1024)}, v{vWB}")
    a(f"s_lshr_b32 s{sLdsB}, s{sw4}, 1"); a(f"s_lshl_b32 s{sLdsB}, s{sLdsB}, 16"); a(f"s_and_b32 s{sTmp}, s{sw4}, 1"); a(f"s_lshl_b32 s{sTmp}, s{sTmp}, 13"); a(f"s_add_u32 s{sLdsB}, s{sLdsB}, s{sTmp}")
    a("v_mov_b32 v6, 0"); a("v_lshlrev_b32 v7, 2, v0"); a("v_and_b32 v7, 31, v7"); a(f"v_add_u32 v7, {L_CNT}, v7"); a.lds("ds_write_b32 v7, v6", "z")
    read_addrs(a, vXA, vWX, 0, T)
    for i in range(8): a(f"v_add_u32 v{vWA+i}, {L_W}, v{vWX+i}")
    for q in range(4): a(f"v_mov_b32 v{vSum+q}, 0")
    selector(a, vSel)
    a(f"v_mov_b32 v12, {L_CNT}"); a("v_mov_b32 v13, 1")
    for o in dma_ops(1): o()
    a.wait(vm=("st", 0), lg="all"); a("s_barrier")
    stamp(a, cfg, 2)
    for c in range(8):
        for i in range(4):
            a.lds(f"ds_read_b128 {vr(XR+16*c+4*i,4)}, v{vXA+i} offset:{(c&3)*16384}", ("x", c, i))
        ops = dma_ops(c + 2)
        fr = [n for n in range(4*c - 1, 4*c + 3) if n >= 0]
        ops[0]()
        k = 1; tot = 4 * len(fr)
        for ii, n in enumerate(fr):
            for q in range(4):
                while k < 8 and (k - 1) * tot <= (4*ii + q) * 7: ops[k](); k += 1
                if q == 0: a.wait(lg=("x", n >> 2, n & 3))
                for o in stat_ops(XR + 4*n + q, vUn + 2*(q & 1), vSum): a(o)
        while k < 8: ops[k](); k += 1
        a.wait(lg=("x", c, 3))
        if c == 7:
            stat_publish(a, vSum, 1, 6)
            a("v_and_b32 v5, 31, v0"); a("v_lshlrev_b32 v5, 2, v5")
            a.wait(vm=("st", 8), lg="all"); a("s_barrier")
            stamp(a, cfg, 5)
        else:
            a.wait(vm=("st", c + 1)); a("s_barrier")
            if c in (0, 3): stamp(a, cfg, 3 + c // 3)
    def reads(n):
        c, i = n >> 2, n & 3; b = n % NB
        st, q = c >> 2, c & 3
        base = (vWX if q < 2 else vWA); so = st * 16384 + (q & 1) * 8192
        return [f"ds_read_b64_tr_b16 {vr(WF+8*b+4*t+2*sec,2)}, v{base+2*i+t} offset:{so + sec*512}" for t in range(2) for sec in range(2)]
    for n in range(3):
        for r in reads(n): a.lds(r, ("f", n))
    stat_read(a, vSum, 1, 6)
    vBias, vNo, vM = 2, 8, 11
    bias_load(a, vBias, sTB, 4)
    nonce_issue(a, vNo)
    if cfg.get("prio", True): a("s_setprio 0")
    vMean, vRstd, vS, vInv, vA1, vB1 = T, T + 1, T + 2, 14, 88, 90
    fill = Asm(); stat_final(fill, vSum, T); mlp_scale(fill, vRstd, vS, vInv, vA1, vB1); x_aug(fill, XA, vMean, vInv, 80, 81, 82, 83, vM)
    fill = list(fill.lines)
    for n in range(32):
        c, i = n >> 2, n & 3; b = n % NB
        if n == int(cfg.get("prio_n", 12)) and cfg.get("prio", True): a("s_setprio 1")
        if n == 8:
            a.wait(vm=("st", 9)); lds_count(a, 12, 13, C_ST9)
        if n == 13: lds_spin(a, 12, 7, C_ST9, 4)
        a.wait(lg=("f", n))
        nxt = reads(n + 3) if n < 29 else []
        for t in range(2):
            acc = vr(ACC + 16*t, 16)
            a(f"v_mfma_f32_32x32x16_bf16 {acc}, {vr(WF+8*b+4*t,4)}, {vr(XR+4*n,4)}, {'0' if n == 0 else acc}")
            for r in nxt[2*t:2*t+2]: a.lds(r, ("f", n + 3))
            if i == 0: a(f"v_mfma_f32_16x16x32_bf16 {vr(vCS+4*t,4)}, {vr(vSel,4)}, {vr(WF+8*b+4*t,4)}, {'0' if n == 0 else vr(vCS+4*t,4)}")
            if n >= 14:
                for l in fill[:2]: a(l)
                fill = fill[2:]
        if n == 29:
            cs_publish(a, vCS, 2, 4); lds_count(a, 12, 13, C_CS)
            a(f"v_add_u32 v5, {L_CS}, v5")
        if n == 31: lds_count(a, 12, 13, C_RING)
    assert not fill
    stamp(a, cfg, 6)
    lds_spin(a, 12, 7, C_CS, 4)
    cs_read(a, vCS, 2, 4, 5)
    a.wait(lg="all", vm="bias")
    cs_sum(a, vCS, 2)
    WA = 108
    for t in range(2):
        w_aug(a, WA + 4*t, vCS + 4*t, vBias + t, 80, 81, 82, vM)
        acc = vr(ACC + 16*t, 16)
        a(f"v_mfma_f32_32x32x16_bf16 {acc}, {vr(WA+4*t,4)}, {vr(XA,4)}, {acc}")
    nonce_get(a, vNo)
    a("v_lshlrev_b32 v2, 4, v0")
    a(f"s_lshl_b32 s{sKC}, s{sRB}, 2"); a(f"s_add_u32 s{sKC}, s{sKC}, s{sw4}")
    PK = 64
    stamp(a, cfg, 7)
    for t in range(2):
        (gelu_pk if cfg.get("geluB", "pk") == "pk" else gelu_sc)(a, ACC + 16*t, PK + 8*t, 80, vA1, vB1, vInv)
        h_store(a, PK + 8*t, sTB, t, 2, sKC)
    stamp(a, cfg, 8)
    f1_addr(a, 1); publish(a, f"s{sO}", 6)
    stamp(a, cfg, 9)

KF, VF, QF, CD, CF, SB, PB, OA = 16, 56, 136, 144, 160, 176, 208, 224
def attn_tiles(): return [(b, j) for b in range(2) for j in range(b, b + 9)]
def attn_epilogue(a, b):
    o = OA + 16 * b
    a(f"v_rcp_f32 v8, v{o+8}")
    for q in range(8): a(f"v_mul_f32 v{o+q}, v{o+q}, v8")
    for q in range(4): a(f"v_cvt_pk_bf16_f32 v{o+8+q}, v{o+2*q}, v{o+2*q+1}")
    a(f"s_add_u32 s{sO}, s{sTT}, {b}"); a(f"s_lshl_b32 s{sO}, s{sO}, 5"); a(f"s_add_u32 s{sO}, s{sO}, s{sHD}"); a(f"s_lshl_b32 s{sO}, s{sO}, 10"); a(f"s_add_u32 s{sO}, s{sO}, {WS_O}")
    a.vmem(f"buffer_store_dwordx4 {vr(o+8,4)}, v2, s[{sWS}:{sWS+3}], s{sO} offen sc1", "ost")
def s_mfma(a, n, tiles):
    b, j = tiles[n]
    c = vr(CF, 16) if j == b else (vr(CD, 16) if j == b + 8 else "0")
    a(f"v_mfma_f32_32x32x16_bf16 {vr(SB+16*(n&1),16)}, {vr(KF+4*j,4)}, {vr(QF+4*b,4)}, {c}")
def pv_mfma(a, n, s, tiles):
    b, j = tiles[n]; o = vr(OA + 16 * b, 16)
    a(f"v_mfma_f32_32x32x16_bf16 {o}, {vr(VF+8*j+4*s,4)}, {vr(PB+8*(n&1)+4*s,4)}, {'0' if (j == b and s == 0) else o}")
def attn_fast(a, cfg):
    tiles = attn_tiles()
    s_mfma(a, 0, tiles)
    for n in range(18):
        b, j = tiles[n]
        S = SB + 16 * (n & 1); P = PB + 8 * (n & 1)
        ex = lambda q: a(f"v_exp_f32 v{S+q}, v{S+q}")
        cv = lambda q: a(f"v_cvt_pk_bf16_f32 v{P+q}, v{S+2*q}, v{S+2*q+1}")
        if n == 0: s_mfma(a, 1, tiles)
        ex(0); ex(1)
        if n > 0: pv_mfma(a, n - 1, 1, tiles)
        for q in range(2, 8): ex(q)
        cv(0)
        if 0 < n < 17: s_mfma(a, n + 1, tiles)
        cv(1); cv(2); cv(3)
        for q in range(8, 12): ex(q)
        a.wait(vm=("v", j))
        pv_mfma(a, n, 0, tiles)
        for q in range(12, 16): ex(q)
        for q in range(4, 8): cv(q)
        if n == 9: attn_epilogue(a, 0)
    pv_mfma(a, 17, 1, tiles)
    attn_epilogue(a, 1)
def attn_slow(a, cfg):
    tiles = attn_tiles()
    a.wait(vm=[("v", j) for j in range(10)])
    for b in range(2):
        a("v_mov_b32 v10, 0xff800000")
        for n, (bb, j) in enumerate(tiles):
            if bb != b: continue
            skip = a.label("skip")
            a(f"s_add_i32 s{sTmp}, s{sTT}, {j-8}"); a(f"s_cmp_lt_i32 s{sTmp}, 0"); a(f"s_cbranch_scc1 {skip}")
            s_mfma(a, n, tiles)
            S = SB + 16 * (n & 1)
            for q in range(8): a(f"v_max3_f32 v10, v10, v{S+2*q}, v{S+2*q+1}")
            a(f"{skip}:")
            a("s_nop 7"); a("s_nop 7")
        a("v_mov_b32 v11, v10"); a("v_permlane32_swap_b32 v10, v11"); a("v_max_f32 v10, v10, v11")
        for n, (bb, j) in enumerate(tiles):
            if bb != b: continue
            s_mfma(a, n, tiles)
            S = SB + 16 * (n & 1); P = PB + 8 * (n & 1)
            for q in range(16):
                a(f"v_sub_f32 v{S+q}, v{S+q}, v10"); a(f"v_min_f32 v{S+q}, 0, v{S+q}"); a(f"v_exp_f32 v{S+q}, v{S+q}")
            for q in range(8): a(f"v_cvt_pk_bf16_f32 v{P+q}, v{S+2*q}, v{S+2*q+1}")
            pv_mfma(a, n, 0, tiles); pv_mfma(a, n, 1, tiles)
        attn_epilogue(a, b)
def wave_max32(a, v):
    for m in ("quad_perm:[1,0,3,2] row_mask:0xf bank_mask:0xf", "quad_perm:[2,3,0,1] row_mask:0xf bank_mask:0xf",
              "row_half_mirror row_mask:0xf bank_mask:0xf", "row_mirror row_mask:0xf bank_mask:0xf", "row_bcast:15 row_mask:0xa bank_mask:0xf"):
        a(f"v_max_f32_dpp v{v}, v{v}, v{v} {m}")
def w_src_addr(a, dst):
    a("v_lshrrev_b32 v5, 3, v0")
    a("v_bfe_u32 v6, v0, 4, 1"); a("v_lshlrev_b32 v6, 2, v6"); a("v_and_b32 v7, 7, v0"); a("v_xor_b32 v7, v7, v6"); a("v_lshlrev_b32 v7, 4, v7")
    a(f"v_lshl_add_u32 v{dst}, v5, 10, v7")
    a(f"s_lshl_b32 s{sTmp}, s{sCB2}, 7"); a(f"v_add_u32 v{dst}, s{sTmp}, v{dst}")
def tr_addr2(a, dst, base_s):
    a(f"v_lshrrev_b32 v5, 5, v0"); a(f"v_lshlrev_b32 v{dst}, 9, v5")
    a(f"v_bfe_u32 v5, v0, 2, 2"); a(f"v_lshl_add_u32 v{dst}, v5, 7, v{dst}")
    a(f"v_bfe_u32 v5, v0, 3, 1"); a(f"v_lshl_add_u32 v{dst}, v5, 6, v{dst}")
    a(f"v_bfe_u32 v5, v0, 4, 1"); a(f"v_lshl_add_u32 v{dst}, v5, 5, v{dst}")
    a(f"v_and_b32 v5, 3, v0"); a(f"v_lshl_add_u32 v{dst}, v5, 3, v{dst}")
    a(f"v_add_u32 v{dst}, {base_s}, v{dst}"); a(f"v_xor_b32 v{dst+1}, 64, v{dst}")

def p2_A(a, cfg):
    ax = "sc1"
    sQ, sK, sV, sWO = R0, R2, R3, R4
    a.vm = []; a.lg = []
    stamp(a, cfg, 0)
    a(f"s_lshl_b32 s{sHD}, s{sCB2}, 2"); a(f"s_add_u32 s{sHD}, s{sHD}, s{sw4}")
    a(f"s_lshl_b32 s{sTmp}, s{sHD}, 16")
    a(f"s_add_u32 s{sTmp2}, s{sTmp}, {WS_QK}"); sub_srd(a, sQ, f"s{sTmp2}", 65536)
    a(f"s_add_u32 s{sTmp2}, s{sTmp}, {WS_QK + 32*65536}"); sub_srd(a, sK, f"s{sTmp2}", 65536)
    a(f"s_add_u32 s{sTmp2}, s{sTmp}, {WS_V}"); sub_srd(a, sV, f"s{sTmp2}", 65536)
    srd(a, sWO, pWO, 524288)
    a("v_lshlrev_b32 v2, 4, v0"); a(f"s_lshl_b32 s{sM}, s{sTT}, 10")
    a("v_min_u32 v4, 11, v0"); a("v_cmp_gt_u32 vcc, 10, v4")
    a("v_add_u32 v5, -8, v4"); a("v_add_u32 v6, -10, v4"); a("v_cndmask_b32 v5, v6, v5, vcc")
    a(f"v_add_u32 v5, s{sTT}, v5"); a("v_max_i32 v5, 0, v5")
    a("v_cndmask_b32_e64 v6, 8, 0, vcc"); a(f"v_add_u32 v6, s{sCB2}, v6")
    a("v_lshrrev_b32 v7, 2, v5"); a("v_lshl_add_u32 v6, v7, 4, v6"); a("v_mul_u32_u24 v6, 384, v6")
    a("v_and_b32 v5, 3, v5"); a("v_lshl_add_u32 v6, v5, 2, v6"); a(f"v_add_u32 v12, {WS_F1}, v6")
    a("v_and_b32 v3, 27, v0"); a("v_cmp_eq_u32 vcc, 16, v3")
    a("v_mov_b32 v4, 0x3f803f80"); a("v_cndmask_b32 v4, 0, v4, vcc")
    a("v_lshrrev_b32 v3, 5, v0"); a("v_lshlrev_b32 v3, 8, v3"); a("v_and_b32 v5, 15, v0"); a("v_lshl_add_u32 v3, v5, 4, v3")
    for j in range(10):
        a(f"s_add_i32 s{sTmp}, s{sTT}, {j-8}"); a(f"s_cmp_ge_i32 s{sTmp}, 0"); a(f"s_cselect_b32 s{sTmp}, -1, 0")
        for q in range(8): a(f"v_and_b32 v{VF+8*j+q}, s{sTmp}, v4")
    a("v_and_b32 v5, 31, v0"); a("v_lshrrev_b32 v6, 5, v0"); a("v_lshlrev_b32 v6, 2, v6"); a("v_sub_u32 v5, v5, v6")
    a(f"v_mov_b32 v6, {f32(NEG)}")
    for r in range(16):
        a(f"v_cmp_le_i32 vcc, {8*(r>>2) + (r&3)}, v5")
        a(f"v_cndmask_b32_e64 v{CD+r}, v6, 0, vcc"); a(f"v_cndmask_b32_e64 v{CF+r}, 0, v6, vcc")
    w_src_addr(a, 8)
    for g in range(1, 4): a(f"v_add_u32 v{8+g}, {g*7168}, v8")
    stamp(a, cfg, 1)
    flag_poll(a, 12, 13, 12)
    stamp(a, cfg, 2)
    for b in range(2):
        a.vmem(f"buffer_load_dwordx4 {vr(QF+4*b,4)}, v2, s[{sQ}:{sQ+3}], s{sM} offen offset:{b*1024} {ax}", "q")
    for j in range(10):
        a(f"s_add_u32 s{sO}, s{sM}, {(j-8)*1024 & 0xffffffff}")
        a.vmem(f"buffer_load_dwordx4 {vr(KF+4*j,4)}, v2, s[{sK}:{sK+3}], s{sO} offen {ax}", "k")
    a("s_mov_b32 exec_lo, 0xffff"); a("s_mov_b32 exec_hi, 0xffff")
    for j in range(10):
        a(f"s_add_u32 s{sO}, s{sM}, {(j-8)*1024 & 0xffffffff}")
        for s in range(2):
            a.vmem(f"buffer_load_dwordx4 {vr(VF+8*j+4*s,4)}, v3, s[{sV}:{sV+3}], s{sO} offen offset:{s*512} {ax}", ("v", j))
    a("s_mov_b64 exec, -1")
    a(f"s_lshr_b32 s{sTmp}, s{sw4}, 1"); a(f"s_lshl_b32 s{sTmp}, s{sTmp}, 16"); a(f"s_and_b32 s{sTmp2}, s{sw4}, 1"); a(f"s_lshl_b32 s{sTmp2}, s{sTmp2}, 14")
    a(f"s_add_u32 s{sTmp}, s{sTmp}, s{sTmp2}"); a(f"s_lshl_b32 s{sTmp2}, s{sw4}, 17")
    def wo_dma(g):
        if g % 4 == 0:
            a(f"s_add_u32 m0, s{sTmp}, {WO_BASE[0] + g*1024}"); a(f"s_add_u32 s{sO}, s{sTmp2}, {g*8192}")
        a.vmem(f"buffer_load_dwordx4 v{8+(g%4)}, s[{sWO}:{sWO+3}], s{sO} offen offset:{(g%4)*1024} {cfg['aux_w2']} lds", "wo")
    for g in range(16): wo_dma(g)
    stamp(a, cfg, 3)
    a.wait(vm="k")
    a("v_mov_b32 v10, 0"); a("v_mov_b32 v11, 0")
    for j in range(12):
        base = (KF + 4*j) if j < 10 else (QF + 4*(j-10))
        t = 12 + (j & 1)
        a(f"v_dot2_f32_bf16 v{t}, v{base}, v{base}, 0")
        for q in range(1, 4): a(f"v_dot2_f32_bf16 v{t}, v{base+q}, v{base+q}, v{t}")
        if j > 0:
            pj = j - 1; d = 10 if pj < 10 else 11
            a(f"v_max_f32 v{d}, v{d}, v{12+(pj&1)}")
    a("v_max_f32 v11, v11, v13")
    wave_max32(a, 10); wave_max32(a, 11)
    a(f"v_readlane_b32 s{sA}, v10, 31"); a(f"v_readlane_b32 s{sB}, v10, 63"); a(f"v_readlane_b32 s{sTmp}, v11, 31"); a(f"v_readlane_b32 s{sTmp2}, v11, 63")
    a(f"v_mov_b32 v10, s{sA}"); a(f"v_mov_b32 v11, s{sTmp}"); a(f"v_add_f32 v10, s{sB}, v10"); a(f"v_add_f32 v11, s{sTmp2}, v11")
    a("v_mul_f32 v10, v10, v11")
    a(f"v_cmp_nge_f32 vcc, {f32(cfg.get('bound2', BOUND2))}, v10")
    a("s_nop 4"); a("s_cmp_lg_u64 vcc, 0"); a("s_cbranch_scc1 L_attn_slow")
    saved = list(a.vm)
    stamp(a, cfg, 4)
    attn_fast(a, cfg)
    a("L_attn_done:")
    stamp(a, cfg, 5)
    a.vm = ["x"]
    a(f"s_lshl_b32 s{sO}, s{sRB2}, 5"); a(f"s_add_u32 s{sO}, s{sO}, s{sHD}"); a(f"s_lshl_b32 s{sO}, s{sO}, 7"); a(f"s_add_u32 s{sO}, s{sO}, {WS_F2}")
    publish(a, f"s{sO}", 4)
    a(f"v_mov_b32 v6, {L_CNT}"); a("v_mov_b32 v5, 1"); lds_count(a, 6, 5, C_WO)
    stamp(a, cfg, 6)
    OF, ACC, XR, WF = 16, 96, 128, 144
    a(f"s_lshr_b32 s{sKH}, s{sw4}, 1"); a(f"s_and_b32 s{sT1}, s{sw4}, 1"); a(f"s_add_u32 s{sT1}, s{sT1}, s{sTT}")
    a(f"s_lshl_b32 s{sTmp}, s{sCB2}, 7"); a(f"s_lshl_b32 s{sTmp2}, s{sKH}, 6"); a(f"s_add_u32 s{sTmp}, s{sTmp}, s{sTmp2}")
    a("v_lshrrev_b32 v7, 5, v0"); a("v_lshlrev_b32 v8, 4, v7"); a(f"v_add_u32 v8, s{sTmp}, v8")
    a("v_and_b32 v9, 31, v0"); a(f"s_lshl_b32 s{sTmp2}, s{sT1}, 5"); a(f"v_add_u32 v9, s{sTmp2}, v9")
    a("v_lshl_add_u32 v11, v9, 10, v8")
    a(f"s_lshl_b32 s{sO}, s{sRB2}, 5"); a(f"s_lshl_b32 s{sTmp}, s{sKH}, 4"); a(f"s_add_u32 s{sO}, s{sO}, s{sTmp}"); a(f"s_lshl_b32 s{sO}, s{sO}, 7"); a(f"s_add_u32 s{sO}, s{sO}, {WS_F2}")
    a("v_and_b32 v12, 15, v0"); a("v_lshlrev_b32 v12, 7, v12"); a(f"v_add_u32 v12, s{sO}, v12")
    a(f"s_lshl_b32 s{sTmp}, s{sKH}, 16"); a(f"s_add_u32 s{sTmp}, s{sTmp}, {WO_BASE[0]}")
    tr_addr2(a, 14, f"s{sTmp}")
    a(f"s_lshl_b32 s{sTmp}, s{sKH}, 6"); a(f"v_xor_b32 v14, s{sTmp}, v14"); a(f"v_xor_b32 v15, s{sTmp}, v15")
    lds_spin(a, 6, 7, C_POLL, int(cfg.get("poll_cnt", 4)), sleep=2)
    stamp(a, cfg, 7)
    flag_poll(a, 12, 13, 16)
    a(f"s_lshl_b32 s{sO}, s{sT1}, 5"); a(f"s_lshl_b32 s{sTmp}, s{sKH}, 4"); a(f"s_add_u32 s{sO}, s{sO}, s{sTmp}"); a(f"s_lshl_b32 s{sO}, s{sO}, 10"); a(f"s_add_u32 s{sO}, s{sO}, {WS_O}")
    for n in range(16):
        if n and n % 4 == 0: a(f"s_add_u32 s{sO}, s{sO}, 4096")
        a.vmem(f"buffer_load_dwordx4 {vr(OF+4*n,4)}, v2, s[{sWS}:{sWS+3}], s{sO} offen offset:{(n%4)*1024} sc1", ("o", n))
    stamp(a, cfg, 8)
    lds_spin(a, 6, 7, C_WO, 4)
    def reads(n):
        return [f"ds_read_b64_tr_b16 {vr(WF+8*(n%4)+4*t+2*sec,2)}, v{14+t} offset:{n*2048 + sec*1024}" for t in range(2) for sec in range(2)]
    for n in range(3):
        for r in reads(n): a.lds(r, ("f", n))
    for n in range(16):
        nxt = reads(n + 3) if n < 13 else []
        a.wait(vm=("o", n), lg=("f", n))
        for t in range(2):
            acc = vr(ACC + 16*t, 16)
            a(f"v_mfma_f32_32x32x16_bf16 {acc}, {vr(WF+8*(n%4)+4*t,4)}, {vr(OF+4*n,4)}, {'0' if n == 0 else acc}")
            for r in nxt[2*t:2*t+2]: a.lds(r, ("f", n + 3))
    stamp(a, cfg, 9)
    a(f"s_lshl_b32 s{sTmp}, s{sw4}, 12"); a(f"s_add_u32 s{sTmp}, s{sTmp}, {L_EX}"); a(f"v_add_u32 v12, s{sTmp}, v2")
    a(f"s_xor_b32 s{sTmp}, s{sw4}, 2"); a(f"s_lshl_b32 s{sTmp}, s{sTmp}, 12"); a(f"s_add_u32 s{sTmp}, s{sTmp}, {L_EX}"); a(f"v_add_u32 v13, s{sTmp}, v2")
    for q in range(4): a.lds(f"ds_write_b128 v12, {vr(ACC+16+4*q,4)} offset:{q*1024}", "ex")
    a(f"s_and_b32 s{sTmp}, s{sw4}, 1"); a(f"s_lshl_b32 s{sTmp}, s{sTmp}, 1"); a(f"s_add_u32 s{sTmp}, s{sTmp}, s{sKH}"); a(f"s_lshl_b32 s{sTmp}, s{sTmp}, 12")
    a(f"v_add_u32 v12, s{sTmp}, v2"); a("v_add_u32 v10, 0x10000, v12")
    a.wait(lg="all"); a("s_barrier")
    PT = 16
    for p in range(5):
        for q in range(4):
            if p < 4: a.lds(f"ds_read_b128 {vr(PT+16*p+4*q,4)}, v{12 if p < 2 else 10} offset:{(p&1)*16384 + q*1024}", ("p", p))
            else: a.lds(f"ds_read_b128 {vr(PT+16*p+4*q,4)}, v13 offset:{q*1024}", ("p", p))
    for p in range(5):
        a.wait(lg=("p", p))
        for q in range(8): a(f"v_pk_add_f32 {vr(ACC+2*q,2)}, {vr(ACC+2*q,2)}, {vr(PT+16*p+2*q,2)}")
    for q in range(8): a(f"v_cvt_pk_bf16_f32 v{XR+q}, v{ACC+2*q}, v{ACC+2*q+1}")
    srd(a, R0, pOUT, 0x200000)
    for jp in range(2):
        a(f"v_permlane32_swap_b32 v{XR+4*jp}, v{XR+4*jp+2}"); a(f"v_permlane32_swap_b32 v{XR+4*jp+1}, v{XR+4*jp+3}")
        a.vmem(f"buffer_store_dwordx4 {vr(XR+4*jp,4)}, v11, s[{R0}:{R0+3}], 0 offen offset:{jp*32} {cfg.get('aux_out', '')}", "out")
    return saved

def p2_B(a, cfg):
    ACC, HR, WF, XR = 16, 80, 144, 176
    D = 8
    sW2, sH0, sH1, sXO, sB2 = R0, R2, R3, R4, R5
    a.vm = []; a.lg = []
    stamp(a, cfg, 0)
    srd(a, sW2, pW2, 1409024)
    w_src_addr(a, 8); a("v_add_u32 v9, 7168, v8")
    a(f"s_mul_i32 s{sKW}, s{sw4}, {22*16*1024}"); a(f"s_mul_i32 s{sKHh}, s{sw4}, {22*1024}")
    a(f"s_lshr_b32 s{sL}, s{sw4}, 1"); a(f"s_lshl_b32 s{sL}, s{sL}, 16"); a(f"s_and_b32 s{sTmp}, s{sw4}, 1"); a(f"s_lshl_b32 s{sTmp}, s{sTmp}, 14"); a(f"s_add_u32 s{sL}, s{sL}, s{sTmp}")
    def w_ops(n):
        def w(kb):
            if kb == 0: a(f"s_add_u32 m0, s{sL}, {(n % D)*2048}"); a(f"s_add_u32 s{sO}, s{sKW}, {n*16384}")
            a.vmem(f"buffer_load_dwordx4 v{8+kb}, s[{sW2}:{sW2+3}], s{sO} offen offset:{kb*1024} {cfg['aux_w2']} lds", ("w", n))
        return [lambda: w(0), lambda: w(1)]
    def h_ops(n):
        def h(t):
            if t == 0: a(f"s_add_u32 s{sM}, s{sKHh}, {n*1024}")
            a.vmem(f"buffer_load_dwordx4 {vr(HR+8*(n%D)+4*t,4)}, v2, s[{(sH0,sH1)[t]}:{(sH0,sH1)[t]+3}], s{sM} offen sc1", ("h", n))
        return [lambda: h(0), lambda: h(1)]
    lds_spin(a, 12, 7, C_RING, 4)
    WD = int(cfg.get("w2_pre", 7))
    for n in range(WD):
        for o in w_ops(n): o()
    a(f"s_lshr_b32 s{sTmp2}, s{sw4}, 1")
    a(f"s_add_u32 s{sT1}, s{sTT}, s{sTmp2}"); a(f"s_mul_i32 s{sTmp}, s{sT1}, {86*1024}"); a(f"s_add_u32 s{sTmp}, s{sTmp}, {WS_H}")
    sub_srd(a, sH0, f"s{sTmp}", 86 * 1024)
    a(f"s_xor_b32 s{sTmp2}, s{sT1}, 1"); a(f"s_mul_i32 s{sTmp}, s{sTmp2}, {86*1024}"); a(f"s_add_u32 s{sTmp}, s{sTmp}, {WS_H}")
    sub_srd(a, sH1, f"s{sTmp}", 86 * 1024)
    srd(a, sXO, pX, 0x200000); srd(a, sB2, pB2, 1024)
    a(f"s_and_b32 s{sTmp2}, s{sw4}, 1"); a(f"s_lshl_b32 s{sTmp2}, s{sTmp2}, 6"); a(f"s_lshl_b32 s{sTmp}, s{sCB2}, 7"); a(f"s_add_u32 s{sTmp}, s{sTmp}, s{sTmp2}")
    a("v_lshrrev_b32 v7, 5, v0"); a("v_lshlrev_b32 v14, 3, v7"); a(f"v_add_u32 v14, s{sTmp}, v14")
    a("v_and_b32 v4, 31, v0"); a(f"s_lshl_b32 s{sTmp}, s{sT1}, 5"); a(f"v_add_u32 v4, s{sTmp}, v4"); a("v_lshl_add_u32 v15, v4, 10, v14")
    for j in range(4):
        a.vmem(f"buffer_load_dwordx2 {vr(XR+2*j,2)}, v15, s[{sXO}:{sXO+3}], 0 offen offset:{j*16}", "xb")
        a.vmem(f"buffer_load_dwordx2 {vr(XR+8+2*j,2)}, v14, s[{sB2}:{sB2+3}], 0 offen offset:{j*16}", "xb")
    tr_addr2(a, 10, f"s{sL}")
    a(f"v_xor_b32 v10, s{sTmp2}, v10"); a(f"v_xor_b32 v11, s{sTmp2}, v11")
    a("v_min_u32 v4, 11, v0"); a("v_lshrrev_b32 v5, 1, v4"); a(f"s_mul_i32 s{sTmp}, s{sw4}, 11"); a(f"s_lshr_b32 s{sTmp}, s{sTmp}, 1"); a(f"v_add_u32 v5, s{sTmp}, v5")
    a("v_cmp_gt_u32 vcc, 8, v5"); a("v_xor_b32 v6, 8, v5"); a("v_add_u32 v7, -8, v5"); a("v_cndmask_b32 v5, v7, v6, vcc")
    a("v_mov_b32 v6, 128"); a("v_mov_b32 v7, 256"); a("v_cndmask_b32 v6, v6, v7, vcc")
    a("v_and_b32 v4, 1, v4"); a(f"v_add_u32 v4, s{sTT}, v4"); a("v_lshrrev_b32 v7, 2, v4"); a("v_lshl_add_u32 v5, v7, 4, v5"); a("v_mul_u32_u24 v5, 384, v5")
    a("v_and_b32 v4, 3, v4"); a("v_lshl_add_u32 v5, v4, 2, v5"); a("v_add_u32 v5, v5, v6"); a(f"v_add_u32 v3, {WS_F1}, v5")
    a.wait(vm="xb")
    for j in range(4):
        for d in range(2):
            x, bb, o = XR + 2*j + d, XR + 8 + 2*j + d, ACC + 4*j + 2*d
            a(f"v_lshlrev_b32 v14, 16, v{x}"); a(f"v_lshlrev_b32 v15, 16, v{bb}"); a(f"v_add_f32 v{o}, v14, v15")
            a(f"v_and_b32 v14, 0xffff0000, v{x}"); a(f"v_and_b32 v15, 0xffff0000, v{bb}"); a(f"v_add_f32 v{o+1}, v14, v15")
    stamp(a, cfg, 1)
    flag_poll(a, 3, 4, 12)
    stamp(a, cfg, 2)
    if cfg.get("prio", True): a("s_setprio 0")
    DI = int(cfg.get("p2_depth", 5))
    for n in range(DI):
        for o in h_ops(n): o()
    def reads(n):
        return [f"ds_read_b64_tr_b16 {vr(WF+8*(n&1)+4*t+2*sec,2)}, v{10+t} offset:{(n%D)*2048 + sec*1024}" for t in range(2) for sec in range(2)]
    for r in reads(0): a.lds(r, ("f", 0))
    for n in range(22):
        ops = (h_ops(n + DI) if n + DI < 22 else [None, None]) + (w_ops(n + WD) if n + WD < 22 else [None, None])
        if n + DI == 22: lds_count(a, 12, 13, C_POLL)
        if n < 21:
            a.wait(vm=("w", n + 1))
            for r in reads(n + 1): a.lds(r, ("f", n + 1))
        a.wait(lg=("f", n), vm=("h", n))
        for tt in range(2):
            for ft in range(2):
                acc = vr(ACC + 16*(2*tt+ft), 16)
                a(f"v_mfma_f32_32x32x16_bf16 {acc}, {vr(WF+8*(n&1)+4*ft,4)}, {vr(HR+8*(n%D)+4*tt,4)}, {'0' if (n == 0 and tt+ft) else acc}")
                if ops[2*tt+ft]: ops[2*tt+ft]()
        if n in (0, 5, 10, 15, 21): stamp(a, cfg, 3 + (0, 5, 10, 15, 21).index(n))
    a(f"v_add_u32 v14, s{sL}, v2"); a(f"s_lshl_b32 s{sTmp}, s{sw4}, 12"); a(f"v_xor_b32 v14, s{sTmp}, v14")
    for t in range(4):
        if t: a(f"v_xor_b32 v15, {t*4096}, v14")
        for q in range(4): a.lds(f"ds_write_b128 v{15 if t else 14}, {vr(ACC+16*t+4*q,4)} offset:{q*1024}", "d")
    a.wait(lg="all"); stamp(a, cfg, 8); a("s_barrier")

def build(cfg):
    a = Asm()
    a("s_cmp_ge_u32 s2, 256"); a("s_cbranch_scc1 L_end")
    if cfg.get("stamp"):
        for i in range(NSTAMP): a(f"s_mov_b32 s{STAMP0+2*i}, 0")
    stamp(a, cfg, 0)
    prologue(a, cfg)
    a(f"s_cmp_lt_u32 s{sW}, 4"); a("s_cbranch_scc1 L_A")
    B = Asm(); B.uid = 1000
    p1_B(B, cfg); stamp_dump(B, cfg, 0, 16); p2_B(B, cfg)
    if cfg.get("stamp"): B("s_waitcnt vmcnt(0)"); stamp(B, cfg, 10); stamp_dump(B, cfg, 0x20000, 16)
    B("s_endpgm")
    X = Asm(); X.uid = 2000
    X("L_A:"); X(f"s_cmp_ge_u32 s{sCB}, 8"); X("s_cbranch_scc1 L_AY")
    p1_A(X, "X", cfg); stamp_dump(X, cfg, 0, 16); X("s_branch L_A2")
    Y = Asm(); Y.uid = 3000
    Y("L_AY:"); p1_A(Y, "Y", cfg); stamp_dump(Y, cfg, 0, 16)
    A2 = Asm(); A2.uid = 4000
    A2("L_A2:"); A2("s_nop 15"); saved = p2_A(A2, cfg)
    if cfg.get("stamp"): A2("s_waitcnt vmcnt(0)"); stamp(A2, cfg, 10); stamp_dump(A2, cfg, 0x20000, 16)
    A2("s_endpgm")
    S = Asm(); S.uid = 5000; S.vm = saved
    S("L_attn_slow:"); attn_slow(S, cfg); S("s_branch L_attn_done")
    E = Asm(); E("L_end:"); E("s_endpgm")
    body = a.text() + B.text() + X.text() + Y.text() + A2.text() + S.text() + E.text()
    name = KN + "_kernel"
    return file_text([(name, body, 256, 102, 0)], [(name, 256, 512, LDS_BYTES)])

if __name__ == "__main__":
    import sys
    cfg = dict(map1="8x4", map2="4x8", aux_x="", aux_w="", aux_w2="", prio=True)
    for kv in sys.argv[2:]:
        k, v = kv.split("=", 1)
        cfg[k] = {"True": True, "False": False}.get(v, v)
    if "bound2" in cfg: cfg["bound2"] = float(cfg["bound2"])
    open(sys.argv[1], "w").write(build(cfg))
```

```python
from asmlib import *
from layout import *

L_X = 0x0; L_W = 0x10000
L_CS = 0x20000; L_PS = 0x20c00; L_RSTD = 0x21c00; L_CNT = 0x21e00
L_EX = 0x22000
LDS_BYTES = 0x26000
C_CS, C_ST9, C_RING, C_WO, C_POLL, C_HOLD = 0, 4, 8, 12, 16, 20
WO_BASE = (0x8000, 0x18000)
SPIN_MAX = 400000
BOUND2 = 64.0 * 64.0
NEG = float("-inf")
WS_EPOCH = 0x70000
WS_F1 = 0x80000
WS_F2 = 0xA0000

pX, pQKV, pWO, pW1, pB1, pW2, pB2, pOUT, pDBG, pWS = 4, 6, 8, 12, 14, 16, 18, 20, 22, 24
R0, sWS, R2, R3, R4, R5, R6 = 28, 32, 36, 40, 44, 48, 52
sW, sw4, sRB, sCB, sROT, sN = 56, 57, 58, 59, 60, 61
sO, sKC, sTmp, sTmp2, sA, sB = 62, 63, 64, 65, 66, 67
sStr1, sCol0, sCol1, sTA, sTB, sLdsW, sLdsX, sLdsB = 68, 69, 70, 71, 72, 73, 74, 75
sRB2, sCB2, sTT = 76, 77, 78
sHD, sM, sKH, sT1, sKW, sKHh, sL = 68, 69, 70, 71, 72, 73, 74
STAMP0 = 80; NSTAMP = 11

def stamp(a, cfg, i, force=False):
    if cfg.get("stamp") == "light" and not force: return
    if cfg.get("stamp"):
        a(f"{'s_memtime' if cfg.get('stamp') == 'cyc' else 's_memrealtime'} s[{STAMP0+2*i}:{STAMP0+2*i+1}]")
def stamp_dump(a, cfg, base, v):
    if not cfg.get("stamp") or (cfg.get("stamp") == "light" and base == 0): return
    a("s_waitcnt lgkmcnt(0)"); a.lg = []
    a(f"s_lshl_b32 s{sA}, s2, 3"); a(f"s_add_u32 s{sA}, s{sA}, s{sW}"); a(f"s_lshl_b32 s{sA}, s{sA}, 6"); a(f"s_add_u32 s{sA}, s{sA}, {base}")
    for i in range(12): a(f"v_mov_b32 v{v+i}, {'s%d' % (STAMP0+2*i) if i < NSTAMP else 0}")
    a(f"v_mov_b32 v{v+12}, 0"); a("s_mov_b64 exec, 1")
    for q in range(3): a.vmem(f"buffer_store_dwordx4 {vr(v+4*q,4)}, v{v+12}, s[{sWS}:{sWS+3}], s{sA} offen offset:{16*q}", "stamp")
    a("s_mov_b64 exec, -1")
    for i in range(NSTAMP): a(f"s_mov_b32 s{STAMP0+2*i}, 0")

def srd(a, d, p, size):
    a(f"s_mov_b32 s{d}, s{p}"); a(f"s_mov_b32 s{d+1}, s{p+1}"); a(f"s_mov_b32 s{d+2}, {size}"); a(f"s_mov_b32 s{d+3}, 0x20000")
def sub_srd(a, d, off_s, size):
    a(f"s_add_u32 s{d}, s{pWS}, {off_s}"); a(f"s_addc_u32 s{d+1}, s{pWS+1}, 0"); a(f"s_mov_b32 s{d+2}, {size}"); a(f"s_mov_b32 s{d+3}, 0x20000")

def lds_spin(a, vaddr, vtmp, off, target, sleep=0):
    lp = a.label("spin"); lq = a.label("spinx")
    a(f"s_mov_b32 s{sA}, 0")
    a(f"{lp}:")
    a(f"ds_read_b32 v{vtmp}, v{vaddr} offset:{off}")
    a(f"s_add_u32 s{sA}, s{sA}, 1"); a(f"s_cmp_gt_u32 s{sA}, {SPIN_MAX}"); a(f"s_cbranch_scc1 {lq}")
    a("s_waitcnt lgkmcnt(0)"); a(f"v_readfirstlane_b32 s{sB}, v{vtmp}"); a(f"s_cmp_ge_u32 s{sB}, {target}"); a(f"s_cbranch_scc1 {lq}")
    if sleep: a(f"s_sleep {sleep}")
    a(f"s_branch {lp}")
    a(f"{lq}:")
    a("s_waitcnt lgkmcnt(0)"); a.lg = []
def lds_count(a, vaddr, vone, off):
    a("s_mov_b64 exec, 1"); a.lds(f"ds_add_u32 v{vaddr}, v{vone} offset:{off}", "cnt"); a("s_mov_b64 exec, -1")

def flag_poll(a, vaddr, vdat, nl, sleep=2):
    lp = a.label("poll"); lq = a.label("pollx")
    a(f"s_mov_b32 s{sA}, 0")
    a(f"{lp}:")
    a(f"buffer_load_dword v{vdat}, v{vaddr}, s[{sWS}:{sWS+3}], 0 offen sc1")
    a(f"s_add_u32 s{sA}, s{sA}, 1"); a(f"s_cmp_gt_u32 s{sA}, {SPIN_MAX}"); a(f"s_cbranch_scc1 {lq}")
    a("s_waitcnt vmcnt(0)")
    a(f"v_cmp_ne_u32 vcc, s{sN}, v{vdat}")
    a("s_nop 4"); a("s_cmp_eq_u64 vcc, 0"); a(f"s_cbranch_scc1 {lq}")
    a(f"s_sleep {sleep}"); a(f"s_branch {lp}")
    a(f"{lq}:")
    a("s_waitcnt vmcnt(0)"); a.vm = []

def nonce_issue(a, v):
    srd(a, R6, pDBG, 256)
    a(f"v_mov_b32 v{v+2}, 0")
    a.vmem(f"buffer_load_dwordx2 {vr(v,2)}, v{v+2}, s[{R6}:{R6+3}], 0 offen sc1", "nonce")
def nonce_get(a, v):
    a.wait(vm="nonce")
    lp = a.label("nonce"); lq = a.label("noncex")
    a(f"s_mov_b32 s{sA}, 0")
    a(f"{lp}:")
    a(f"v_readfirstlane_b32 s{sB}, v{v+1}"); a(f"v_readfirstlane_b32 s{sN}, v{v}")
    a(f"s_cmp_eq_u32 s{sB}, 1"); a(f"s_cbranch_scc1 {lq}")
    a(f"s_add_u32 s{sA}, s{sA}, 1"); a(f"s_cmp_gt_u32 s{sA}, {SPIN_MAX}"); a(f"s_cbranch_scc1 {lq}")
    a(f"buffer_load_dwordx2 {vr(v,2)}, v{v+2}, s[{R6}:{R6+3}], 0 offen sc1"); a("s_waitcnt vmcnt(0)")
    a(f"s_branch {lp}")
    a(f"{lq}:")
def publish(a, off_s, v, tag="all"):
    a.wait(vm=tag)
    a(f"v_mov_b32 v{v}, s{sN}"); a(f"v_mov_b32 v{v+1}, 0"); a("s_mov_b64 exec, 1")
    a.vmem(f"buffer_store_dword v{v}, v{v+1}, s[{sWS}:{sWS+3}], {off_s} offen sc1", "flag")
    a("s_mov_b64 exec, -1")
def f1_addr(a, cls):
    a(f"s_lshl_b32 s{sO}, s{sRB}, 4"); a(f"s_add_u32 s{sO}, s{sO}, s{sCB}"); a(f"s_mul_i32 s{sO}, s{sO}, 384")
    a(f"s_lshl_b32 s{sTmp}, s{sw4}, 2"); a(f"s_add_u32 s{sO}, s{sO}, s{sTmp}"); a(f"s_add_u32 s{sO}, s{sO}, {WS_F1 + cls*128}")

class Interleave:
    def __init__(self, a, ops, step): self.a, self.ops, self.step, self.k = a, list(ops), step, 0
    def __call__(self, s):
        self.a(s); self.k += 1
        if self.ops and self.k % self.step == 0 and not s.startswith(("s_cmp", "v_cmp", "s_add_u32", "s_cselect")): self.ops.pop(0)()
    def flush(self):
        while self.ops: self.ops.pop(0)()
    def __getattr__(self, n): return getattr(self.a, n)

def mapping(a, cfg):
    m1, m2 = cfg["map1"], cfg["map2"]
    a(f"s_and_b32 s{sA}, s2, 7"); a(f"s_lshr_b32 s{sB}, s2, 3")
    t, u = sTmp, sTmp2
    if m1 == "8x4":
        a(f"s_lshr_b32 s{t}, s{sA}, 2"); a(f"s_lshl_b32 s{t}, s{t}, 3"); a(f"s_lshr_b32 s{u}, s{sB}, 2"); a(f"s_add_u32 s{sRB}, s{t}, s{u}")
        a(f"s_and_b32 s{t}, s{sB}, 3"); a(f"s_lshl_b32 s{sROT}, s{t}, 1"); a(f"s_add_u32 s{sROT}, s{sROT}, s{u}")
        a(f"s_lshl_b32 s{t}, s{t}, 2"); a(f"s_and_b32 s{u}, s{sA}, 3"); a(f"s_add_u32 s{sCB}, s{t}, s{u}")
    elif m1 == "4x8":
        a(f"s_lshr_b32 s{t}, s{sA}, 1"); a(f"s_lshl_b32 s{t}, s{t}, 2"); a(f"s_lshr_b32 s{u}, s{sB}, 3"); a(f"s_add_u32 s{sRB}, s{t}, s{u}")
        a(f"s_and_b32 s{t}, s{sB}, 7"); a(f"s_lshl_b32 s{sROT}, s{u}, 1"); a(f"s_add_u32 s{sROT}, s{sROT}, s{t}")
        a(f"s_lshl_b32 s{t}, s{t}, 1"); a(f"s_and_b32 s{u}, s{sA}, 1"); a(f"s_add_u32 s{sCB}, s{t}, s{u}")
    elif m1 == "2x16":
        a(f"s_lshl_b32 s{t}, s{sA}, 1"); a(f"s_lshr_b32 s{u}, s{sB}, 4"); a(f"s_add_u32 s{sRB}, s{t}, s{u}")
        a(f"s_and_b32 s{sCB}, s{sB}, 15"); a(f"s_lshl_b32 s{sROT}, s{u}, 2"); a(f"s_add_u32 s{sROT}, s{sROT}, s{sCB}")
    a(f"s_and_b32 s{sROT}, s{sROT}, {int(cfg.get('rotmask', 7))}")
    if m2 == "4x8":
        a(f"s_lshl_b32 s{t}, s{sA}, 2"); a(f"s_lshr_b32 s{u}, s{sB}, 3"); a(f"s_add_u32 s{sRB2}, s{t}, s{u}"); a(f"s_and_b32 s{sCB2}, s{sB}, 7")
    elif m2 == "8x4":
        a(f"s_lshr_b32 s{t}, s{sA}, 1"); a(f"s_lshl_b32 s{t}, s{t}, 3"); a(f"s_lshr_b32 s{u}, s{sB}, 2"); a(f"s_add_u32 s{sRB2}, s{t}, s{u}")
        a(f"s_and_b32 s{t}, s{sA}, 1"); a(f"s_lshl_b32 s{t}, s{t}, 2"); a(f"s_and_b32 s{u}, s{sB}, 3"); a(f"s_add_u32 s{sCB2}, s{t}, s{u}")
    elif m2 == "16x2":
        a(f"s_lshr_b32 s{t}, s{sA}, 2"); a(f"s_lshl_b32 s{t}, s{t}, 4"); a(f"s_lshr_b32 s{u}, s{sB}, 1"); a(f"s_add_u32 s{sRB2}, s{t}, s{u}")
        a(f"s_and_b32 s{t}, s{sA}, 3"); a(f"s_lshl_b32 s{t}, s{t}, 1"); a(f"s_and_b32 s{u}, s{sB}, 1"); a(f"s_add_u32 s{sCB2}, s{t}, s{u}")
    a(f"s_lshl_b32 s{sTT}, s{sRB2}, 1")

def prologue(a, cfg):
    a("s_load_dwordx16 s[4:19], s[0:1], 0")
    a("s_load_dwordx4 s[20:23], s[0:1], 64")
    a("s_load_dwordx2 s[24:25], s[0:1], 80")
    a("v_lshrrev_b32 v1, 6, v0"); a("v_and_b32 v0, 63, v0"); a(f"v_readfirstlane_b32 s{sW}, v1")
    mapping(a, cfg)
    a(f"s_and_b32 s{sw4}, s{sW}, 3")
    a(f"s_and_b32 s{sTmp}, s{sCB}, 7"); a(f"s_lshl_b32 s{sCol1}, s{sTmp}, 7"); a(f"s_lshl_b32 s{sTA}, s{sTmp}, 1")
    a(f"s_add_u32 s{sTB}, s{sCB}, 8"); a(f"s_lshl_b32 s{sTB}, s{sTB}, 1")
    a(f"s_cmp_lt_u32 s{sCB}, 8")
    a(f"s_cselect_b32 s{sTmp}, 1024, 0"); a(f"s_cselect_b32 s{sTmp2}, 2048, 0"); a(f"s_mov_b32 s{sStr1}, 2752"); a(f"s_cselect_b32 s{sStr1}, 3072, s{sStr1}")
    a(f"s_add_u32 s{sCol0}, s{sCol1}, s{sTmp}"); a(f"s_add_u32 s{sCol1}, s{sCol1}, s{sTmp2}")

def tr_addr(a, dst, j_s, tmp):
    a(f"v_lshrrev_b32 v{tmp}, 5, v0"); a(f"v_lshlrev_b32 v{dst}, 10, v{tmp}")
    a(f"v_bfe_u32 v{tmp}, v0, 2, 2"); a(f"v_lshl_add_u32 v{dst}, v{tmp}, 7, v{dst}")
    a(f"v_bfe_u32 v{tmp}, v0, 3, 1"); a(f"v_lshl_add_u32 v{dst}, v{tmp}, 6, v{dst}")
    a(f"v_bfe_u32 v{tmp}, v0, 4, 1"); a(f"v_lshl_add_u32 v{dst}, v{tmp}, 5, v{dst}")
    a(f"v_and_b32 v{tmp}, 3, v0"); a(f"v_lshl_add_u32 v{dst}, v{tmp}, 3, v{dst}")
def read_addrs(a, vXA, vWA, base, tmp):
    tr_addr(a, tmp + 1, None, tmp)
    a(f"v_and_b32 v{tmp+2}, 31, v0"); a(f"v_lshlrev_b32 v{tmp+2}, 7, v{tmp+2}"); a(f"s_lshl_b32 s{sTmp}, s{sw4}, 12"); a(f"v_add_u32 v{tmp+2}, s{sTmp}, v{tmp+2}")
    a(f"v_lshrrev_b32 v{tmp}, 5, v0"); a(f"v_bfe_u32 v{tmp+3}, v0, 1, 3"); a(f"v_xor_b32 v{tmp+3}, v{tmp+3}, v{tmp}")
    for i in range(4):
        a(f"s_xor_b32 s{sTmp2}, s{sw4}, {i}")
        a(f"s_lshl_b32 s{sTmp}, s{sTmp2}, 1"); a(f"v_xor_b32 v{tmp}, s{sTmp}, v{tmp+3}"); a(f"v_lshl_add_u32 v{vXA+i}, v{tmp}, 4, v{tmp+2}")
        a(f"s_lshl_b32 s{sTmp}, s{sTmp2}, 11"); a(f"s_add_u32 s{sTmp}, s{sTmp}, {base}")
        a(f"v_add_u32 v{vWA+2*i}, s{sTmp}, v{tmp+1}"); a(f"v_xor_b32 v{vWA+2*i+1}, 64, v{vWA+2*i}")
def split_hi_lo(a, v, hi, lo, t):
    a(f"v_cvt_pk_bf16_f32 v{hi}, v{v}, v{v}"); a(f"v_and_b32 v{t}, 0xffff0000, v{hi}"); a(f"v_sub_f32 v{t}, v{v}, v{t}"); a(f"v_cvt_pk_bf16_f32 v{lo}, v{t}, v{t}")
def w_aug(a, dst, cs, bias, t0, t1, t2, vM):
    split_hi_lo(a, cs, t0, t1, t2)
    a(f"v_bfi_b32 v{dst}, v{vM}, v{t0}, v{t1}")
    if bias is None:
        a(f"v_and_b32 v{dst+1}, 0xffff, v{t0}"); a(f"v_mov_b32 v{dst+2}, 0")
    else:
        a(f"v_and_b32 v{t0}, 0xffff, v{t0}"); a(f"v_lshl_or_b32 v{dst+1}, v{bias}, 16, v{t0}"); a(f"v_mov_b32 v{dst+2}, v{bias}")
    a(f"v_mov_b32 v{dst+3}, 0")
def x_aug(a, dst, mean, inv, t0, t1, t2, t3, vM):
    a(f"v_mov_b32 v{vM}, 0xffff")
    a(f"v_sub_f32 v{t3}, 0, v{mean}")
    split_hi_lo(a, t3, dst, t1, t2)
    if inv is None:
        a(f"v_and_b32 v{dst+1}, 0xffff, v{t1}"); a(f"v_mov_b32 v{dst+2}, 0")
    else:
        split_hi_lo(a, inv, t0, t3, t2)
        a(f"v_bfi_b32 v{dst+1}, v{vM}, v{t1}, v{t0}"); a(f"v_and_b32 v{dst+2}, 0xffff, v{t3}")
    a(f"v_mov_b32 v{dst+3}, 0")
    a("v_cmp_gt_u32 vcc, 32, v0")
    for i in range(3): a(f"v_cndmask_b32 v{dst+i}, 0, v{dst+i}, vcc")
def selector(a, dst):
    a("v_bfe_u32 v5, v0, 4, 1"); a("v_and_b32 v7, 15, v0"); a("v_cmp_eq_u32 vcc, v5, v7")
    a("v_mov_b32 v5, 0x3f803f80"); a(f"v_cndmask_b32 v{dst}, 0, v5, vcc")
    for q in range(1, 4): a(f"v_mov_b32 v{dst+q}, v{dst}")
def cs_publish(a, vCS, nt, t0):
    a(f"s_mul_i32 s{sTmp}, s{sw4}, 768"); a(f"s_add_u32 s{sTmp}, s{sTmp}, {L_CS + t0*128}")
    a("v_lshlrev_b32 v7, 2, v0"); a(f"v_add_u32 v7, s{sTmp}, v7")
    a("s_mov_b64 exec, 0xffff")
    for t in range(nt): a.lds(f"ds_write2_b32 v7, v{vCS+4*t}, v{vCS+4*t+1} offset0:{t*32} offset1:{t*32+16}", "cs")
    a("s_mov_b64 exec, -1")
def cs_read(a, dst, nt, t0, vaddr):
    for t in range(nt):
        for w in range(4): a.lds(f"ds_read_b32 v{dst+4*t+w}, v{vaddr} offset:{w*768 + (t0+t)*128}", "st")
def cs_sum(a, dst, nt):
    for t in range(nt):
        a(f"v_add_f32 v{dst+4*t}, v{dst+4*t}, v{dst+4*t+1}"); a(f"v_add_f32 v{dst+4*t+2}, v{dst+4*t+2}, v{dst+4*t+3}")
    for t in range(nt): a(f"v_add_f32 v{dst+4*t}, v{dst+4*t}, v{dst+4*t+2}")
def stat_ops(r, u, vSum):
    return [f"v_lshlrev_b32 v{u}, 16, v{r}", f"v_and_b32 v{u+1}, 0xffff0000, v{r}",
            f"v_add_f32 v{vSum}, v{vSum}, v{u}", f"v_add_f32 v{vSum+1}, v{vSum+1}, v{u+1}",
            f"v_fmac_f32 v{vSum+2}, v{u}, v{u}", f"v_fmac_f32 v{vSum+3}, v{u+1}, v{u+1}"]
def stat_publish(a, vSum, st, vaddr):
    a(f"v_add_f32 v{vSum}, v{vSum}, v{vSum+1}"); a(f"v_add_f32 v{vSum+2}, v{vSum+2}, v{vSum+3}")
    a(f"s_lshl_b32 s{sTmp}, s{sw4}, 8"); a(f"s_add_u32 s{sTmp}, s{sTmp}, {L_PS}")
    a(f"v_lshlrev_b32 v{vaddr}, 2, v0"); a(f"v_add_u32 v{vaddr}, s{sTmp}, v{vaddr}")
    a.lds(f"ds_write_b32 v{vaddr}, v{vSum} offset:{st*2048}", "ps"); a.lds(f"ds_write_b32 v{vaddr}, v{vSum+2} offset:{st*2048+1024}", "ps")
def stat_read(a, vSum, st, vaddr):
    a.lds(f"ds_read_b32 v{vSum+1}, v{vaddr} offset:{(1-st)*2048}", "st"); a.lds(f"ds_read_b32 v{vSum+3}, v{vaddr} offset:{(1-st)*2048+1024}", "st")
def stat_final(a, vSum, T):
    a(f"v_add_f32 v{T}, v{vSum}, v{vSum+1}"); a(f"v_add_f32 v{T+1}, v{vSum+2}, v{vSum+3}")
    a(f"v_mov_b32 v{T+2}, v{T}"); a(f"v_mov_b32 v{T+3}, v{T+1}")
    a(f"v_permlane32_swap_b32 v{T}, v{T+2}"); a(f"v_permlane32_swap_b32 v{T+1}, v{T+3}")
    a(f"v_add_f32 v{T}, v{T}, v{T+2}"); a(f"v_add_f32 v{T+1}, v{T+1}, v{T+3}")
    a(f"v_mul_f32 v{T}, {f32(1/512)}, v{T}")
    a(f"v_mul_f32 v{T+2}, v{T}, v{T}")
    a(f"v_mov_b32 v{T+3}, {f32(1/512)}")
    a(f"v_fma_f32 v{T+1}, v{T+1}, v{T+3}, -v{T+2}")
    a(f"v_max_f32 v{T+1}, 0, v{T+1}")
    a(f"v_add_f32 v{T+1}, {f32(EPS)}, v{T+1}")
    a(f"v_rsq_f32 v{T+1}, v{T+1}")
def mlp_scale(a, vRstd, vS, vInv, vA1, vB1):
    a(f"v_mul_f32 v{vS}, v{vRstd}, v{vRstd}"); a(f"v_mov_b32 v{vInv}, {f32(1.0+EPS)}")
    a(f"v_fmamk_f32 v{vS}, v{vS}, {f32(-EPS)}, v{vInv}"); a(f"v_rsq_f32 v{vS}, v{vS}")
    a(f"v_mul_f32 v{vS}, v{vS}, v{vRstd}"); a(f"v_rcp_f32 v{vInv}, v{vS}")
    a(f"v_mul_f32 v{vA1}, {f32(GELU_A)}, v{vS}")
    a(f"v_mul_f32 v{vB1}, v{vS}, v{vS}"); a(f"v_mul_f32 v{vB1}, v{vB1}, v{vS}"); a(f"v_mul_f32 v{vB1}, {f32(GELU_B)}, v{vB1}")
def gelu_pk(a, z, pk, G, vA1, vB1, vI):
    for q0 in range(0, 8, 2):
        t = [G + 2 * k for k in range(2)]
        for k in range(2): a(f"v_pk_mul_f32 {vr(t[k],2)}, {vr(z+2*(q0+k),2)}, {vr(z+2*(q0+k),2)}")
        for k in range(2): a(f"v_pk_fma_f32 {vr(t[k],2)}, {vr(t[k],2)}, {vr(vB1,2)}, {vr(vA1,2)} op_sel_hi:[1,0,0]")
        for k in range(2): a(f"v_pk_mul_f32 {vr(t[k],2)}, {vr(t[k],2)}, {vr(z+2*(q0+k),2)}")
        for k in range(2): a(f"v_exp_f32 v{t[k]}, v{t[k]}"); a(f"v_exp_f32 v{t[k]+1}, v{t[k]+1}")
        for k in range(2): a(f"v_pk_fma_f32 {vr(t[k],2)}, {vr(t[k],2)}, {vr(vI,2)}, {vr(vI,2)} op_sel_hi:[1,0,0]")
        for k in range(2): a(f"v_rcp_f32 v{t[k]}, v{t[k]}"); a(f"v_rcp_f32 v{t[k]+1}, v{t[k]+1}")
        for k in range(2): a(f"v_pk_mul_f32 {vr(t[k],2)}, {vr(t[k],2)}, {vr(z+2*(q0+k),2)}")
        for k in range(2): a(f"v_cvt_pk_bf16_f32 v{pk+q0+k}, v{t[k]}, v{t[k]+1}")
def gelu_sc(a, z, pk, G, vA1, vB1, vI):
    g = 4
    for q0 in range(0, 16, g):
        t = [G + k for k in range(g)]
        for k in range(g): a(f"v_mul_f32 v{t[k]}, v{z+q0+k}, v{z+q0+k}")
        for k in range(g): a(f"v_fma_f32 v{t[k]}, v{t[k]}, v{vB1}, v{vA1}")
        for k in range(g): a(f"v_mul_f32 v{t[k]}, v{t[k]}, v{z+q0+k}")
        for k in range(g): a(f"v_exp_f32 v{t[k]}, v{t[k]}")
        for k in range(g): a(f"v_fma_f32 v{t[k]}, v{t[k]}, v{vI}, v{vI}")
        for k in range(g): a(f"v_rcp_f32 v{t[k]}, v{t[k]}")
        for k in range(g): a(f"v_mul_f32 v{t[k]}, v{t[k]}, v{z+q0+k}")
        for k in range(0, g, 2): a(f"v_cvt_pk_bf16_f32 v{pk+(q0+k)//2}, v{t[k]}, v{t[k+1]}")
def h_store(a, pk, sT, dt, vL16, sTok):
    a(f"s_add_u32 s{sTmp}, s{sT}, {dt}"); a(f"s_cmp_lt_u32 s{sTmp}, 43")
    a(f"s_mov_b32 s{R5}, s{sWS}"); a(f"s_mov_b32 s{R5+1}, s{sWS+1}"); a(f"s_cselect_b32 s{R5+2}, s{sWS+2}, 0"); a(f"s_mov_b32 s{R5+3}, 0x20000")
    a(f"s_mul_i32 s{sO}, s{sTok}, 86"); a(f"s_lshl_b32 s{sTmp}, s{sTmp}, 1"); a(f"s_add_u32 s{sO}, s{sO}, s{sTmp}"); a(f"s_lshl_b32 s{sO}, s{sO}, 10"); a(f"s_add_u32 s{sO}, s{sO}, {WS_H}")
    for s in range(2):
        a.vmem(f"buffer_store_dwordx4 {vr(pk+4*s,4)}, v{vL16}, s[{R5}:{R5+3}], s{sO} offen offset:{s*1024} sc1", "out")
def bias_load(a, dst, sT, vtmp):
    srd(a, R4, pB1, 2752)
    a(f"v_and_b32 v{vtmp}, 31, v0"); a(f"v_lshlrev_b32 v{vtmp}, 1, v{vtmp}"); a(f"s_lshl_b32 s{sTmp}, s{sT}, 6"); a(f"v_add_u32 v{vtmp}, s{sTmp}, v{vtmp}")
    for t in range(2): a.vmem(f"buffer_load_ushort v{dst+t}, v{vtmp}, s[{R4}:{R4+3}], 0 offen offset:{t*64}", "bias")

def p1_A(a, typ, cfg):
    ACC, XF, NX, WF, NB = 16, 80, 3, 200, 3
    vXA, vWA, vCS, vSel, vBias, T = 120, 124, 160, 132, 136, 140
    vSum, vUn, XA, WA, PK, G, RR, vM, vNo = 112, 116, 100, 176, 200, 192, 232, 104, 108
    stamp(a, cfg, 1)
    a("s_waitcnt lgkmcnt(0)")
    srd(a, sWS, pWS, 0x10000000)
    lead = a.label("nolead")
    a(f"s_or_b32 s{sTmp}, s2, s{sW}"); a(f"s_cmp_lg_u32 s{sTmp}, 0"); a(f"s_cbranch_scc1 {lead}")
    a(f"s_add_u32 s{sA}, s{pWS}, {WS_EPOCH}"); a(f"s_addc_u32 s{sB}, s{pWS+1}, 0")
    a(f"s_load_dword s{sN}, s[{sA}:{sB}], 0"); srd(a, R6, pDBG, 256); a("s_waitcnt lgkmcnt(0)")
    a(f"s_mul_i32 s{sN}, s{sN}, 0x9e3779b1"); a(f"s_add_u32 s{sN}, s{sN}, 0x7f4a7c15")
    a(f"v_mov_b32 v2, s{sN}"); a("v_mov_b32 v3, 1"); a("v_mov_b32 v4, 0"); a(f"s_mov_b32 s{sTmp}, {WS_EPOCH}"); a("s_mov_b64 exec, 1")
    a(f"buffer_store_dwordx2 v[2:3], v4, s[{R6}:{R6+3}], 0 offen sc1")
    a(f"buffer_store_dword v2, v4, s[{sWS}:{sWS+3}], s{sTmp} offen sc1")
    a("s_mov_b64 exec, -1"); a("s_waitcnt vmcnt(0)")
    a(f"{lead}:")
    if cfg.get("codepf", True):
        nopf = a.label("nopf")
        a(f"s_lshr_b32 s{sTmp}, s2, 3"); a(f"s_sub_u32 s{sTmp}, s{sTmp}, 1"); a(f"s_cmp_ge_u32 s{sTmp}, 5"); a(f"s_cbranch_scc1 {nopf}")
        a(f"s_cmp_lg_u32 s{sW}, 0"); a(f"s_cbranch_scc1 {nopf}")
        here = a.label("here")
        a(f"s_getpc_b64 s[{sA}:{sB}]"); a(f"{here}:")
        a(f"s_sub_u32 s{sA}, s{sA}, {here}-{KN}_kernel"); a(f"s_subb_u32 s{sB}, s{sB}, 0")
        a(f"s_lshl_b32 s{sTmp}, s{sTmp}, 13"); a("v_lshlrev_b32 v2, 7, v0"); a(f"v_add_u32 v2, s{sTmp}, v2")
        a(f"v_min_u32 v2, L_attn_slow-{KN}_kernel, v2")
        a(f"global_load_dword v1, v2, s[{sA}:{sB}]")
        a(f"{nopf}:")
    if typ == "Y": bias_load(a, vBias, sTA, 6)
    read_addrs(a, vXA, vWA, L_W, T)
    selector(a, vSel)
    for q in range(4): a(f"v_mov_b32 v{vSum+q}, 0")
    woA = cfg.get('wo_who', 'A8') == 'A8'
    if woA: wo_addr(a)
    def reads(n):
        c, i = n >> 2, n & 3; b = n % NB; so = (c & 3) * 16384
        r = [f"ds_read_b128 {vr(XF+4*(n%NX),4)}, v{vXA+i} offset:{so}"]
        for t in range(4):
            for sec in range(2):
                r.append(f"ds_read_b64_tr_b16 {vr(WF+16*b+4*t+2*sec,2)}, v{vWA+2*i+(t&1)} offset:{so + (t>>1)*8192 + sec*512}")
        return r
    swap = lambda t: typ == "X" and t >= 2
    a("s_barrier")
    stamp(a, cfg, 2)
    for n in range(2):
        for r in reads(n): a.lds(r, ("f", n))
    for n in range(32):
        c, i = n >> 2, n & 3; b = n % NB
        if i == 2 and c < 7:
            a("s_barrier")
            if c in (0, 3): stamp(a, cfg, 3 + c // 3)
        if n == 30: cs_publish(a, vCS, 4, 0)
        a.wait(lg=("f", n))
        nxt = reads(n + 2) if n < 30 else []
        k = 0
        for t in range(4):
            wf = vr(WF + 16*b + 4*t, 4); xf = vr(XF + 4*(n % NX), 4); acc = vr(ACC + 16*t, 16)
            cin = "0" if n == 0 else acc
            a(f"v_mfma_f32_32x32x16_bf16 {acc}, {xf if swap(t) else wf}, {wf if swap(t) else xf}, {cin}")
            take = 3 if t == 0 else 2
            for r in nxt[k:k+take]: a.lds(r, ("f", n + 2))
            k += take
            if i == 0: a(f"v_mfma_f32_16x16x32_bf16 {vr(vCS+4*t,4)}, {vr(vSel,4)}, {wf}, {'0' if n == 0 else vr(vCS+4*t,4)}")
            if n == 31 and woA: wo_op(a, cfg, t, 248, R4)
        if n == 30:
            a.wait(lg=("f", 31))
            for t in range(4):
                for o in stat_ops(XF + 4*(31 % NX) + t, vUn + 2*(t & 1), vSum): a(o)
            stat_publish(a, vSum, 0, 6)
            a.wait(lg="all"); a("s_barrier")
            stamp(a, cfg, 5)
            nonce_issue(a, vNo)
            stat_read(a, vSum, 0, 6)
            a("v_and_b32 v5, 31, v0"); a("v_lshlrev_b32 v5, 2, v5"); a(f"v_add_u32 v7, {L_CS}, v5")
            cs_read(a, vCS, 4, 0, 7)
    real = a; a = Interleave(real, [lambda g=g: wo_op(real, cfg, g, 248, R4) for g in range(4, 16)] if woA else [], int(cfg.get("wo_step", 6)))
    vMean, vRstd, vS, vInv, vA1, vB1 = T, T + 1, T + 2, T + 12, T + 8, T + 10
    a.wait(lg="all")
    stat_final(a, vSum, T)
    if typ == "X":
        a(f"s_lshl_b32 s{sTmp}, s{sw4}, 7"); a(f"s_add_u32 s{sTmp}, s{sTmp}, {L_RSTD}"); a(f"v_add_u32 v6, s{sTmp}, v5")
        a.lds(f"ds_write_b32 v6, v{vRstd}", "rr")
        a("v_lshrrev_b32 v7, 5, v0"); a("v_lshlrev_b32 v7, 4, v7"); a(f"v_add_u32 v7, s{sTmp}, v7")
        for j in range(4): a.lds(f"ds_read_b128 {vr(RR+4*j,4)}, v7 offset:{j*32}", "rr")
    cs_sum(a, vCS, 4)
    if typ == "Y":
        mlp_scale(a, vRstd, vS, vInv, vA1, vB1)
        a.wait(vm="bias")
    x_aug(a, XA, vMean, vInv if typ == "Y" else None, T + 4, T + 5, T + 6, T + 7, vM)
    for t in range(4):
        w_aug(a, WA + 4*t, vCS + 4*t, (vBias + t - 2) if (typ == "Y" and t >= 2) else None, T + 4, T + 5, T + 6, vM)
        acc = vr(ACC + 16*t, 16)
        a(f"v_mfma_f32_32x32x16_bf16 {acc}, {vr(XA,4) if swap(t) else vr(WA+4*t,4)}, {vr(WA+4*t,4) if swap(t) else vr(XA,4)}, {acc}")
    a.flush(); a = real
    stamp(a, cfg, 6)
    if cfg.get("prioA"): a(f"s_setprio {cfg['prioA']}")
    a("v_lshlrev_b32 v2, 4, v0")
    a(f"s_lshl_b32 s{sKC}, s{sRB}, 2"); a(f"s_add_u32 s{sKC}, s{sKC}, s{sw4}")
    vSc = T + 4
    if typ == "Y": a(f"v_mul_f32 v{vSc}, {f32(QSCALE)}, v{vRstd}")
    else: vSc = vRstd
    a(f"s_and_b32 s{sTmp}, s{sCB}, 7"); a(f"s_lshl_b32 s{sTmp}, s{sTmp}, 8"); a(f"s_add_u32 s{sTmp}, s{sTmp}, s{sKC}"); a(f"s_lshl_b32 s{sTmp2}, s{sTmp}, 10")
    for t in range(2):
        z = ACC + 16*t; pk = PK + 8*t
        for q in range(16): a(f"v_mul_f32 v{z+q}, v{z+q}, v{vSc}")
        for q in range(8): a(f"v_cvt_pk_bf16_f32 v{pk+q}, v{z+2*q}, v{z+2*q+1}")
        for hh in range(2):
            a(f"s_add_u32 s{sO}, s{sTmp2}, {WS_QK + (32*65536 if typ == 'X' else 0) + (2*t+hh)*65536}")
            a.vmem(f"buffer_store_dwordx4 {vr(pk+4*hh,4)}, v2, s[{sWS}:{sWS+3}], s{sO} offen sc1", "out")
    if typ == "X":
        a("v_bfe_u32 v6, v0, 4, 1"); a("v_lshlrev_b32 v6, 16, v6"); a("v_lshrrev_b32 v7, 5, v0"); a("v_lshl_add_u32 v6, v7, 8, v6")
        a("v_and_b32 v7, 15, v0"); a("v_lshl_add_u32 v6, v7, 4, v6")
        a.wait(lg="all")
        for t in range(2, 4):
            z = ACC + 16*t; pk = PK + 8*t
            for q in range(16): a(f"v_mul_f32 v{z+q}, v{z+q}, v{RR+q}")
            for q in range(8): a(f"v_cvt_pk_bf16_f32 v{pk+q}, v{z+2*q}, v{z+2*q+1}")
            a(f"s_add_u32 s{sO}, s{sTmp2}, {WS_V + 2*(t-2)*65536}")
            for s in range(2):
                a.vmem(f"buffer_store_dwordx4 {vr(pk+4*s,4)}, v6, s[{sWS}:{sWS+3}], s{sO} offen offset:{s*512} sc1", "out")
        stamp(a, cfg, 7)
        nonce_get(a, vNo)
        attn_setup(a, cfg)
        stamp(a, cfg, 8)
        f1_addr(a, 0); publish(a, f"s{sO}", 14, "out")
        if cfg.get("l2pf", "early") == "late": l2_prefetch(a, cfg, 13)
    else:
        stamp(a, cfg, 7)
        nonce_get(a, vNo)
        gelu_sc(a, ACC + 32, PK + 16, G, vA1, vB1, vInv)
        f1_addr(a, 0); publish(a, f"s{sO}", 6, "out")
        if cfg.get("l2pf", "early") == "late": srd(a, R4, pWO, 524288); l2_prefetch(a, cfg, 13)
        h_store(a, PK + 16, sTA, 0, 2, sKC)
        gelu_sc(a, ACC + 48, PK + 24, G, vA1, vB1, vInv)
        h_store(a, PK + 24, sTA, 1, 2, sKC)
        attn_setup(a, cfg)
        stamp(a, cfg, 8)
        f1_addr(a, 2); publish(a, f"s{sO}", 14)
    stamp(a, cfg, 9)

vW = 128
sKW2, sL2, sWoG = 26, 27, 79
def p2w_setup(a):
    a("v_lshrrev_b32 v132, 3, v0"); a("v_bfe_u32 v133, v0, 4, 1"); a("v_lshlrev_b32 v133, 2, v133"); a("v_and_b32 v134, 7, v0"); a("v_xor_b32 v134, v134, v133"); a("v_lshlrev_b32 v134, 4, v134")
    a(f"v_lshl_add_u32 v{vW}, v132, 10, v134"); a(f"s_lshl_b32 s{sWoG}, s{sCB2}, 7"); a(f"v_add_u32 v{vW}, s{sWoG}, v{vW}")
    for g in range(1, 4): a(f"v_add_u32 v{vW+g}, {g*7168}, v{vW}")
    a(f"s_mul_i32 s{sKW2}, s{sw4}, {22*16*1024}")
    a(f"s_lshr_b32 s{sL2}, s{sw4}, 1"); a(f"s_lshl_b32 s{sL2}, s{sL2}, 16"); a(f"s_and_b32 s{sWoG}, s{sw4}, 1"); a(f"s_lshl_b32 s{sWoG}, s{sWoG}, 14"); a(f"s_add_u32 s{sL2}, s{sL2}, s{sWoG}")
    a(f"s_lshl_b32 s{sWoG}, s{sw4}, 17")
    srd(a, R0, pW2, 1409024); srd(a, R2, pWO, 524288)
def wo_op(a, cfg, g, v=vW, R=R2):
    if g % 4 == 0: a(f"s_add_u32 m0, s{sL2}, {WO_BASE[0] + g*1024}"); a(f"s_add_u32 s{sLdsX}, s{sWoG}, {g*8192}")
    a.vmem(f"buffer_load_dwordx4 v{v+(g%4)}, s[{R}:{R+3}], s{sLdsX} offen offset:{(g%4)*1024} {cfg['aux_w2']} lds", "wo")
def w2_op(a, cfg, n, kb, v=vW, R=R0):
    if kb == 0: a(f"s_add_u32 m0, s{sL2}, {(n % 8)*2048}"); a(f"s_add_u32 s{sLdsX}, s{sKW2}, {n*16384}")
    a.vmem(f"buffer_load_dwordx4 v{v+kb}, s[{R}:{R+3}], s{sLdsX} offen offset:{kb*1024} {cfg['aux_w2']} lds", ("w", n))
def p2w_scalars(a):
    a(f"s_mul_i32 s{sKW2}, s{sw4}, {22*16*1024}")
    a(f"s_lshr_b32 s{sL2}, s{sw4}, 1"); a(f"s_lshl_b32 s{sL2}, s{sL2}, 16"); a(f"s_and_b32 s{sWoG}, s{sw4}, 1"); a(f"s_lshl_b32 s{sWoG}, s{sWoG}, 14"); a(f"s_add_u32 s{sL2}, s{sL2}, s{sWoG}")
    a(f"s_lshl_b32 s{sWoG}, s{sw4}, 17")

def wo_addr(a):
    a("v_lshrrev_b32 v252, 3, v0"); a("v_bfe_u32 v253, v0, 4, 1"); a("v_lshlrev_b32 v253, 2, v253"); a("v_and_b32 v254, 7, v0"); a("v_xor_b32 v254, v254, v253"); a("v_lshlrev_b32 v254, 4, v254")
    a("v_lshl_add_u32 v248, v252, 10, v254"); a(f"s_lshl_b32 s{sWoG}, s{sCB2}, 7"); a(f"v_add_u32 v248, s{sWoG}, v248")
    for g in range(1, 4): a(f"v_add_u32 v{248+g}, {g*7168}, v248")
    p2w_scalars(a); srd(a, R4, pWO, 524288)
def xb_load(a, XR):
    sXO, sB2 = R3, R5
    srd(a, sXO, pX, 0x200000); srd(a, sB2, pB2, 1024)
    a(f"s_lshr_b32 s{sTmp2}, s{sw4}, 1"); a(f"s_add_u32 s{sT1}, s{sTT}, s{sTmp2}")
    a(f"s_and_b32 s{sKH}, s{sw4}, 1"); a(f"s_lshl_b32 s{sKH}, s{sKH}, 6"); a(f"s_lshl_b32 s{sTmp}, s{sCB2}, 7"); a(f"s_add_u32 s{sTmp}, s{sTmp}, s{sKH}")
    a("v_lshrrev_b32 v154, 5, v0"); a("v_lshlrev_b32 v152, 3, v154"); a(f"v_add_u32 v152, s{sTmp}, v152")
    a("v_and_b32 v155, 31, v0"); a(f"s_lshl_b32 s{sTmp}, s{sT1}, 5"); a(f"v_add_u32 v155, s{sTmp}, v155"); a("v_lshl_add_u32 v153, v155, 10, v152")
    for j in range(4):
        a.vmem(f"buffer_load_dwordx2 {vr(XR+2*j,2)}, v153, s[{sXO}:{sXO+3}], 0 offen offset:{j*16}", "xb")
        a.vmem(f"buffer_load_dwordx2 {vr(XR+8+2*j,2)}, v152, s[{sB2}:{sB2+3}], 0 offen offset:{j*16}", "xb")

def p1_B(a, cfg):
    XR, ACC, WF, NB = 128, 16, 48, 4
    vU, vWB, vXs = (2, 14), 16, 8
    vXA, vSum, vUn, T, XA, vCS, vWA, vWX, vSel = 80, 84, 88, 92, 96, 100, 108, 116, 124
    sX, sU0, sU1, sUB = R0, R2, R3, R4
    a("v_lshrrev_b32 v5, 3, v0"); a("v_lshrrev_b32 v6, 4, v0")
    a("v_and_b32 v10, 7, v0"); a("v_xor_b32 v7, v10, v6"); a("v_lshlrev_b32 v7, 4, v7")
    a(f"s_lshl_b32 s{sTmp}, s{sRB}, 7"); a(f"s_lshl_b32 s{sTmp2}, s{sw4}, 5"); a(f"s_add_u32 s{sTmp}, s{sTmp}, s{sTmp2}")
    a(f"v_add_u32 v4, s{sTmp}, v5"); a(f"v_lshl_add_u32 v{vXs}, v4, 10, v7")
    a("v_and_b32 v6, 1, v6"); a("v_lshlrev_b32 v6, 2, v6"); a("v_xor_b32 v7, v10, v6"); a("v_lshlrev_b32 v7, 4, v7")
    a(f"v_xor_b32 v{vXs+1}, 64, v{vXs}"); a(f"v_add_u32 v{vXs+2}, {2*7168}, v{vXs}"); a(f"v_add_u32 v{vXs+3}, {3*7168}, v{vXs+1}"); a(f"v_add_u32 v{vXs+1}, 7168, v{vXs+1}")
    a(f"s_lshl_b32 s{sLdsX}, s{sw4}, 12"); a(f"s_lshl_b32 s{sLdsW}, s{sw4}, 11"); a(f"s_add_u32 s{sLdsW}, s{sLdsW}, {L_W}")
    a(f"s_lshl_b32 s{sTmp}, s{sw4}, 4"); a(f"v_add_u32 v4, s{sTmp}, v5")
    a(f"v_mul_u32_u24 v6, 3072, v4"); a(f"v_add3_u32 v{vU[0]}, v6, v7, s{sCol0}"); a(f"v_add_u32 v{vU[0]+1}, {8*3072-1024}, v{vU[0]}")
    a(f"v_mul_lo_u32 v6, v4, s{sStr1}"); a(f"v_add3_u32 v{vU[1]}, v6, v7, s{sCol1}")
    a(f"s_lshl_b32 s{sTmp}, s{sStr1}, 3"); a(f"s_sub_u32 s{sTmp}, s{sTmp}, 1024"); a(f"v_add_u32 v{vU[1]+1}, s{sTmp}, v{vU[1]}")
    a(f"s_lshl_b32 s{sStr1}, s{sStr1}, 6")
    a("s_waitcnt lgkmcnt(0)")
    srd(a, sX, pX, 0x200000); srd(a, sU0, pQKV, 1572864)
    a(f"s_cmp_lt_u32 s{sCB}, 8"); a(f"s_cselect_b32 s{sU1}, s{pQKV}, s{pW1}"); a(f"s_cselect_b32 s{sU1+1}, s{pQKV+1}, s{pW1+1}")
    a(f"s_mov_b32 s{sU1+2}, 1409024"); a(f"s_cselect_b32 s{sU1+2}, 1572864, s{sU1+2}"); a(f"s_mov_b32 s{sU1+3}, 0x20000")
    def dma_i(vaddr, srdreg, off, tag, aux):
        a.vmem(f"buffer_load_dwordx4 v{vaddr}, s[{srdreg}:{srdreg+3}], s{sO} offen offset:{off} {aux} lds".replace("  ", " "), tag)
    def dma_ops(c):
        ops = []
        if c < 8:
            def x(g):
                if g == 0:
                    a(f"s_add_u32 s{sKC}, s{sROT}, {c}"); a(f"s_and_b32 s{sKC}, s{sKC}, 7")
                    a(f"s_add_u32 m0, s{sLdsX}, {L_X + (c & 3)*16384}"); a(f"s_lshl_b32 s{sO}, s{sKC}, 7")
                dma_i(vXs + g, sX, g * 1024, ("st", c), cfg["aux_x"])
            def w(u, kb):
                if kb == 0:
                    a(f"s_add_u32 m0, s{sLdsW}, {(c & 3)*16384 + u*8192}"); a(f"s_mul_i32 s{sO}, s{sKC}, {64*3072 if u == 0 else 's%d' % sStr1}")
                dma_i(vU[u] + kb, (sU0, sU1)[u], kb * 1024, ("st", c), cfg["aux_w"])
            for g in range(4): ops.append(lambda g=g: x(g))
            for g in range(4): ops.append(lambda g=g: w(g >> 1, g & 1))
        else:
            st = c - 8
            def wb(g):
                if g == 0:
                    a(f"s_add_u32 s{sKC}, s{sw4}, {4*st}"); a(f"s_add_u32 s{sKC}, s{sKC}, s{sROT}"); a(f"s_and_b32 s{sKC}, s{sKC}, 7")
                    a(f"s_add_u32 m0, s{sLdsB}, {st*16384}"); a(f"s_mul_i32 s{sO}, s{sKC}, {64*2752}")
                if g == 4:
                    a(f"s_add_u32 m0, s{sLdsB}, {st*16384 + 4096}"); a(f"s_add_u32 s{sO}, s{sO}, {32*2752}")
                dma_i(vWB + (g & 3), sUB, (g & 3) * 1024, ("st", c), cfg["aux_w"])
            for g in range(8): ops.append(lambda g=g: wb(g))
        return ops
    stamp(a, cfg, 1)
    if cfg.get("prio", True): a("s_setprio 1")
    for o in dma_ops(0): o()
    srd(a, sWS, pWS, 0x10000000)
    srd(a, sUB, pW1, 1409024)
    a(f"s_cmp_lt_u32 s{sTB}, 43"); a(f"s_cselect_b32 s{sUB+2}, s{sUB+2}, 0")
    a(f"s_lshl_b32 s{sTmp}, s{sTB}, 6"); a(f"v_mul_u32_u24 v6, 2752, v5"); a(f"v_add3_u32 v{vWB}, v6, v7, s{sTmp}")
    for g in range(1, 4): a(f"v_add_u32 v{vWB+g}, {g*(8*2752-1024)}, v{vWB}")
    a(f"s_lshr_b32 s{sLdsB}, s{sw4}, 1"); a(f"s_lshl_b32 s{sLdsB}, s{sLdsB}, 16"); a(f"s_and_b32 s{sTmp}, s{sw4}, 1"); a(f"s_lshl_b32 s{sTmp}, s{sTmp}, 13"); a(f"s_add_u32 s{sLdsB}, s{sLdsB}, s{sTmp}")
    a("v_mov_b32 v6, 0"); a("v_lshlrev_b32 v7, 2, v0"); a("v_and_b32 v7, 31, v7"); a(f"v_add_u32 v7, {L_CNT}, v7"); a.lds("ds_write_b32 v7, v6", "z")
    read_addrs(a, vXA, vWX, 0, T)
    for i in range(8): a(f"v_add_u32 v{vWA+i}, {L_W}, v{vWX+i}")
    for q in range(4): a(f"v_mov_b32 v{vSum+q}, 0")
    selector(a, vSel)
    a(f"v_mov_b32 v12, {L_CNT}"); a("v_mov_b32 v13, 1")
    for o in dma_ops(1): o()
    a.wait(vm=("st", 0), lg="all"); a("s_barrier")
    stamp(a, cfg, 2)
    for c in range(8):
        for i in range(4):
            a.lds(f"ds_read_b128 {vr(XR+16*c+4*i,4)}, v{vXA+i} offset:{(c&3)*16384}", ("x", c, i))
        ops = dma_ops(c + 2)
        fr = [n for n in range(4*c - 1, 4*c + 3) if n >= 0]
        ops[0]()
        k = 1; tot = 4 * len(fr)
        for ii, n in enumerate(fr):
            for q in range(4):
                while k < 8 and (k - 1) * tot <= (4*ii + q) * 7: ops[k](); k += 1
                if q == 0: a.wait(lg=("x", n >> 2, n & 3))
                for o in stat_ops(XR + 4*n + q, vUn + 2*(q & 1), vSum): a(o)
        while k < 8: ops[k](); k += 1
        if c == int(cfg.get("pf_c", 7)) and cfg.get("l2pf", "early") == "early":
            srd(a, R6, pWO, 524288); l2_prefetch(a, cfg, 2, R6)
        a.wait(lg=("x", c, 3))
        if c == 7:
            stat_publish(a, vSum, 1, 6)
            a("v_and_b32 v5, 31, v0"); a("v_lshlrev_b32 v5, 2, v5")
            a.wait(vm=("st", 8), lg="all"); a("s_barrier")
            stamp(a, cfg, 5)
        else:
            a.wait(vm=("st", c + 1)); a("s_barrier")
            if c in (0, 3): stamp(a, cfg, 3 + c // 3)
    def reads(n):
        c, i = n >> 2, n & 3; b = n % NB
        st, q = c >> 2, c & 3
        base = (vWX if q < 2 else vWA); so = st * 16384 + (q & 1) * 8192
        return [f"ds_read_b64_tr_b16 {vr(WF+8*b+4*t+2*sec,2)}, v{base+2*i+t} offset:{so + sec*512}" for t in range(2) for sec in range(2)]
    for n in range(3):
        for r in reads(n): a.lds(r, ("f", n))
    stat_read(a, vSum, 1, 6)
    vBias, vNo, vM = 2, 8, 11
    bias_load(a, vBias, sTB, 4)
    nonce_issue(a, vNo)
    if cfg.get("prio", True): a("s_setprio 0")
    vMean, vRstd, vS, vInv, vA1, vB1 = T, T + 1, T + 2, 14, 88, 90
    fill = Asm(); stat_final(fill, vSum, T); mlp_scale(fill, vRstd, vS, vInv, vA1, vB1); x_aug(fill, XA, vMean, vInv, 80, 81, 82, 83, vM)
    fill = list(fill.lines)
    fill2 = Asm(); p2w_setup(fill2); fill2 = list(fill2.lines)
    WON = int(cfg.get("wo_n", 2))
    for n in range(32):
        c, i = n >> 2, n & 3; b = n % NB
        if n == int(cfg.get("prio_n", 12)) and cfg.get("prio", True): a("s_setprio 1")
        if n == int(cfg.get("prio_n2", 31)) and cfg.get("prio", True): a(f"s_setprio {cfg.get('prioB1', 3)}")
        if n == 8:
            a.wait(vm=("st", 9)); lds_count(a, 12, 13, C_ST9)
        if n == 13: lds_spin(a, 12, 7, C_ST9, 4)
        a.wait(lg=("f", n))
        nxt = reads(n + 3) if n < 29 else []
        for t in range(2):
            acc = vr(ACC + 16*t, 16)
            a(f"v_mfma_f32_32x32x16_bf16 {acc}, {vr(WF+8*b+4*t,4)}, {vr(XR+4*n,4)}, {'0' if n == 0 else acc}")
            for r in nxt[2*t:2*t+2]: a.lds(r, ("f", n + 3))
            if i == 0: a(f"v_mfma_f32_16x16x32_bf16 {vr(vCS+4*t,4)}, {vr(vSel,4)}, {vr(WF+8*b+4*t,4)}, {'0' if n == 0 else vr(vCS+4*t,4)}")
            if n >= 14:
                for l in fill[:2]: a(l)
                fill = fill[2:]
            if n == 1 and t == 1:
                for l in fill2: a(l)
                fill2 = []
            if cfg.get('wo_who', 'A8') == 'B' and WON <= n < WON + 8: wo_op(a, cfg, 2*(n - WON) + t)
        if n == int(cfg.get("xb_n", 10)): xb_load(a, 136)
        if n == 29:
            cs_publish(a, vCS, 2, 4); lds_count(a, 12, 13, C_CS)
            a(f"v_add_u32 v5, {L_CS}, v5")
        if n == 31: lds_count(a, 12, 13, C_RING)
    assert not fill and not fill2
    stamp(a, cfg, 6)
    lds_spin(a, 12, 7, C_CS, 4)
    cs_read(a, vCS, 2, 4, 5)
    a.wait(lg="all", vm="bias")
    cs_sum(a, vCS, 2)
    WA = 108
    for t in range(2):
        w_aug(a, WA + 4*t, vCS + 4*t, vBias + t, 80, 81, 82, vM)
        acc = vr(ACC + 16*t, 16)
        a(f"v_mfma_f32_32x32x16_bf16 {acc}, {vr(WA+4*t,4)}, {vr(XA,4)}, {acc}")
    nonce_get(a, vNo)
    a("v_lshlrev_b32 v2, 4, v0")
    a(f"s_lshl_b32 s{sKC}, s{sRB}, 2"); a(f"s_add_u32 s{sKC}, s{sKC}, s{sw4}")
    PK = 64
    stamp(a, cfg, 7)
    WG0 = int(cfg.get("w2_gelu", 7))
    if WG0: lds_spin(a, 12, 7, C_RING, 4)
    pre = [(n, kb) for n in range(WG0) for kb in range(2)]
    for t in range(2):
        g = Asm(); (gelu_pk if cfg.get("geluB", "pk") == "pk" else gelu_sc)(g, ACC + 16*t, PK + 8*t, 80, vA1, vB1, vInv)
        mine = list(pre) if t == 0 else []
        step = max(1, len(g.lines) // max(1, len(mine)))
        for k, l in enumerate(g.lines):
            if k % step == 0 and mine and k + step <= len(g.lines): w2_op(a, cfg, *mine.pop(0))
            a(l)
        for m in mine: w2_op(a, cfg, *m)
        h_store(a, PK + 8*t, sTB, t, 2, sKC)
    stamp(a, cfg, 8)

KF, VF, QF, CD, CF, SB, PB, OA = 16, 56, 136, 144, 160, 176, 208, 224
def attn_tiles(): return [(b, j) for b in range(2) for j in range(b, b + 9)]
def attn_epilogue(a, b):
    o = OA + 16 * b
    a(f"v_rcp_f32 v8, v{o+8}")
    for q in range(8): a(f"v_mul_f32 v{o+q}, v{o+q}, v8")
    for q in range(4): a(f"v_cvt_pk_bf16_f32 v{o+8+q}, v{o+2*q}, v{o+2*q+1}")
    a(f"s_add_u32 s{sO}, s{sTT}, {b}"); a(f"s_lshl_b32 s{sO}, s{sO}, 5"); a(f"s_add_u32 s{sO}, s{sO}, s{sHD}"); a(f"s_lshl_b32 s{sO}, s{sO}, 10"); a(f"s_add_u32 s{sO}, s{sO}, {WS_O}")
    a.vmem(f"buffer_store_dwordx4 {vr(o+8,4)}, v2, s[{sWS}:{sWS+3}], s{sO} offen sc1", "ost")
def s_mfma(a, n, tiles):
    b, j = tiles[n]
    c = vr(CF, 16) if j == b else (vr(CD, 16) if j == b + 8 else "0")
    a(f"v_mfma_f32_32x32x16_bf16 {vr(SB+16*(n&1),16)}, {vr(KF+4*j,4)}, {vr(QF+4*b,4)}, {c}")
def pv_mfma(a, n, s, tiles):
    b, j = tiles[n]; o = vr(OA + 16 * b, 16)
    a(f"v_mfma_f32_32x32x16_bf16 {o}, {vr(VF+8*j+4*s,4)}, {vr(PB+8*(n&1)+4*s,4)}, {'0' if (j == b and s == 0) else o}")
def bound_check(a, cfg):
    a.wait(vm=("k", 9))
    a("v_mov_b32 v10, 0"); a("v_mov_b32 v11, 0")
    for j in range(12):
        base = (KF + 4*j) if j < 10 else (QF + 4*(j-10))
        t = 12 + (j & 1)
        a(f"v_dot2_f32_bf16 v{t}, v{base}, v{base}, 0")
        for q in range(1, 4): a(f"v_dot2_f32_bf16 v{t}, v{base+q}, v{base+q}, v{t}")
        if j > 0:
            pj = j - 1; d = 10 if pj < 10 else 11
            a(f"v_max_f32 v{d}, v{d}, v{12+(pj&1)}")
    a("v_max_f32 v11, v11, v13")
    wave_max32(a, 10); wave_max32(a, 11)
    a(f"v_readlane_b32 s{sA}, v10, 31"); a(f"v_readlane_b32 s{sB}, v10, 63"); a(f"v_readlane_b32 s{sTmp}, v11, 31"); a(f"v_readlane_b32 s{sTmp2}, v11, 63")
    a(f"v_mov_b32 v10, s{sA}"); a(f"v_mov_b32 v11, s{sTmp}"); a(f"v_add_f32 v10, s{sB}, v10"); a(f"v_add_f32 v11, s{sTmp2}, v11")
    a("v_mul_f32 v10, v10, v11")
    a(f"v_cmp_nge_f32 vcc, {f32(cfg.get('bound2', BOUND2))}, v10")
    a("s_nop 4"); a("s_cmp_lg_u64 vcc, 0"); a("s_cbranch_scc1 L_attn_slow")

def attn_fast(a, cfg):
    tiles = attn_tiles()
    a.wait(vm=("k", 1))
    s_mfma(a, 0, tiles)
    for n in range(18):
        b, j = tiles[n]
        S = SB + 16 * (n & 1); P = PB + 8 * (n & 1)
        ex = lambda q: a(f"v_exp_f32 v{S+q}, v{S+q}")
        cv = lambda q: a(f"v_cvt_pk_bf16_f32 v{P+q}, v{S+2*q}, v{S+2*q+1}")
        if n == 0: s_mfma(a, 1, tiles)
        ex(0); ex(1)
        if n > 0: pv_mfma(a, n - 1, 1, tiles)
        for q in range(2, 5): ex(q)
        ld = cfg["_sched"].get(n, [])
        for o in ld[:1]: o(a)
        for q in range(5, 8): ex(q)
        cv(0)
        if 0 < n < 17: a.wait(vm=("k", tiles[n+1][1])); s_mfma(a, n + 1, tiles)
        cv(1); cv(2); cv(3)
        for q in range(8, 12): ex(q)
        a.wait(vm=("v", j))
        pv_mfma(a, n, 0, tiles)
        for q in range(12, 14): ex(q)
        for o in ld[1:]: o(a)
        for q in range(14, 16): ex(q)
        for q in range(4, 8): cv(q)
        if n == 9: bound_check(a, cfg); attn_epilogue(a, 0)
    pv_mfma(a, 17, 1, tiles)
    attn_epilogue(a, 1)
def attn_slow(a, cfg):
    tiles = attn_tiles()
    for n in range(10, 18):
        for o in cfg["_sched"].get(n, []): o(a)
    a("s_waitcnt vmcnt(0)"); a("s_nop 15"); a.vm = []
    for b in range(2):
        a("v_mov_b32 v10, 0xff800000")
        for n, (bb, j) in enumerate(tiles):
            if bb != b: continue
            skip = a.label("skip")
            a(f"s_add_i32 s{sTmp}, s{sTT}, {j-8}"); a(f"s_cmp_lt_i32 s{sTmp}, 0"); a(f"s_cbranch_scc1 {skip}")
            s_mfma(a, n, tiles)
            S = SB + 16 * (n & 1)
            for q in range(8): a(f"v_max3_f32 v10, v10, v{S+2*q}, v{S+2*q+1}")
            a(f"{skip}:")
            a("s_nop 7"); a("s_nop 7")
        a("v_mov_b32 v11, v10"); a("v_permlane32_swap_b32 v10, v11"); a("v_max_f32 v10, v10, v11")
        for n, (bb, j) in enumerate(tiles):
            if bb != b: continue
            s_mfma(a, n, tiles)
            S = SB + 16 * (n & 1); P = PB + 8 * (n & 1)
            for q in range(16):
                a(f"v_sub_f32 v{S+q}, v{S+q}, v10"); a(f"v_min_f32 v{S+q}, 0, v{S+q}"); a(f"v_exp_f32 v{S+q}, v{S+q}")
            for q in range(8): a(f"v_cvt_pk_bf16_f32 v{P+q}, v{S+2*q}, v{S+2*q+1}")
            pv_mfma(a, n, 0, tiles); pv_mfma(a, n, 1, tiles)
        attn_epilogue(a, b)
def wave_max32(a, v):
    for m in ("quad_perm:[1,0,3,2] row_mask:0xf bank_mask:0xf", "quad_perm:[2,3,0,1] row_mask:0xf bank_mask:0xf",
              "row_half_mirror row_mask:0xf bank_mask:0xf", "row_mirror row_mask:0xf bank_mask:0xf", "row_bcast:15 row_mask:0xa bank_mask:0xf"):
        a(f"v_max_f32_dpp v{v}, v{v}, v{v} {m}")
def w_src_addr(a, dst):
    a("v_lshrrev_b32 v5, 3, v0")
    a("v_bfe_u32 v6, v0, 4, 1"); a("v_lshlrev_b32 v6, 2, v6"); a("v_and_b32 v7, 7, v0"); a("v_xor_b32 v7, v7, v6"); a("v_lshlrev_b32 v7, 4, v7")
    a(f"v_lshl_add_u32 v{dst}, v5, 10, v7")
    a(f"s_lshl_b32 s{sTmp}, s{sCB2}, 7"); a(f"v_add_u32 v{dst}, s{sTmp}, v{dst}")
def tr_addr2(a, dst, base_s):
    a(f"v_lshrrev_b32 v5, 5, v0"); a(f"v_lshlrev_b32 v{dst}, 9, v5")
    a(f"v_bfe_u32 v5, v0, 2, 2"); a(f"v_lshl_add_u32 v{dst}, v5, 7, v{dst}")
    a(f"v_bfe_u32 v5, v0, 3, 1"); a(f"v_lshl_add_u32 v{dst}, v5, 6, v{dst}")
    a(f"v_bfe_u32 v5, v0, 4, 1"); a(f"v_lshl_add_u32 v{dst}, v5, 5, v{dst}")
    a(f"v_and_b32 v5, 3, v0"); a(f"v_lshl_add_u32 v{dst}, v5, 3, v{dst}")
    a(f"v_add_u32 v{dst}, {base_s}, v{dst}"); a(f"v_xor_b32 v{dst+1}, 64, v{dst}")

def attn_setup(a, cfg):
    sQ, sK, sV, sWO = R0, R2, R3, R4
    a(f"s_lshl_b32 s{sHD}, s{sCB2}, 2"); a(f"s_add_u32 s{sHD}, s{sHD}, s{sw4}")
    a(f"s_lshl_b32 s{sTmp}, s{sHD}, 16")
    a(f"s_add_u32 s{sTmp2}, s{sTmp}, {WS_QK}"); sub_srd(a, sQ, f"s{sTmp2}", 65536)
    a(f"s_add_u32 s{sTmp2}, s{sTmp}, {WS_QK + 32*65536}"); sub_srd(a, sK, f"s{sTmp2}", 65536)
    a(f"s_add_u32 s{sTmp2}, s{sTmp}, {WS_V}"); sub_srd(a, sV, f"s{sTmp2}", 65536)
    a("v_lshlrev_b32 v2, 4, v0"); a(f"s_lshl_b32 s{sM}, s{sTT}, 10")
    a("v_min_u32 v4, 11, v0"); a("v_cmp_gt_u32 vcc, 10, v4")
    a("v_add_u32 v5, -8, v4"); a("v_add_u32 v6, -10, v4"); a("v_cndmask_b32 v5, v6, v5, vcc")
    a(f"v_add_u32 v5, s{sTT}, v5"); a("v_max_i32 v5, 0, v5")
    a("v_cndmask_b32_e64 v6, 8, 0, vcc"); a(f"v_add_u32 v6, s{sCB2}, v6")
    a("v_lshrrev_b32 v7, 2, v5"); a("v_lshl_add_u32 v6, v7, 4, v6"); a("v_mul_u32_u24 v6, 384, v6")
    a("v_and_b32 v5, 3, v5"); a("v_lshl_add_u32 v6, v5, 2, v6"); a(f"v_add_u32 v12, {WS_F1}, v6")
    a("v_and_b32 v3, 27, v0"); a("v_cmp_eq_u32 vcc, 16, v3")
    a("v_mov_b32 v4, 0x3f803f80"); a("v_cndmask_b32 v4, 0, v4, vcc")
    a("v_lshrrev_b32 v3, 5, v0"); a("v_lshlrev_b32 v3, 8, v3"); a("v_and_b32 v5, 15, v0"); a("v_lshl_add_u32 v3, v5, 4, v3")
    for j in range(10):
        if j < 8:
            if j % 2 == 0:
                a(f"s_add_i32 s{sTmp}, s{sTT}, {j-8}"); a(f"s_cmp_ge_i32 s{sTmp}, 0"); a(f"s_cselect_b32 s{sTmp}, -1, 0")
                a(f"v_and_b32 v6, s{sTmp}, v4"); a("v_mov_b32 v7, v6")
        elif j == 8: a("v_mov_b32 v6, v4"); a("v_mov_b32 v7, v4")
        for q in range(4): a(f"v_mov_b64 {vr(VF+8*j+2*q,2)}, v[6:7]")
    a("v_and_b32 v5, 31, v0"); a("v_lshrrev_b32 v6, 5, v0"); a("v_lshlrev_b32 v6, 2, v6"); a("v_sub_u32 v5, v5, v6")
    a(f"v_mov_b32 v6, {f32(NEG)}")
    for r in range(16):
        a(f"v_cmp_le_i32 vcc, {8*(r>>2) + (r&3)}, v5")
        a(f"v_cndmask_b32_e64 v{CD+r}, v6, 0, vcc"); a(f"v_cndmask_b32_e64 v{CF+r}, 0, v6, vcc")

def l2_prefetch(a, cfg, v, RW=R4):
    nsh = int(cfg["map2"].split("x")[0]); per = 1888 // nsh; nins = -(-per // 256); pw = -(-per // (4 * nins))
    srd(a, R5, pW2, 1409024)
    a(f"s_and_b32 s{sTmp}, s{sRB2}, {nsh-1}"); a(f"s_mul_i32 s{sTmp}, s{sTmp}, {per}"); a(f"s_mul_i32 s{sTmp2}, s{sw4}, {pw}"); a(f"s_add_u32 s{sTmp}, s{sTmp}, s{sTmp2}")
    a(f"v_min_u32 v{v}, {pw-1}, v0"); a(f"v_add_u32 v{v}, s{sTmp}, v{v}"); a(f"v_lshlrev_b32 v{v}, 10, v{v}")
    a(f"s_lshl_b32 s{sTmp}, s{sCB2}, 7"); a(f"v_add_u32 v{v}, s{sTmp}, v{v}")
    for i in range(nins):
        if i: a(f"v_add_u32 v{v}, {4*pw*1024}, v{v}")
        a(f"v_add_u32 v{v+1}, {(-512*1024) & 0xffffffff}, v{v}")
        a.vmem(f"buffer_load_dword v1, v{v}, s[{RW}:{RW+3}], 0 offen", "pf")
        a.vmem(f"buffer_load_dword v1, v{v+1}, s[{R5}:{R5+3}], 0 offen", "pf")

def p2_A(a, cfg):
    ax = "sc1"
    sQ, sK, sV, sWO = R0, R2, R3, R4
    a.vm = []; a.lg = []
    stamp(a, cfg, 0)
    a(f"v_mov_b32 v14, {L_CNT}"); a("v_mov_b32 v15, 1")
    stamp(a, cfg, 1)
    flag_poll(a, 12, 13, 12)
    if cfg.get('wo_who', 'A8') == 'A8': lds_count(a, 14, 15, C_WO)
    if "prioA2" in cfg: a(f"s_setprio {cfg['prioA2']}")
    stamp(a, cfg, 2)
    for b in range(2):
        a.vmem(f"buffer_load_dwordx4 {vr(QF+4*b,4)}, v2, s[{sQ}:{sQ+3}], s{sM} offen offset:{b*1024} {ax}", "q")
    def kload(x, j):
        x(f"s_add_u32 s{sO}, s{sM}, {(j-8)*1024 & 0xffffffff}")
        x.vmem(f"buffer_load_dwordx4 {vr(KF+4*j,4)}, v2, s[{sK}:{sK+3}], s{sO} offen {ax}", ("k", j))
    def vload(x, j):
        x("s_mov_b32 exec_lo, 0xffff"); x("s_mov_b32 exec_hi, 0xffff")
        x(f"s_add_u32 s{sO}, s{sM}, {(j-8)*1024 & 0xffffffff}")
        for s in range(2):
            x.vmem(f"buffer_load_dwordx4 {vr(VF+8*j+4*s,4)}, v3, s[{sV}:{sV+3}], s{sO} offen offset:{s*512} {ax}", ("v", j))
        x("s_mov_b64 exec, -1")
    def wo_dma(x, g):
        if g % 4 == 0:
            x(f"s_add_u32 m0, s{sKW}, {WO_BASE[0] + g*1024}"); x(f"s_add_u32 s{sL}, s{sKHh}, {g*8192}")
        x.vmem(f"buffer_load_dwordx4 v{4+(g%4)}, s[{sWO}:{sWO+3}], s{sL} offen offset:{(g%4)*1024} {cfg['aux_w2']} lds", "wo")
    LA = int(cfg.get("attn_la", 10))
    kload(a, 0)
    for j in range(LA):
        if j < 9: kload(a, j + 1)
        vload(a, j)
    a(f"v_mov_b32 v14, {L_CNT}"); a("v_mov_b32 v15, 1")
    if cfg.get("hold") and LA >= 10: lds_count(a, 14, 15, C_HOLD)
    a(f"s_lshr_b32 s{sTmp}, s{sw4}, 1"); a(f"s_lshl_b32 s{sTmp}, s{sTmp}, 16"); a(f"s_and_b32 s{sTmp2}, s{sw4}, 1"); a(f"s_lshl_b32 s{sTmp2}, s{sTmp2}, 14")
    a(f"s_add_u32 s{sKW}, s{sTmp}, s{sTmp2}"); a(f"s_lshl_b32 s{sKHh}, s{sw4}, 17")
    sched = {}
    for n in range(18):
        j = n + LA
        if j <= 9: sched[n] = ([lambda x, j=j: kload(x, j + 1)] if j < 9 else []) + [lambda x, j=j: vload(x, j)]
        if j == 9 and cfg.get("hold"): sched[n].append(lambda x: lds_count(x, 14, 15, C_HOLD))
    n0 = int(cfg.get("wo_n0", 10 - LA))
    if cfg.get("wo_by", "B") == "A":
        for g in range(16): sched.setdefault(min(n0 + g // 2, 17), []).append(lambda x, g=g: wo_dma(x, g))
    cfg["_sched"] = sched
    stamp(a, cfg, 3)
    saved = list(a.vm)
    stamp(a, cfg, 4)
    attn_fast(a, cfg)
    a("L_attn_done:")
    stamp(a, cfg, 5)
    a.vm = ["x"]
    a(f"s_lshl_b32 s{sO}, s{sRB2}, 5"); a(f"s_add_u32 s{sO}, s{sO}, s{sHD}"); a(f"s_lshl_b32 s{sO}, s{sO}, 7"); a(f"s_add_u32 s{sO}, s{sO}, {WS_F2}")
    publish(a, f"s{sO}", 4)
    a(f"v_mov_b32 v6, {L_CNT}"); a("v_mov_b32 v5, 1")
    if cfg.get("wo_by", "B") == "A": lds_count(a, 6, 5, C_WO)
    stamp(a, cfg, 6)
    OF, ACC, XR, WF = 16, 96, 128, 144
    a(f"s_lshr_b32 s{sKH}, s{sw4}, 1"); a(f"s_and_b32 s{sT1}, s{sw4}, 1"); a(f"s_add_u32 s{sT1}, s{sT1}, s{sTT}")
    a(f"s_lshl_b32 s{sTmp}, s{sCB2}, 7"); a(f"s_lshl_b32 s{sTmp2}, s{sKH}, 6"); a(f"s_add_u32 s{sTmp}, s{sTmp}, s{sTmp2}")
    a("v_lshrrev_b32 v7, 5, v0"); a("v_lshlrev_b32 v8, 4, v7"); a(f"v_add_u32 v8, s{sTmp}, v8")
    a("v_and_b32 v9, 31, v0"); a(f"s_lshl_b32 s{sTmp2}, s{sT1}, 5"); a(f"v_add_u32 v9, s{sTmp2}, v9")
    a("v_lshl_add_u32 v11, v9, 10, v8")
    a(f"s_lshl_b32 s{sO}, s{sRB2}, 5"); a(f"s_lshl_b32 s{sTmp}, s{sKH}, 4"); a(f"s_add_u32 s{sO}, s{sO}, s{sTmp}"); a(f"s_lshl_b32 s{sO}, s{sO}, 7"); a(f"s_add_u32 s{sO}, s{sO}, {WS_F2}")
    a("v_and_b32 v12, 15, v0"); a("v_lshlrev_b32 v12, 7, v12"); a(f"v_add_u32 v12, s{sO}, v12")
    a(f"s_lshl_b32 s{sTmp}, s{sKH}, 16"); a(f"s_add_u32 s{sTmp}, s{sTmp}, {WO_BASE[0]}")
    tr_addr2(a, 14, f"s{sTmp}")
    a(f"s_lshl_b32 s{sTmp}, s{sKH}, 6"); a(f"v_xor_b32 v14, s{sTmp}, v14"); a(f"v_xor_b32 v15, s{sTmp}, v15")
    lds_spin(a, 6, 7, C_POLL, int(cfg.get("poll_cnt", 4)), sleep=2)
    stamp(a, cfg, 7)
    flag_poll(a, 12, 13, 16)
    a(f"s_lshl_b32 s{sO}, s{sT1}, 5"); a(f"s_lshl_b32 s{sTmp}, s{sKH}, 4"); a(f"s_add_u32 s{sO}, s{sO}, s{sTmp}"); a(f"s_lshl_b32 s{sO}, s{sO}, 10"); a(f"s_add_u32 s{sO}, s{sO}, {WS_O}")
    for n in range(16):
        if n and n % 4 == 0: a(f"s_add_u32 s{sO}, s{sO}, 4096")
        a.vmem(f"buffer_load_dwordx4 {vr(OF+4*n,4)}, v2, s[{sWS}:{sWS+3}], s{sO} offen offset:{(n%4)*1024} sc1", ("o", n))
    stamp(a, cfg, 8)
    lds_spin(a, 6, 7, C_WO, 4)
    def reads(n):
        return [f"ds_read_b64_tr_b16 {vr(WF+8*(n%4)+4*t+2*sec,2)}, v{14+t} offset:{n*2048 + sec*1024}" for t in range(2) for sec in range(2)]
    for n in range(3):
        for r in reads(n): a.lds(r, ("f", n))
    for n in range(16):
        nxt = reads(n + 3) if n < 13 else []
        a.wait(vm=("o", n), lg=("f", n))
        for t in range(2):
            acc = vr(ACC + 16*t, 16)
            a(f"v_mfma_f32_32x32x16_bf16 {acc}, {vr(WF+8*(n%4)+4*t,4)}, {vr(OF+4*n,4)}, {'0' if n == 0 else acc}")
            for r in nxt[2*t:2*t+2]: a.lds(r, ("f", n + 3))
    stamp(a, cfg, 9)
    a(f"s_lshl_b32 s{sTmp}, s{sw4}, 12"); a(f"s_add_u32 s{sTmp}, s{sTmp}, {L_EX}"); a(f"v_add_u32 v12, s{sTmp}, v2")
    a(f"s_xor_b32 s{sTmp}, s{sw4}, 2"); a(f"s_lshl_b32 s{sTmp}, s{sTmp}, 12"); a(f"s_add_u32 s{sTmp}, s{sTmp}, {L_EX}"); a(f"v_add_u32 v13, s{sTmp}, v2")
    for q in range(4): a.lds(f"ds_write_b128 v12, {vr(ACC+16+4*q,4)} offset:{q*1024}", "ex")
    a(f"s_and_b32 s{sTmp}, s{sw4}, 1"); a(f"s_lshl_b32 s{sTmp}, s{sTmp}, 1"); a(f"s_add_u32 s{sTmp}, s{sTmp}, s{sKH}"); a(f"s_lshl_b32 s{sTmp}, s{sTmp}, 12")
    a(f"v_add_u32 v12, s{sTmp}, v2"); a("v_add_u32 v10, 0x10000, v12")
    a.wait(lg="all"); a("s_barrier")
    PT = 16
    for p in range(5):
        for q in range(4):
            if p < 4: a.lds(f"ds_read_b128 {vr(PT+16*p+4*q,4)}, v{12 if p < 2 else 10} offset:{(p&1)*16384 + q*1024}", ("p", p))
            else: a.lds(f"ds_read_b128 {vr(PT+16*p+4*q,4)}, v13 offset:{q*1024}", ("p", p))
    for p in range(5):
        a.wait(lg=("p", p))
        for q in range(8): a(f"v_pk_add_f32 {vr(ACC+2*q,2)}, {vr(ACC+2*q,2)}, {vr(PT+16*p+2*q,2)}")
    for q in range(8): a(f"v_cvt_pk_bf16_f32 v{XR+q}, v{ACC+2*q}, v{ACC+2*q+1}")
    srd(a, R0, pOUT, 0x200000)
    for jp in range(2):
        a(f"v_permlane32_swap_b32 v{XR+4*jp}, v{XR+4*jp+2}"); a(f"v_permlane32_swap_b32 v{XR+4*jp+1}, v{XR+4*jp+3}")
        a.vmem(f"buffer_store_dwordx4 {vr(XR+4*jp,4)}, v11, s[{R0}:{R0+3}], 0 offen offset:{jp*32} {cfg.get('aux_out', '')}", "out")
    return saved

def p2_B(a, cfg):
    ACC, HR, WF, XR = 16, 176, 160, 136
    D = 8
    sH0, sH1 = R5, R3
    sL = sL2
    a(f"s_mul_i32 s{sKHh}, s{sw4}, {22*1024}")
    def w_ops(n): return [lambda: w2_op(a, cfg, n, 0), lambda: w2_op(a, cfg, n, 1)]
    def h_ops(n):
        def h(t):
            if t == 0: a(f"s_add_u32 s{sM}, s{sKHh}, {n*1024}")
            a.vmem(f"buffer_load_dwordx4 {vr(HR+8*(n%D)+4*t,4)}, v2, s[{(sH0,sH1)[t]}:{(sH0,sH1)[t]+3}], s{sM} offen sc1", ("h", n))
        return [lambda: h(0), lambda: h(1)]
    WD = int(cfg.get("w2_pre", 7)); W0 = int(cfg.get("w2_prepub", WD))
    WG0 = int(cfg.get("w2_gelu", 7))
    if not WG0: lds_spin(a, 12, 7, C_RING, 4)
    for n in range(WG0, W0):
        for o in w_ops(n): o()
    a(f"s_mul_i32 s{sTmp}, s{sT1}, {86*1024}"); a(f"s_add_u32 s{sTmp}, s{sTmp}, {WS_H}")
    sub_srd(a, sH0, f"s{sTmp}", 86 * 1024)
    a(f"s_xor_b32 s{sTmp2}, s{sT1}, 1"); a(f"s_mul_i32 s{sTmp}, s{sTmp2}, {86*1024}"); a(f"s_add_u32 s{sTmp}, s{sTmp}, {WS_H}")
    sub_srd(a, sH1, f"s{sTmp}", 86 * 1024)
    tr_addr2(a, 10, f"s{sL}")
    a(f"v_xor_b32 v10, s{sKH}, v10"); a(f"v_xor_b32 v11, s{sKH}, v11")
    a("v_min_u32 v4, 11, v0"); a("v_lshrrev_b32 v5, 1, v4"); a(f"s_mul_i32 s{sTmp}, s{sw4}, 11"); a(f"s_lshr_b32 s{sTmp}, s{sTmp}, 1"); a(f"v_add_u32 v5, s{sTmp}, v5")
    a("v_cmp_gt_u32 vcc, 8, v5"); a("v_xor_b32 v6, 8, v5"); a("v_add_u32 v7, -8, v5"); a("v_cndmask_b32 v5, v7, v6, vcc")
    a("v_mov_b32 v6, 128"); a("v_mov_b32 v7, 256"); a("v_cndmask_b32 v6, v6, v7, vcc")
    a("v_and_b32 v4, 1, v4"); a(f"v_add_u32 v4, s{sTT}, v4"); a("v_lshrrev_b32 v7, 2, v4"); a("v_lshl_add_u32 v5, v7, 4, v5"); a("v_mul_u32_u24 v5, 384, v5")
    a("v_and_b32 v4, 3, v4"); a("v_lshl_add_u32 v5, v4, 2, v5"); a("v_add_u32 v5, v5, v6"); a(f"v_add_u32 v3, {WS_F1}, v5")
    a.wait(vm="xb")
    for j in range(4):
        for d in range(2):
            x, bb, o = XR + 2*j + d, XR + 8 + 2*j + d, ACC + 4*j + 2*d
            a(f"v_lshlrev_b32 v14, 16, v{x}"); a(f"v_lshlrev_b32 v15, 16, v{bb}"); a(f"v_add_f32 v{o}, v14, v15")
            a(f"v_and_b32 v14, 0xffff0000, v{x}"); a(f"v_and_b32 v15, 0xffff0000, v{bb}"); a(f"v_add_f32 v{o+1}, v14, v15")
    f1_addr(a, 1); publish(a, f"s{sO}", 6, "out")
    if cfg.get('wo_who', 'A8') == 'B': lds_count(a, 12, 13, C_WO)
    stamp(a, cfg, 9)
    stamp_dump(a, cfg, 0, 96)
    stamp(a, cfg, 0)
    WP = int(cfg.get("w2_prefill", WD))
    for n in range(W0, WP):
        for o in w_ops(n): o()
    if cfg.get("hold"): lds_spin(a, 12, 7, C_HOLD, 4, sleep=1)
    stamp(a, cfg, 1)
    flag_poll(a, 3, 4, 12)
    stamp(a, cfg, 2)
    if cfg.get("prio", True): a(f"s_setprio {cfg.get('prioB2', 0)}")
    DI = int(cfg.get("p2_depth", 5))
    for n in range(max(DI, WD)):
        if n < DI:
            for o in h_ops(n): o()
        if WP <= n < WD:
            for o in w_ops(n): o()
    def reads(n):
        return [f"ds_read_b64_tr_b16 {vr(WF+8*(n&1)+4*t+2*sec,2)}, v{10+t} offset:{(n%D)*2048 + sec*1024}" for t in range(2) for sec in range(2)]
    gwo = 0
    a.wait(vm=("w", 0))
    for r in reads(0): a.lds(r, ("f", 0))
    for n in range(22):
        ops = (h_ops(n + DI) if n + DI < 22 else [None, None]) + (w_ops(n + WD) if n + WD < 22 else [None, None])
        if cfg.get('wo_who') == 'S' and n + WD >= 22 and gwo < 16:
            g0 = gwo; gwo += 4
            ops[2] = lambda g0=g0: (wo_op(a, cfg, g0), wo_op(a, cfg, g0 + 1)); ops[3] = lambda g0=g0: (wo_op(a, cfg, g0 + 2), wo_op(a, cfg, g0 + 3))
        if cfg.get('wo_who') == 'S' and n == 21:
            a.wait(vm="wo"); lds_count(a, 12, 13, C_WO)
        if n == int(cfg.get('poll_n', 12)): lds_count(a, 12, 13, C_POLL)
        if n < 21:
            a.wait(vm=("w", n + 1))
            for r in reads(n + 1): a.lds(r, ("f", n + 1))
        a.wait(lg=("f", n), vm=("h", n))
        for tt in range(2):
            for ft in range(2):
                acc = vr(ACC + 16*(2*tt+ft), 16)
                a(f"v_mfma_f32_32x32x16_bf16 {acc}, {vr(WF+8*(n&1)+4*ft,4)}, {vr(HR+8*(n%D)+4*tt,4)}, {'0' if (n == 0 and tt+ft) else acc}")
                if ops[2*tt+ft]: ops[2*tt+ft]()
        if n in (0, 5, 10, 15, 21): stamp(a, cfg, 3 + (0, 5, 10, 15, 21).index(n))
    a(f"v_add_u32 v14, s{sL}, v2"); a(f"s_lshl_b32 s{sTmp}, s{sw4}, 12"); a(f"v_xor_b32 v14, s{sTmp}, v14")
    for t in range(4):
        if t: a(f"v_xor_b32 v15, {t*4096}, v14")
        for q in range(4): a.lds(f"ds_write_b128 v{15 if t else 14}, {vr(ACC+16*t+4*q,4)} offset:{q*1024}", "d")
    a.wait(lg="all"); stamp(a, cfg, 8); a("s_barrier")

def build(cfg):
    cfg = dict(cfg)
    a = Asm()
    a("s_cmp_ge_u32 s2, 256"); a("s_cbranch_scc1 L_end")
    if cfg.get("stamp"):
        for i in range(NSTAMP): a(f"s_mov_b32 s{STAMP0+2*i}, 0")
    stamp(a, cfg, 0, True)
    prologue(a, cfg)
    a(f"s_cmp_lt_u32 s{sW}, 4"); a("s_cbranch_scc1 L_A")
    B = Asm(); B.uid = 1000
    p1_B(B, cfg); p2_B(B, cfg)
    if cfg.get("stamp"): B("s_waitcnt vmcnt(0)"); stamp(B, cfg, 10, True); stamp_dump(B, cfg, 0x20000, 16)
    B("s_endpgm")
    X = Asm(); X.uid = 2000
    X("L_A:"); X(f"s_cmp_ge_u32 s{sCB}, 8"); X("s_cbranch_scc1 L_AY")
    p1_A(X, "X", cfg); stamp_dump(X, cfg, 0, 16); X("s_branch L_A2")
    Y = Asm(); Y.uid = 3000
    Y("L_AY:"); p1_A(Y, "Y", cfg); stamp_dump(Y, cfg, 0, 16)
    A2 = Asm(); A2.uid = 4000
    A2("L_A2:"); A2("s_nop 15"); saved = p2_A(A2, cfg)
    if cfg.get("stamp"): A2("s_waitcnt vmcnt(0)"); stamp(A2, cfg, 10, True); stamp_dump(A2, cfg, 0x20000, 16)
    A2("s_endpgm")
    S = Asm(); S.uid = 5000; S.vm = saved
    S("L_attn_slow:"); attn_slow(S, cfg); S("s_branch L_attn_done")
    E = Asm(); E("L_end:"); E("s_endpgm")
    body = a.text() + B.text() + X.text() + Y.text() + A2.text() + S.text() + E.text()
    name = KN + "_kernel"
    return file_text([(name, body, 256, 102, 0)], [(name, 256, 512, LDS_BYTES)])

if __name__ == "__main__":
    import sys
    cfg = dict(map1="8x4", map2="4x8", aux_x="", aux_w="", aux_w2="", prio=True)
    for kv in sys.argv[2:]:
        k, v = kv.split("=", 1)
        cfg[k] = {"True": True, "False": False}.get(v, v)
    if "bound2" in cfg: cfg["bound2"] = float(cfg["bound2"])
    open(sys.argv[1], "w").write(build(cfg))
```

```python
from asmlib import *
from layout import *

L_X = 0x0; L_W = 0x10000
L_CS = 0x20000; L_PS = 0x20c00; L_RSTD = 0x21c00; L_CNT = 0x21e00
L_EX = 0x22000
LDS_BYTES = 0x26000
C_CS, C_ST9, C_RING, C_WO, C_POLL, C_HOLD = 0, 4, 8, 12, 16, 20
WO_BASE = (0x8000, 0x18000)
SPIN_MAX = 400000
BOUND2 = 64.0 * 64.0
NEG = float("-inf")
WS_EPOCH = 0x70000
WS_F1 = 0x80000
WS_F2 = 0xA0000

pX, pQKV, pWO, pW1, pB1, pW2, pB2, pOUT, pDBG, pWS = 4, 6, 8, 12, 14, 16, 18, 20, 22, 24
R0, sWS, R2, R3, R4, R5, R6 = 28, 32, 36, 40, 44, 48, 52
sW, sw4, sRB, sCB, sROT, sN = 56, 57, 58, 59, 60, 61
sO, sKC, sTmp, sTmp2, sA, sB = 62, 63, 64, 65, 66, 67
sStr1, sCol0, sCol1, sTA, sTB, sLdsW, sLdsX, sLdsB = 68, 69, 70, 71, 72, 73, 74, 75
sRB2, sCB2, sTT = 76, 77, 78
sHD, sM, sKH, sT1, sKW, sKHh, sL = 68, 69, 70, 71, 72, 73, 74
STAMP0 = 80; NSTAMP = 11

def stamp(a, cfg, i, force=False):
    if cfg.get("stamp") == "light" and not force: return
    if cfg.get("stamp"):
        a(f"{'s_memtime' if cfg.get('stamp') == 'cyc' else 's_memrealtime'} s[{STAMP0+2*i}:{STAMP0+2*i+1}]")
def stamp_dump(a, cfg, base, v):
    if not cfg.get("stamp") or (cfg.get("stamp") == "light" and base == 0) or cfg.get("dbgspan"): return
    a("s_waitcnt lgkmcnt(0)"); a.lg = []
    a(f"s_lshl_b32 s{sA}, s2, 3"); a(f"s_add_u32 s{sA}, s{sA}, s{sW}"); a(f"s_lshl_b32 s{sA}, s{sA}, 6"); a(f"s_add_u32 s{sA}, s{sA}, {base}")
    for i in range(12): a(f"v_mov_b32 v{v+i}, {'s%d' % (STAMP0+2*i) if i < NSTAMP else 0}")
    a(f"v_mov_b32 v{v+12}, 0"); a("s_mov_b64 exec, 1")
    for q in range(3): a.vmem(f"buffer_store_dwordx4 {vr(v+4*q,4)}, v{v+12}, s[{sWS}:{sWS+3}], s{sA} offen offset:{16*q}", "stamp")
    a("s_mov_b64 exec, -1")
    for i in range(NSTAMP): a(f"s_mov_b32 s{STAMP0+2*i}, 0")

def srd(a, d, p, size):
    a(f"s_mov_b32 s{d}, s{p}"); a(f"s_mov_b32 s{d+1}, s{p+1}"); a(f"s_mov_b32 s{d+2}, {size}"); a(f"s_mov_b32 s{d+3}, 0x20000")
def sub_srd(a, d, off_s, size):
    a(f"s_add_u32 s{d}, s{pWS}, {off_s}"); a(f"s_addc_u32 s{d+1}, s{pWS+1}, 0"); a(f"s_mov_b32 s{d+2}, {size}"); a(f"s_mov_b32 s{d+3}, 0x20000")

def lds_spin(a, vaddr, vtmp, off, target, sleep=0):
    lp = a.label("spin"); lq = a.label("spinx")
    a(f"s_mov_b32 s{sA}, 0")
    a(f"{lp}:")
    a(f"ds_read_b32 v{vtmp}, v{vaddr} offset:{off}")
    a(f"s_add_u32 s{sA}, s{sA}, 1"); a(f"s_cmp_gt_u32 s{sA}, {SPIN_MAX}"); a(f"s_cbranch_scc1 {lq}")
    a("s_waitcnt lgkmcnt(0)"); a(f"v_readfirstlane_b32 s{sB}, v{vtmp}"); a(f"s_cmp_ge_u32 s{sB}, {target}"); a(f"s_cbranch_scc1 {lq}")
    if sleep: a(f"s_sleep {sleep}")
    a(f"s_branch {lp}")
    a(f"{lq}:")
    a("s_waitcnt lgkmcnt(0)"); a.lg = []
def lds_count(a, vaddr, vone, off):
    a("s_mov_b64 exec, 1"); a.lds(f"ds_add_u32 v{vaddr}, v{vone} offset:{off}", "cnt"); a("s_mov_b64 exec, -1")

def flag_poll(a, vaddr, vdat, nl, sleep=2):
    lp = a.label("poll"); lq = a.label("pollx")
    a(f"s_mov_b32 s{sA}, 0")
    a(f"{lp}:")
    a(f"buffer_load_dword v{vdat}, v{vaddr}, s[{sWS}:{sWS+3}], 0 offen sc1")
    a(f"s_add_u32 s{sA}, s{sA}, 1"); a(f"s_cmp_gt_u32 s{sA}, {SPIN_MAX}"); a(f"s_cbranch_scc1 {lq}")
    a("s_waitcnt vmcnt(0)")
    a(f"v_cmp_ne_u32 vcc, s{sN}, v{vdat}")
    a("s_nop 4"); a("s_cmp_eq_u64 vcc, 0"); a(f"s_cbranch_scc1 {lq}")
    a(f"s_sleep {sleep}"); a(f"s_branch {lp}")
    a(f"{lq}:")
    a("s_waitcnt vmcnt(0)"); a.vm = []

def nonce_issue(a, v):
    srd(a, R6, pDBG, 256)
    a(f"v_mov_b32 v{v+2}, 0")
    a.vmem(f"buffer_load_dwordx2 {vr(v,2)}, v{v+2}, s[{R6}:{R6+3}], 0 offen sc1", "nonce")
def nonce_get(a, v):
    a.wait(vm="nonce")
    lp = a.label("nonce"); lq = a.label("noncex")
    a(f"s_mov_b32 s{sA}, 0")
    a(f"{lp}:")
    a(f"v_readfirstlane_b32 s{sB}, v{v+1}"); a(f"v_readfirstlane_b32 s{sN}, v{v}")
    a(f"s_cmp_eq_u32 s{sB}, 1"); a(f"s_cbranch_scc1 {lq}")
    a(f"s_add_u32 s{sA}, s{sA}, 1"); a(f"s_cmp_gt_u32 s{sA}, {SPIN_MAX}"); a(f"s_cbranch_scc1 {lq}")
    a(f"buffer_load_dwordx2 {vr(v,2)}, v{v+2}, s[{R6}:{R6+3}], 0 offen sc1"); a("s_waitcnt vmcnt(0)")
    a(f"s_branch {lp}")
    a(f"{lq}:")
def publish(a, off_s, v, tag="all"):
    a.wait(vm=tag)
    a(f"v_mov_b32 v{v}, s{sN}"); a(f"v_mov_b32 v{v+1}, 0"); a("s_mov_b64 exec, 1")
    a.vmem(f"buffer_store_dword v{v}, v{v+1}, s[{sWS}:{sWS+3}], {off_s} offen sc1", "flag")
    a("s_mov_b64 exec, -1")
def f1_addr(a, cls):
    a(f"s_lshl_b32 s{sO}, s{sRB}, 4"); a(f"s_add_u32 s{sO}, s{sO}, s{sCB}"); a(f"s_mul_i32 s{sO}, s{sO}, 384")
    a(f"s_lshl_b32 s{sTmp}, s{sw4}, 2"); a(f"s_add_u32 s{sO}, s{sO}, s{sTmp}"); a(f"s_add_u32 s{sO}, s{sO}, {WS_F1 + cls*128}")

class Interleave:
    def __init__(self, a, ops, step): self.a, self.ops, self.step, self.k = a, list(ops), step, 0
    def __call__(self, s):
        self.a(s); self.k += 1
        if self.ops and self.k % self.step == 0 and not s.startswith(("s_cmp", "v_cmp", "s_add_u32", "s_cselect")): self.ops.pop(0)()
    def flush(self):
        while self.ops: self.ops.pop(0)()
    def __getattr__(self, n): return getattr(self.a, n)

def mapping(a, cfg):
    m1, m2 = cfg["map1"], cfg["map2"]
    a(f"s_and_b32 s{sA}, s2, 7"); a(f"s_lshr_b32 s{sB}, s2, 3")
    t, u = sTmp, sTmp2
    if m1 == "8x4":
        a(f"s_lshr_b32 s{t}, s{sA}, 2"); a(f"s_lshl_b32 s{t}, s{t}, 3"); a(f"s_lshr_b32 s{u}, s{sB}, 2"); a(f"s_add_u32 s{sRB}, s{t}, s{u}")
        a(f"s_and_b32 s{t}, s{sB}, 3"); a(f"s_lshl_b32 s{sROT}, s{t}, 1"); a(f"s_add_u32 s{sROT}, s{sROT}, s{u}")
        a(f"s_lshl_b32 s{t}, s{t}, 2"); a(f"s_and_b32 s{u}, s{sA}, 3"); a(f"s_add_u32 s{sCB}, s{t}, s{u}")
    elif m1 == "4x8":
        a(f"s_lshr_b32 s{t}, s{sA}, 1"); a(f"s_lshl_b32 s{t}, s{t}, 2"); a(f"s_lshr_b32 s{u}, s{sB}, 3"); a(f"s_add_u32 s{sRB}, s{t}, s{u}")
        a(f"s_and_b32 s{t}, s{sB}, 7"); a(f"s_lshl_b32 s{sROT}, s{u}, 1"); a(f"s_add_u32 s{sROT}, s{sROT}, s{t}")
        a(f"s_lshl_b32 s{t}, s{t}, 1"); a(f"s_and_b32 s{u}, s{sA}, 1"); a(f"s_add_u32 s{sCB}, s{t}, s{u}")
    elif m1 == "2x16":
        a(f"s_lshl_b32 s{t}, s{sA}, 1"); a(f"s_lshr_b32 s{u}, s{sB}, 4"); a(f"s_add_u32 s{sRB}, s{t}, s{u}")
        a(f"s_and_b32 s{sCB}, s{sB}, 15"); a(f"s_lshl_b32 s{sROT}, s{u}, 2"); a(f"s_add_u32 s{sROT}, s{sROT}, s{sCB}")
    a(f"s_and_b32 s{sROT}, s{sROT}, {int(cfg.get('rotmask', 7))}")
    if m2 == "4x8":
        a(f"s_lshl_b32 s{t}, s{sA}, 2"); a(f"s_lshr_b32 s{u}, s{sB}, 3"); a(f"s_add_u32 s{sRB2}, s{t}, s{u}"); a(f"s_and_b32 s{sCB2}, s{sB}, 7")
    elif m2 == "8x4":
        a(f"s_lshr_b32 s{t}, s{sA}, 1"); a(f"s_lshl_b32 s{t}, s{t}, 3"); a(f"s_lshr_b32 s{u}, s{sB}, 2"); a(f"s_add_u32 s{sRB2}, s{t}, s{u}")
        a(f"s_and_b32 s{t}, s{sA}, 1"); a(f"s_lshl_b32 s{t}, s{t}, 2"); a(f"s_and_b32 s{u}, s{sB}, 3"); a(f"s_add_u32 s{sCB2}, s{t}, s{u}")
    elif m2 == "16x2":
        a(f"s_lshr_b32 s{t}, s{sA}, 2"); a(f"s_lshl_b32 s{t}, s{t}, 4"); a(f"s_lshr_b32 s{u}, s{sB}, 1"); a(f"s_add_u32 s{sRB2}, s{t}, s{u}")
        a(f"s_and_b32 s{t}, s{sA}, 3"); a(f"s_lshl_b32 s{t}, s{t}, 1"); a(f"s_and_b32 s{u}, s{sB}, 1"); a(f"s_add_u32 s{sCB2}, s{t}, s{u}")
    a(f"s_lshl_b32 s{sTT}, s{sRB2}, 1")

def prologue(a, cfg):
    a("s_load_dwordx16 s[4:19], s[0:1], 0")
    a("s_load_dwordx4 s[20:23], s[0:1], 64")
    a("s_load_dwordx2 s[24:25], s[0:1], 80")
    a("v_lshrrev_b32 v1, 6, v0"); a("v_and_b32 v0, 63, v0"); a(f"v_readfirstlane_b32 s{sW}, v1")
    mapping(a, cfg)
    a(f"s_and_b32 s{sw4}, s{sW}, 3")
    a(f"s_and_b32 s{sTmp}, s{sCB}, 7"); a(f"s_lshl_b32 s{sCol1}, s{sTmp}, 7"); a(f"s_lshl_b32 s{sTA}, s{sTmp}, 1")
    a(f"s_add_u32 s{sTB}, s{sCB}, 8"); a(f"s_lshl_b32 s{sTB}, s{sTB}, 1")
    a(f"s_cmp_lt_u32 s{sCB}, 8")
    a(f"s_cselect_b32 s{sTmp}, 1024, 0"); a(f"s_cselect_b32 s{sTmp2}, 2048, 0"); a(f"s_mov_b32 s{sStr1}, 2752"); a(f"s_cselect_b32 s{sStr1}, 3072, s{sStr1}")
    a(f"s_add_u32 s{sCol0}, s{sCol1}, s{sTmp}"); a(f"s_add_u32 s{sCol1}, s{sCol1}, s{sTmp2}")

def tr_addr(a, dst, j_s, tmp):
    a(f"v_lshrrev_b32 v{tmp}, 5, v0"); a(f"v_lshlrev_b32 v{dst}, 10, v{tmp}")
    a(f"v_bfe_u32 v{tmp}, v0, 2, 2"); a(f"v_lshl_add_u32 v{dst}, v{tmp}, 7, v{dst}")
    a(f"v_bfe_u32 v{tmp}, v0, 3, 1"); a(f"v_lshl_add_u32 v{dst}, v{tmp}, 6, v{dst}")
    a(f"v_bfe_u32 v{tmp}, v0, 4, 1"); a(f"v_lshl_add_u32 v{dst}, v{tmp}, 5, v{dst}")
    a(f"v_and_b32 v{tmp}, 3, v0"); a(f"v_lshl_add_u32 v{dst}, v{tmp}, 3, v{dst}")
def read_addrs(a, vXA, vWA, base, tmp):
    tr_addr(a, tmp + 1, None, tmp)
    a(f"v_and_b32 v{tmp+2}, 31, v0"); a(f"v_lshlrev_b32 v{tmp+2}, 7, v{tmp+2}"); a(f"s_lshl_b32 s{sTmp}, s{sw4}, 12"); a(f"v_add_u32 v{tmp+2}, s{sTmp}, v{tmp+2}")
    a(f"v_lshrrev_b32 v{tmp}, 5, v0"); a(f"v_bfe_u32 v{tmp+3}, v0, 1, 3"); a(f"v_xor_b32 v{tmp+3}, v{tmp+3}, v{tmp}")
    for i in range(4):
        a(f"s_xor_b32 s{sTmp2}, s{sw4}, {i}")
        a(f"s_lshl_b32 s{sTmp}, s{sTmp2}, 1"); a(f"v_xor_b32 v{tmp}, s{sTmp}, v{tmp+3}"); a(f"v_lshl_add_u32 v{vXA+i}, v{tmp}, 4, v{tmp+2}")
        a(f"s_lshl_b32 s{sTmp}, s{sTmp2}, 11"); a(f"s_add_u32 s{sTmp}, s{sTmp}, {base}")
        a(f"v_add_u32 v{vWA+2*i}, s{sTmp}, v{tmp+1}"); a(f"v_xor_b32 v{vWA+2*i+1}, 64, v{vWA+2*i}")
def split_hi_lo(a, v, hi, lo, t):
    a(f"v_cvt_pk_bf16_f32 v{hi}, v{v}, v{v}"); a(f"v_and_b32 v{t}, 0xffff0000, v{hi}"); a(f"v_sub_f32 v{t}, v{v}, v{t}"); a(f"v_cvt_pk_bf16_f32 v{lo}, v{t}, v{t}")
def w_aug(a, dst, cs, bias, t0, t1, t2, vM):
    split_hi_lo(a, cs, t0, t1, t2)
    a(f"v_bfi_b32 v{dst}, v{vM}, v{t0}, v{t1}")
    if bias is None:
        a(f"v_and_b32 v{dst+1}, 0xffff, v{t0}"); a(f"v_mov_b32 v{dst+2}, 0")
    else:
        a(f"v_and_b32 v{t0}, 0xffff, v{t0}"); a(f"v_lshl_or_b32 v{dst+1}, v{bias}, 16, v{t0}"); a(f"v_mov_b32 v{dst+2}, v{bias}")
    a(f"v_mov_b32 v{dst+3}, 0")
def x_aug(a, dst, mean, inv, t0, t1, t2, t3, vM):
    a(f"v_mov_b32 v{vM}, 0xffff")
    a(f"v_sub_f32 v{t3}, 0, v{mean}")
    split_hi_lo(a, t3, dst, t1, t2)
    if inv is None:
        a(f"v_and_b32 v{dst+1}, 0xffff, v{t1}"); a(f"v_mov_b32 v{dst+2}, 0")
    else:
        split_hi_lo(a, inv, t0, t3, t2)
        a(f"v_bfi_b32 v{dst+1}, v{vM}, v{t1}, v{t0}"); a(f"v_and_b32 v{dst+2}, 0xffff, v{t3}")
    a(f"v_mov_b32 v{dst+3}, 0")
    a("v_cmp_gt_u32 vcc, 32, v0")
    for i in range(3): a(f"v_cndmask_b32 v{dst+i}, 0, v{dst+i}, vcc")
def selector(a, dst):
    a("v_bfe_u32 v5, v0, 4, 1"); a("v_and_b32 v7, 15, v0"); a("v_cmp_eq_u32 vcc, v5, v7")
    a("v_mov_b32 v5, 0x3f803f80"); a(f"v_cndmask_b32 v{dst}, 0, v5, vcc")
    for q in range(1, 4): a(f"v_mov_b32 v{dst+q}, v{dst}")
def cs_publish(a, vCS, nt, t0):
    a(f"s_mul_i32 s{sTmp}, s{sw4}, 768"); a(f"s_add_u32 s{sTmp}, s{sTmp}, {L_CS + t0*128}")
    a("v_lshlrev_b32 v7, 2, v0"); a(f"v_add_u32 v7, s{sTmp}, v7")
    a("s_mov_b64 exec, 0xffff")
    for t in range(nt): a.lds(f"ds_write2_b32 v7, v{vCS+4*t}, v{vCS+4*t+1} offset0:{t*32} offset1:{t*32+16}", "cs")
    a("s_mov_b64 exec, -1")
def cs_read(a, dst, nt, t0, vaddr):
    for t in range(nt):
        for w in range(4): a.lds(f"ds_read_b32 v{dst+4*t+w}, v{vaddr} offset:{w*768 + (t0+t)*128}", "st")
def cs_sum(a, dst, nt):
    for t in range(nt):
        a(f"v_add_f32 v{dst+4*t}, v{dst+4*t}, v{dst+4*t+1}"); a(f"v_add_f32 v{dst+4*t+2}, v{dst+4*t+2}, v{dst+4*t+3}")
    for t in range(nt): a(f"v_add_f32 v{dst+4*t}, v{dst+4*t}, v{dst+4*t+2}")
def stat_ops(r, u, vSum):
    return [f"v_lshlrev_b32 v{u}, 16, v{r}", f"v_and_b32 v{u+1}, 0xffff0000, v{r}",
            f"v_add_f32 v{vSum}, v{vSum}, v{u}", f"v_add_f32 v{vSum+1}, v{vSum+1}, v{u+1}",
            f"v_fmac_f32 v{vSum+2}, v{u}, v{u}", f"v_fmac_f32 v{vSum+3}, v{u+1}, v{u+1}"]
def stat_publish(a, vSum, st, vaddr):
    a(f"v_add_f32 v{vSum}, v{vSum}, v{vSum+1}"); a(f"v_add_f32 v{vSum+2}, v{vSum+2}, v{vSum+3}")
    a(f"s_lshl_b32 s{sTmp}, s{sw4}, 8"); a(f"s_add_u32 s{sTmp}, s{sTmp}, {L_PS}")
    a(f"v_lshlrev_b32 v{vaddr}, 2, v0"); a(f"v_add_u32 v{vaddr}, s{sTmp}, v{vaddr}")
    a.lds(f"ds_write_b32 v{vaddr}, v{vSum} offset:{st*2048}", "ps"); a.lds(f"ds_write_b32 v{vaddr}, v{vSum+2} offset:{st*2048+1024}", "ps")
def stat_read(a, vSum, st, vaddr):
    a.lds(f"ds_read_b32 v{vSum+1}, v{vaddr} offset:{(1-st)*2048}", "st"); a.lds(f"ds_read_b32 v{vSum+3}, v{vaddr} offset:{(1-st)*2048+1024}", "st")
def stat_final(a, vSum, T):
    a(f"v_add_f32 v{T}, v{vSum}, v{vSum+1}"); a(f"v_add_f32 v{T+1}, v{vSum+2}, v{vSum+3}")
    a(f"v_mov_b32 v{T+2}, v{T}"); a(f"v_mov_b32 v{T+3}, v{T+1}")
    a(f"v_permlane32_swap_b32 v{T}, v{T+2}"); a(f"v_permlane32_swap_b32 v{T+1}, v{T+3}")
    a(f"v_add_f32 v{T}, v{T}, v{T+2}"); a(f"v_add_f32 v{T+1}, v{T+1}, v{T+3}")
    a(f"v_mul_f32 v{T}, {f32(1/512)}, v{T}")
    a(f"v_mul_f32 v{T+2}, v{T}, v{T}")
    a(f"v_mov_b32 v{T+3}, {f32(1/512)}")
    a(f"v_fma_f32 v{T+1}, v{T+1}, v{T+3}, -v{T+2}")
    a(f"v_max_f32 v{T+1}, 0, v{T+1}")
    a(f"v_add_f32 v{T+1}, {f32(EPS)}, v{T+1}")
    a(f"v_rsq_f32 v{T+1}, v{T+1}")
def mlp_scale(a, vRstd, vS, vInv, vA1, vB1):
    a(f"v_mul_f32 v{vS}, v{vRstd}, v{vRstd}"); a(f"v_mov_b32 v{vInv}, {f32(1.0+EPS)}")
    a(f"v_fmamk_f32 v{vS}, v{vS}, {f32(-EPS)}, v{vInv}"); a(f"v_rsq_f32 v{vS}, v{vS}")
    a(f"v_mul_f32 v{vS}, v{vS}, v{vRstd}"); a(f"v_rcp_f32 v{vInv}, v{vS}")
    a(f"v_mul_f32 v{vA1}, {f32(GELU_A)}, v{vS}")
    a(f"v_mul_f32 v{vB1}, v{vS}, v{vS}"); a(f"v_mul_f32 v{vB1}, v{vB1}, v{vS}"); a(f"v_mul_f32 v{vB1}, {f32(GELU_B)}, v{vB1}")
def gelu_pk(a, z, pk, G, vA1, vB1, vI):
    for q0 in range(0, 8, 2):
        t = [G + 2 * k for k in range(2)]
        for k in range(2): a(f"v_pk_mul_f32 {vr(t[k],2)}, {vr(z+2*(q0+k),2)}, {vr(z+2*(q0+k),2)}")
        for k in range(2): a(f"v_pk_fma_f32 {vr(t[k],2)}, {vr(t[k],2)}, {vr(vB1,2)}, {vr(vA1,2)} op_sel_hi:[1,0,0]")
        for k in range(2): a(f"v_pk_mul_f32 {vr(t[k],2)}, {vr(t[k],2)}, {vr(z+2*(q0+k),2)}")
        for k in range(2): a(f"v_exp_f32 v{t[k]}, v{t[k]}"); a(f"v_exp_f32 v{t[k]+1}, v{t[k]+1}")
        for k in range(2): a(f"v_pk_fma_f32 {vr(t[k],2)}, {vr(t[k],2)}, {vr(vI,2)}, {vr(vI,2)} op_sel_hi:[1,0,0]")
        for k in range(2): a(f"v_rcp_f32 v{t[k]}, v{t[k]}"); a(f"v_rcp_f32 v{t[k]+1}, v{t[k]+1}")
        for k in range(2): a(f"v_pk_mul_f32 {vr(t[k],2)}, {vr(t[k],2)}, {vr(z+2*(q0+k),2)}")
        for k in range(2): a(f"v_cvt_pk_bf16_f32 v{pk+q0+k}, v{t[k]}, v{t[k]+1}")
def gelu_sc(a, z, pk, G, vA1, vB1, vI):
    g = 4
    for q0 in range(0, 16, g):
        t = [G + k for k in range(g)]
        for k in range(g): a(f"v_mul_f32 v{t[k]}, v{z+q0+k}, v{z+q0+k}")
        for k in range(g): a(f"v_fma_f32 v{t[k]}, v{t[k]}, v{vB1}, v{vA1}")
        for k in range(g): a(f"v_mul_f32 v{t[k]}, v{t[k]}, v{z+q0+k}")
        for k in range(g): a(f"v_exp_f32 v{t[k]}, v{t[k]}")
        for k in range(g): a(f"v_fma_f32 v{t[k]}, v{t[k]}, v{vI}, v{vI}")
        for k in range(g): a(f"v_rcp_f32 v{t[k]}, v{t[k]}")
        for k in range(g): a(f"v_mul_f32 v{t[k]}, v{t[k]}, v{z+q0+k}")
        for k in range(0, g, 2): a(f"v_cvt_pk_bf16_f32 v{pk+(q0+k)//2}, v{t[k]}, v{t[k+1]}")
def h_store(a, pk, sT, dt, vL16, sTok):
    a(f"s_add_u32 s{sTmp}, s{sT}, {dt}"); a(f"s_cmp_lt_u32 s{sTmp}, 43")
    a(f"s_mov_b32 s{R5}, s{sWS}"); a(f"s_mov_b32 s{R5+1}, s{sWS+1}"); a(f"s_cselect_b32 s{R5+2}, s{sWS+2}, 0"); a(f"s_mov_b32 s{R5+3}, 0x20000")
    a(f"s_mul_i32 s{sO}, s{sTok}, 86"); a(f"s_lshl_b32 s{sTmp}, s{sTmp}, 1"); a(f"s_add_u32 s{sO}, s{sO}, s{sTmp}"); a(f"s_lshl_b32 s{sO}, s{sO}, 10"); a(f"s_add_u32 s{sO}, s{sO}, {WS_H}")
    for s in range(2):
        a.vmem(f"buffer_store_dwordx4 {vr(pk+4*s,4)}, v{vL16}, s[{R5}:{R5+3}], s{sO} offen offset:{s*1024} sc1", "out")
def bias_load(a, dst, sT, vtmp):
    srd(a, R4, pB1, 2752)
    a(f"v_and_b32 v{vtmp}, 31, v0"); a(f"v_lshlrev_b32 v{vtmp}, 1, v{vtmp}"); a(f"s_lshl_b32 s{sTmp}, s{sT}, 6"); a(f"v_add_u32 v{vtmp}, s{sTmp}, v{vtmp}")
    for t in range(2): a.vmem(f"buffer_load_ushort v{dst+t}, v{vtmp}, s[{R4}:{R4+3}], 0 offen offset:{t*64}", "bias")

def p1_A(a, typ, cfg):
    ACC, XF, NX, WF, NB = 16, 80, 3, 200, 3
    vXA, vWA, vCS, vSel, vBias, T = 120, 124, 160, 132, 136, 140
    vSum, vUn, XA, WA, PK, G, RR, vM, vNo = 112, 116, 100, 176, 200, 192, 232, 104, 108
    stamp(a, cfg, 1)
    a("s_waitcnt lgkmcnt(0)")
    srd(a, sWS, pWS, 0x10000000)
    lead = a.label("nolead")
    a(f"s_or_b32 s{sTmp}, s2, s{sW}"); a(f"s_cmp_lg_u32 s{sTmp}, 0"); a(f"s_cbranch_scc1 {lead}")
    a(f"s_add_u32 s{sA}, s{pWS}, {WS_EPOCH}"); a(f"s_addc_u32 s{sB}, s{pWS+1}, 0")
    a(f"s_load_dword s{sN}, s[{sA}:{sB}], 0"); srd(a, R6, pDBG, 256); a("s_waitcnt lgkmcnt(0)")
    a(f"s_mul_i32 s{sN}, s{sN}, 0x9e3779b1"); a(f"s_add_u32 s{sN}, s{sN}, 0x7f4a7c15")
    a(f"v_mov_b32 v2, s{sN}"); a("v_mov_b32 v3, 1"); a("v_mov_b32 v4, 0"); a(f"s_mov_b32 s{sTmp}, {WS_EPOCH}"); a("s_mov_b64 exec, 1")
    a(f"buffer_store_dwordx2 v[2:3], v4, s[{R6}:{R6+3}], 0 offen sc1")
    a(f"buffer_store_dword v2, v4, s[{sWS}:{sWS+3}], s{sTmp} offen sc1")
    a("s_mov_b64 exec, -1"); a("s_waitcnt vmcnt(0)")
    a(f"{lead}:")
    if cfg.get("codepf", True):
        nopf = a.label("nopf")
        a(f"s_lshr_b32 s{sTmp}, s2, 3"); a(f"s_sub_u32 s{sTmp}, s{sTmp}, 1"); a(f"s_cmp_ge_u32 s{sTmp}, 5"); a(f"s_cbranch_scc1 {nopf}")
        a(f"s_cmp_lg_u32 s{sW}, 0"); a(f"s_cbranch_scc1 {nopf}")
        here = a.label("here")
        a(f"s_getpc_b64 s[{sA}:{sB}]"); a(f"{here}:")
        a(f"s_sub_u32 s{sA}, s{sA}, {here}-{KN}_kernel"); a(f"s_subb_u32 s{sB}, s{sB}, 0")
        a(f"s_lshl_b32 s{sTmp}, s{sTmp}, 13"); a("v_lshlrev_b32 v2, 7, v0"); a(f"v_add_u32 v2, s{sTmp}, v2")
        a(f"v_min_u32 v2, L_attn_slow-{KN}_kernel, v2")
        a(f"global_load_dword v1, v2, s[{sA}:{sB}]")
        a(f"{nopf}:")
    if typ == "Y": bias_load(a, vBias, sTA, 6)
    read_addrs(a, vXA, vWA, L_W, T)
    selector(a, vSel)
    for q in range(4): a(f"v_mov_b32 v{vSum+q}, 0")
    woA = cfg.get('wo_who', 'A8') == 'A8'
    if woA: wo_addr(a)
    def reads(n):
        c, i = n >> 2, n & 3; b = n % NB; so = (c & 3) * 16384
        r = [f"ds_read_b128 {vr(XF+4*(n%NX),4)}, v{vXA+i} offset:{so}"]
        for t in range(4):
            for sec in range(2):
                r.append(f"ds_read_b64_tr_b16 {vr(WF+16*b+4*t+2*sec,2)}, v{vWA+2*i+(t&1)} offset:{so + (t>>1)*8192 + sec*512}")
        return r
    swap = lambda t: typ == "X" and t >= 2
    a("s_barrier")
    stamp(a, cfg, 2)
    for n in range(2):
        for r in reads(n): a.lds(r, ("f", n))
    for n in range(32):
        c, i = n >> 2, n & 3; b = n % NB
        if i == 2 and c < 7:
            a("s_barrier")
            if c in (0, 3): stamp(a, cfg, 3 + c // 3)
        if n == 30: cs_publish(a, vCS, 4, 0)
        a.wait(lg=("f", n))
        nxt = reads(n + 2) if n < 30 else []
        k = 0
        for t in range(4):
            wf = vr(WF + 16*b + 4*t, 4); xf = vr(XF + 4*(n % NX), 4); acc = vr(ACC + 16*t, 16)
            cin = "0" if n == 0 else acc
            a(f"v_mfma_f32_32x32x16_bf16 {acc}, {xf if swap(t) else wf}, {wf if swap(t) else xf}, {cin}")
            take = 3 if t == 0 else 2
            for r in nxt[k:k+take]: a.lds(r, ("f", n + 2))
            k += take
            if i == 0: a(f"v_mfma_f32_16x16x32_bf16 {vr(vCS+4*t,4)}, {vr(vSel,4)}, {wf}, {'0' if n == 0 else vr(vCS+4*t,4)}")
            if n == 31 and woA: wo_op(a, cfg, t, 248, R4)
        if n == 30:
            a.wait(lg=("f", 31))
            for t in range(4):
                for o in stat_ops(XF + 4*(31 % NX) + t, vUn + 2*(t & 1), vSum): a(o)
            stat_publish(a, vSum, 0, 6)
            a.wait(lg="all"); a("s_barrier")
            stamp(a, cfg, 5)
            nonce_issue(a, vNo)
            stat_read(a, vSum, 0, 6)
            a("v_and_b32 v5, 31, v0"); a("v_lshlrev_b32 v5, 2, v5"); a(f"v_add_u32 v7, {L_CS}, v5")
            cs_read(a, vCS, 4, 0, 7)
    real = a; a = Interleave(real, [lambda g=g: wo_op(real, cfg, g, 248, R4) for g in range(4, 16)] if woA else [], int(cfg.get("wo_step", 6)))
    vMean, vRstd, vS, vInv, vA1, vB1 = T, T + 1, T + 2, T + 12, T + 8, T + 10
    a.wait(lg="all")
    stat_final(a, vSum, T)
    if typ == "X":
        a(f"s_lshl_b32 s{sTmp}, s{sw4}, 7"); a(f"s_add_u32 s{sTmp}, s{sTmp}, {L_RSTD}"); a(f"v_add_u32 v6, s{sTmp}, v5")
        a.lds(f"ds_write_b32 v6, v{vRstd}", "rr")
        a("v_lshrrev_b32 v7, 5, v0"); a("v_lshlrev_b32 v7, 4, v7"); a(f"v_add_u32 v7, s{sTmp}, v7")
        for j in range(4): a.lds(f"ds_read_b128 {vr(RR+4*j,4)}, v7 offset:{j*32}", "rr")
    cs_sum(a, vCS, 4)
    if typ == "Y":
        mlp_scale(a, vRstd, vS, vInv, vA1, vB1)
        a.wait(vm="bias")
    x_aug(a, XA, vMean, vInv if typ == "Y" else None, T + 4, T + 5, T + 6, T + 7, vM)
    for t in range(4):
        w_aug(a, WA + 4*t, vCS + 4*t, (vBias + t - 2) if (typ == "Y" and t >= 2) else None, T + 4, T + 5, T + 6, vM)
        acc = vr(ACC + 16*t, 16)
        a(f"v_mfma_f32_32x32x16_bf16 {acc}, {vr(XA,4) if swap(t) else vr(WA+4*t,4)}, {vr(WA+4*t,4) if swap(t) else vr(XA,4)}, {acc}")
    a.flush(); a = real
    stamp(a, cfg, 6)
    if cfg.get("prioA"): a(f"s_setprio {cfg['prioA']}")
    a("v_lshlrev_b32 v2, 4, v0")
    a(f"s_lshl_b32 s{sKC}, s{sRB}, 2"); a(f"s_add_u32 s{sKC}, s{sKC}, s{sw4}")
    vSc = T + 4
    if typ == "Y": a(f"v_mul_f32 v{vSc}, {f32(QSCALE)}, v{vRstd}")
    else: vSc = vRstd
    a(f"s_and_b32 s{sTmp}, s{sCB}, 7"); a(f"s_lshl_b32 s{sTmp}, s{sTmp}, 8"); a(f"s_add_u32 s{sTmp}, s{sTmp}, s{sKC}"); a(f"s_lshl_b32 s{sTmp2}, s{sTmp}, 10")
    for t in range(2):
        z = ACC + 16*t; pk = PK + 8*t
        for q in range(16): a(f"v_mul_f32 v{z+q}, v{z+q}, v{vSc}")
        for q in range(8): a(f"v_cvt_pk_bf16_f32 v{pk+q}, v{z+2*q}, v{z+2*q+1}")
        for hh in range(2):
            a(f"s_add_u32 s{sO}, s{sTmp2}, {WS_QK + (32*65536 if typ == 'X' else 0) + (2*t+hh)*65536}")
            a.vmem(f"buffer_store_dwordx4 {vr(pk+4*hh,4)}, v2, s[{sWS}:{sWS+3}], s{sO} offen sc1", "out")
    if typ == "X":
        a("v_bfe_u32 v6, v0, 4, 1"); a("v_lshlrev_b32 v6, 16, v6"); a("v_lshrrev_b32 v7, 5, v0"); a("v_lshl_add_u32 v6, v7, 8, v6")
        a("v_and_b32 v7, 15, v0"); a("v_lshl_add_u32 v6, v7, 4, v6")
        a.wait(lg="all")
        for t in range(2, 4):
            z = ACC + 16*t; pk = PK + 8*t
            for q in range(16): a(f"v_mul_f32 v{z+q}, v{z+q}, v{RR+q}")
            for q in range(8): a(f"v_cvt_pk_bf16_f32 v{pk+q}, v{z+2*q}, v{z+2*q+1}")
            a(f"s_add_u32 s{sO}, s{sTmp2}, {WS_V + 2*(t-2)*65536}")
            for s in range(2):
                a.vmem(f"buffer_store_dwordx4 {vr(pk+4*s,4)}, v6, s[{sWS}:{sWS+3}], s{sO} offen offset:{s*512} sc1", "out")
        stamp(a, cfg, 7)
        nonce_get(a, vNo)
        attn_setup(a, cfg)
        stamp(a, cfg, 8)
        f1_addr(a, 0); publish(a, f"s{sO}", 14, "out")
        if cfg.get("l2pf", "early") == "late": l2_prefetch(a, cfg, 13)
    else:
        stamp(a, cfg, 7)
        nonce_get(a, vNo)
        gelu_sc(a, ACC + 32, PK + 16, G, vA1, vB1, vInv)
        f1_addr(a, 0); publish(a, f"s{sO}", 6, "out")
        if cfg.get("l2pf", "early") == "late": srd(a, R4, pWO, 524288); l2_prefetch(a, cfg, 13)
        h_store(a, PK + 16, sTA, 0, 2, sKC)
        gelu_sc(a, ACC + 48, PK + 24, G, vA1, vB1, vInv)
        h_store(a, PK + 24, sTA, 1, 2, sKC)
        attn_setup(a, cfg)
        stamp(a, cfg, 8)
        f1_addr(a, 2); publish(a, f"s{sO}", 14)
    stamp(a, cfg, 9)

vW = 128
sKW2, sL2, sWoG = 26, 27, 79
def p2w_setup(a):
    a("v_lshrrev_b32 v132, 3, v0"); a("v_bfe_u32 v133, v0, 4, 1"); a("v_lshlrev_b32 v133, 2, v133"); a("v_and_b32 v134, 7, v0"); a("v_xor_b32 v134, v134, v133"); a("v_lshlrev_b32 v134, 4, v134")
    a(f"v_lshl_add_u32 v{vW}, v132, 10, v134"); a(f"s_lshl_b32 s{sWoG}, s{sCB2}, 7"); a(f"v_add_u32 v{vW}, s{sWoG}, v{vW}")
    for g in range(1, 4): a(f"v_add_u32 v{vW+g}, {g*7168}, v{vW}")
    a(f"s_mul_i32 s{sKW2}, s{sw4}, {22*16*1024}")
    a(f"s_lshr_b32 s{sL2}, s{sw4}, 1"); a(f"s_lshl_b32 s{sL2}, s{sL2}, 16"); a(f"s_and_b32 s{sWoG}, s{sw4}, 1"); a(f"s_lshl_b32 s{sWoG}, s{sWoG}, 14"); a(f"s_add_u32 s{sL2}, s{sL2}, s{sWoG}")
    a(f"s_lshl_b32 s{sWoG}, s{sw4}, 17")
    srd(a, R0, pW2, 1409024); srd(a, R2, pWO, 524288)
def wo_op(a, cfg, g, v=vW, R=R2):
    if g % 4 == 0: a(f"s_add_u32 m0, s{sL2}, {WO_BASE[0] + g*1024}"); a(f"s_add_u32 s{sLdsX}, s{sWoG}, {g*8192}")
    a.vmem(f"buffer_load_dwordx4 v{v+(g%4)}, s[{R}:{R+3}], s{sLdsX} offen offset:{(g%4)*1024} {cfg['aux_w2']} lds", "wo")
def w2_op(a, cfg, n, kb, v=vW, R=R0):
    if kb == 0: a(f"s_add_u32 m0, s{sL2}, {(n % 8)*2048}"); a(f"s_add_u32 s{sLdsX}, s{sKW2}, {n*16384}")
    a.vmem(f"buffer_load_dwordx4 v{v+kb}, s[{R}:{R+3}], s{sLdsX} offen offset:{kb*1024} {cfg['aux_w2']} lds", ("w", n))
def p2w_scalars(a):
    a(f"s_mul_i32 s{sKW2}, s{sw4}, {22*16*1024}")
    a(f"s_lshr_b32 s{sL2}, s{sw4}, 1"); a(f"s_lshl_b32 s{sL2}, s{sL2}, 16"); a(f"s_and_b32 s{sWoG}, s{sw4}, 1"); a(f"s_lshl_b32 s{sWoG}, s{sWoG}, 14"); a(f"s_add_u32 s{sL2}, s{sL2}, s{sWoG}")
    a(f"s_lshl_b32 s{sWoG}, s{sw4}, 17")

def wo_addr(a):
    a("v_lshrrev_b32 v252, 3, v0"); a("v_bfe_u32 v253, v0, 4, 1"); a("v_lshlrev_b32 v253, 2, v253"); a("v_and_b32 v254, 7, v0"); a("v_xor_b32 v254, v254, v253"); a("v_lshlrev_b32 v254, 4, v254")
    a("v_lshl_add_u32 v248, v252, 10, v254"); a(f"s_lshl_b32 s{sWoG}, s{sCB2}, 7"); a(f"v_add_u32 v248, s{sWoG}, v248")
    for g in range(1, 4): a(f"v_add_u32 v{248+g}, {g*7168}, v248")
    p2w_scalars(a); srd(a, R4, pWO, 524288)
def xb_load(a, XR):
    sXO, sB2 = R3, R5
    srd(a, sXO, pX, 0x200000); srd(a, sB2, pB2, 1024)
    a(f"s_lshr_b32 s{sTmp2}, s{sw4}, 1"); a(f"s_add_u32 s{sT1}, s{sTT}, s{sTmp2}")
    a(f"s_and_b32 s{sKH}, s{sw4}, 1"); a(f"s_lshl_b32 s{sKH}, s{sKH}, 6"); a(f"s_lshl_b32 s{sTmp}, s{sCB2}, 7"); a(f"s_add_u32 s{sTmp}, s{sTmp}, s{sKH}")
    a("v_lshrrev_b32 v154, 5, v0"); a("v_lshlrev_b32 v152, 3, v154"); a(f"v_add_u32 v152, s{sTmp}, v152")
    a("v_and_b32 v155, 31, v0"); a(f"s_lshl_b32 s{sTmp}, s{sT1}, 5"); a(f"v_add_u32 v155, s{sTmp}, v155"); a("v_lshl_add_u32 v153, v155, 10, v152")
    for j in range(4):
        a.vmem(f"buffer_load_dwordx2 {vr(XR+2*j,2)}, v153, s[{sXO}:{sXO+3}], 0 offen offset:{j*16}", "xb")
        a.vmem(f"buffer_load_dwordx2 {vr(XR+8+2*j,2)}, v152, s[{sB2}:{sB2+3}], 0 offen offset:{j*16}", "xb")

def p1_B(a, cfg):
    XR, ACC, WF, NB = 128, 16, 48, 4
    vU, vWB, vXs = (2, 14), 16, 8
    vXA, vSum, vUn, T, XA, vCS, vWA, vWX, vSel = 80, 84, 88, 92, 96, 100, 108, 116, 124
    sX, sU0, sU1, sUB = R0, R2, R3, R4
    a("v_lshrrev_b32 v5, 3, v0"); a("v_lshrrev_b32 v6, 4, v0")
    a("v_and_b32 v10, 7, v0"); a("v_xor_b32 v7, v10, v6"); a("v_lshlrev_b32 v7, 4, v7")
    a(f"s_lshl_b32 s{sTmp}, s{sRB}, 7"); a(f"s_lshl_b32 s{sTmp2}, s{sw4}, 5"); a(f"s_add_u32 s{sTmp}, s{sTmp}, s{sTmp2}")
    a(f"v_add_u32 v4, s{sTmp}, v5"); a(f"v_lshl_add_u32 v{vXs}, v4, 10, v7")
    a("v_and_b32 v6, 1, v6"); a("v_lshlrev_b32 v6, 2, v6"); a("v_xor_b32 v7, v10, v6"); a("v_lshlrev_b32 v7, 4, v7")
    a(f"v_xor_b32 v{vXs+1}, 64, v{vXs}"); a(f"v_add_u32 v{vXs+2}, {2*7168}, v{vXs}"); a(f"v_add_u32 v{vXs+3}, {3*7168}, v{vXs+1}"); a(f"v_add_u32 v{vXs+1}, 7168, v{vXs+1}")
    a(f"s_lshl_b32 s{sLdsX}, s{sw4}, 12"); a(f"s_lshl_b32 s{sLdsW}, s{sw4}, 11"); a(f"s_add_u32 s{sLdsW}, s{sLdsW}, {L_W}")
    a(f"s_lshl_b32 s{sTmp}, s{sw4}, 4"); a(f"v_add_u32 v4, s{sTmp}, v5")
    a(f"v_mul_u32_u24 v6, 3072, v4"); a(f"v_add3_u32 v{vU[0]}, v6, v7, s{sCol0}"); a(f"v_add_u32 v{vU[0]+1}, {8*3072-1024}, v{vU[0]}")
    a(f"v_mul_lo_u32 v6, v4, s{sStr1}"); a(f"v_add3_u32 v{vU[1]}, v6, v7, s{sCol1}")
    a(f"s_lshl_b32 s{sTmp}, s{sStr1}, 3"); a(f"s_sub_u32 s{sTmp}, s{sTmp}, 1024"); a(f"v_add_u32 v{vU[1]+1}, s{sTmp}, v{vU[1]}")
    a(f"s_lshl_b32 s{sStr1}, s{sStr1}, 6")
    a("s_waitcnt lgkmcnt(0)")
    srd(a, sX, pX, 0x200000); srd(a, sU0, pQKV, 1572864)
    a(f"s_cmp_lt_u32 s{sCB}, 8"); a(f"s_cselect_b32 s{sU1}, s{pQKV}, s{pW1}"); a(f"s_cselect_b32 s{sU1+1}, s{pQKV+1}, s{pW1+1}")
    a(f"s_mov_b32 s{sU1+2}, 1409024"); a(f"s_cselect_b32 s{sU1+2}, 1572864, s{sU1+2}"); a(f"s_mov_b32 s{sU1+3}, 0x20000")
    def dma_i(vaddr, srdreg, off, tag, aux):
        a.vmem(f"buffer_load_dwordx4 v{vaddr}, s[{srdreg}:{srdreg+3}], s{sO} offen offset:{off} {aux} lds".replace("  ", " "), tag)
    def dma_ops(c):
        ops = []
        if c < 8:
            def x(g):
                if g == 0:
                    a(f"s_add_u32 s{sKC}, s{sROT}, {c}"); a(f"s_and_b32 s{sKC}, s{sKC}, 7")
                    a(f"s_add_u32 m0, s{sLdsX}, {L_X + (c & 3)*16384}"); a(f"s_lshl_b32 s{sO}, s{sKC}, 7")
                dma_i(vXs + g, sX, g * 1024, ("st", c), cfg["aux_x"])
            def w(u, kb):
                if kb == 0:
                    a(f"s_add_u32 m0, s{sLdsW}, {(c & 3)*16384 + u*8192}"); a(f"s_mul_i32 s{sO}, s{sKC}, {64*3072 if u == 0 else 's%d' % sStr1}")
                dma_i(vU[u] + kb, (sU0, sU1)[u], kb * 1024, ("st", c), cfg["aux_w"])
            for g in range(4): ops.append(lambda g=g: x(g))
            for g in range(4): ops.append(lambda g=g: w(g >> 1, g & 1))
        else:
            st = c - 8
            def wb(g):
                if g == 0:
                    a(f"s_add_u32 s{sKC}, s{sw4}, {4*st}"); a(f"s_add_u32 s{sKC}, s{sKC}, s{sROT}"); a(f"s_and_b32 s{sKC}, s{sKC}, 7")
                    a(f"s_add_u32 m0, s{sLdsB}, {st*16384}"); a(f"s_mul_i32 s{sO}, s{sKC}, {64*2752}")
                if g == 4:
                    a(f"s_add_u32 m0, s{sLdsB}, {st*16384 + 4096}"); a(f"s_add_u32 s{sO}, s{sO}, {32*2752}")
                dma_i(vWB + (g & 3), sUB, (g & 3) * 1024, ("st", c), cfg["aux_w"])
            for g in range(8): ops.append(lambda g=g: wb(g))
        return ops
    stamp(a, cfg, 1)
    if cfg.get("prio", True): a("s_setprio 1")
    for o in dma_ops(0): o()
    srd(a, sWS, pWS, 0x10000000)
    srd(a, sUB, pW1, 1409024)
    a(f"s_cmp_lt_u32 s{sTB}, 43"); a(f"s_cselect_b32 s{sUB+2}, s{sUB+2}, 0")
    a(f"s_lshl_b32 s{sTmp}, s{sTB}, 6"); a(f"v_mul_u32_u24 v6, 2752, v5"); a(f"v_add3_u32 v{vWB}, v6, v7, s{sTmp}")
    for g in range(1, 4): a(f"v_add_u32 v{vWB+g}, {g*(8*2752-1024)}, v{vWB}")
    a(f"s_lshr_b32 s{sLdsB}, s{sw4}, 1"); a(f"s_lshl_b32 s{sLdsB}, s{sLdsB}, 16"); a(f"s_and_b32 s{sTmp}, s{sw4}, 1"); a(f"s_lshl_b32 s{sTmp}, s{sTmp}, 13"); a(f"s_add_u32 s{sLdsB}, s{sLdsB}, s{sTmp}")
    a("v_mov_b32 v6, 0"); a("v_lshlrev_b32 v7, 2, v0"); a("v_and_b32 v7, 31, v7"); a(f"v_add_u32 v7, {L_CNT}, v7"); a.lds("ds_write_b32 v7, v6", "z")
    read_addrs(a, vXA, vWX, 0, T)
    for i in range(8): a(f"v_add_u32 v{vWA+i}, {L_W}, v{vWX+i}")
    for q in range(4): a(f"v_mov_b32 v{vSum+q}, 0")
    selector(a, vSel)
    a(f"v_mov_b32 v12, {L_CNT}"); a("v_mov_b32 v13, 1")
    for o in dma_ops(1): o()
    a.wait(vm=("st", 0), lg="all"); a("s_barrier")
    stamp(a, cfg, 2)
    for c in range(8):
        for i in range(4):
            a.lds(f"ds_read_b128 {vr(XR+16*c+4*i,4)}, v{vXA+i} offset:{(c&3)*16384}", ("x", c, i))
        ops = dma_ops(c + 2)
        fr = [n for n in range(4*c - 1, 4*c + 3) if n >= 0]
        ops[0]()
        k = 1; tot = 4 * len(fr)
        for ii, n in enumerate(fr):
            for q in range(4):
                while k < 8 and (k - 1) * tot <= (4*ii + q) * 7: ops[k](); k += 1
                if q == 0: a.wait(lg=("x", n >> 2, n & 3))
                for o in stat_ops(XR + 4*n + q, vUn + 2*(q & 1), vSum): a(o)
        while k < 8: ops[k](); k += 1
        if c == int(cfg.get("pf_c", 7)) and cfg.get("l2pf", "early") == "early":
            srd(a, R6, pWO, 524288); l2_prefetch(a, cfg, 2, R6)
        a.wait(lg=("x", c, 3))
        if c == 7:
            stat_publish(a, vSum, 1, 6)
            a("v_and_b32 v5, 31, v0"); a("v_lshlrev_b32 v5, 2, v5")
            a.wait(vm=("st", 8), lg="all"); a("s_barrier")
            stamp(a, cfg, 5)
        else:
            a.wait(vm=("st", c + 1)); a("s_barrier")
            if c in (0, 3): stamp(a, cfg, 3 + c // 3)
    def reads(n):
        c, i = n >> 2, n & 3; b = n % NB
        st, q = c >> 2, c & 3
        base = (vWX if q < 2 else vWA); so = st * 16384 + (q & 1) * 8192
        return [f"ds_read_b64_tr_b16 {vr(WF+8*b+4*t+2*sec,2)}, v{base+2*i+t} offset:{so + sec*512}" for t in range(2) for sec in range(2)]
    for n in range(3):
        for r in reads(n): a.lds(r, ("f", n))
    stat_read(a, vSum, 1, 6)
    vBias, vNo, vM = 2, 8, 11
    bias_load(a, vBias, sTB, 4)
    nonce_issue(a, vNo)
    if cfg.get("prio", True): a("s_setprio 0")
    vMean, vRstd, vS, vInv, vA1, vB1 = T, T + 1, T + 2, 14, 88, 90
    fill = Asm(); stat_final(fill, vSum, T); mlp_scale(fill, vRstd, vS, vInv, vA1, vB1); x_aug(fill, XA, vMean, vInv, 80, 81, 82, 83, vM)
    fill = list(fill.lines)
    fill2 = Asm(); p2w_setup(fill2); fill2 = list(fill2.lines)
    WON = int(cfg.get("wo_n", 2))
    for n in range(32):
        c, i = n >> 2, n & 3; b = n % NB
        if n == int(cfg.get("prio_n", 12)) and cfg.get("prio", True): a("s_setprio 1")
        if n == int(cfg.get("prio_n2", 31)) and cfg.get("prio", True): a(f"s_setprio {cfg.get('prioB1', 3)}")
        if n == 8:
            a.wait(vm=("st", 9)); lds_count(a, 12, 13, C_ST9)
        if n == 13: lds_spin(a, 12, 7, C_ST9, 4)
        a.wait(lg=("f", n))
        nxt = reads(n + 3) if n < 29 else []
        for t in range(2):
            acc = vr(ACC + 16*t, 16)
            a(f"v_mfma_f32_32x32x16_bf16 {acc}, {vr(WF+8*b+4*t,4)}, {vr(XR+4*n,4)}, {'0' if n == 0 else acc}")
            for r in nxt[2*t:2*t+2]: a.lds(r, ("f", n + 3))
            if i == 0: a(f"v_mfma_f32_16x16x32_bf16 {vr(vCS+4*t,4)}, {vr(vSel,4)}, {vr(WF+8*b+4*t,4)}, {'0' if n == 0 else vr(vCS+4*t,4)}")
            if n >= 14:
                for l in fill[:2]: a(l)
                fill = fill[2:]
            if n == 1 and t == 1:
                for l in fill2: a(l)
                fill2 = []
            if cfg.get('wo_who', 'A8') == 'B' and WON <= n < WON + 8: wo_op(a, cfg, 2*(n - WON) + t)
        if n == int(cfg.get("xb_n", 10)): xb_load(a, 136)
        if n == 29:
            cs_publish(a, vCS, 2, 4); lds_count(a, 12, 13, C_CS)
            a(f"v_add_u32 v5, {L_CS}, v5")
        if n == 31: lds_count(a, 12, 13, C_RING)
    assert not fill and not fill2
    stamp(a, cfg, 6)
    lds_spin(a, 12, 7, C_CS, 4)
    cs_read(a, vCS, 2, 4, 5)
    a.wait(lg="all", vm="bias")
    cs_sum(a, vCS, 2)
    WA = 108
    for t in range(2):
        w_aug(a, WA + 4*t, vCS + 4*t, vBias + t, 80, 81, 82, vM)
        acc = vr(ACC + 16*t, 16)
        a(f"v_mfma_f32_32x32x16_bf16 {acc}, {vr(WA+4*t,4)}, {vr(XA,4)}, {acc}")
    nonce_get(a, vNo)
    a("v_lshlrev_b32 v2, 4, v0")
    a(f"s_lshl_b32 s{sKC}, s{sRB}, 2"); a(f"s_add_u32 s{sKC}, s{sKC}, s{sw4}")
    PK = 64
    stamp(a, cfg, 7)
    WG0 = int(cfg.get("w2_gelu", 7))
    if WG0: lds_spin(a, 12, 7, C_RING, 4)
    pre = [(n, kb) for n in range(WG0) for kb in range(2)]
    for t in range(2):
        g = Asm(); (gelu_pk if cfg.get("geluB", "pk") == "pk" else gelu_sc)(g, ACC + 16*t, PK + 8*t, 80, vA1, vB1, vInv)
        mine = list(pre) if t == 0 else []
        step = max(1, len(g.lines) // max(1, len(mine)))
        for k, l in enumerate(g.lines):
            if k % step == 0 and mine and k + step <= len(g.lines): w2_op(a, cfg, *mine.pop(0))
            a(l)
        for m in mine: w2_op(a, cfg, *m)
        h_store(a, PK + 8*t, sTB, t, 2, sKC)
    stamp(a, cfg, 8)

KF, VF, QF, CD, CF, SB, PB, OA = 16, 56, 136, 144, 160, 176, 208, 224
def attn_tiles(): return [(b, j) for b in range(2) for j in range(b, b + 9)]
def attn_epilogue(a, b):
    o = OA + 16 * b
    a(f"v_rcp_f32 v8, v{o+8}")
    for q in range(8): a(f"v_mul_f32 v{o+q}, v{o+q}, v8")
    for q in range(4): a(f"v_cvt_pk_bf16_f32 v{o+8+q}, v{o+2*q}, v{o+2*q+1}")
    a(f"s_add_u32 s{sO}, s{sTT}, {b}"); a(f"s_lshl_b32 s{sO}, s{sO}, 5"); a(f"s_add_u32 s{sO}, s{sO}, s{sHD}"); a(f"s_lshl_b32 s{sO}, s{sO}, 10"); a(f"s_add_u32 s{sO}, s{sO}, {WS_O}")
    a.vmem(f"buffer_store_dwordx4 {vr(o+8,4)}, v2, s[{sWS}:{sWS+3}], s{sO} offen sc1", "ost")
def s_mfma(a, n, tiles):
    b, j = tiles[n]
    c = vr(CF, 16) if j == b else (vr(CD, 16) if j == b + 8 else "0")
    a(f"v_mfma_f32_32x32x16_bf16 {vr(SB+16*(n&1),16)}, {vr(KF+4*j,4)}, {vr(QF+4*b,4)}, {c}")
def pv_mfma(a, n, s, tiles):
    b, j = tiles[n]; o = vr(OA + 16 * b, 16)
    a(f"v_mfma_f32_32x32x16_bf16 {o}, {vr(VF+8*j+4*s,4)}, {vr(PB+8*(n&1)+4*s,4)}, {'0' if (j == b and s == 0) else o}")
def bound_check(a, cfg):
    a.wait(vm=("k", 9))
    a("v_mov_b32 v10, 0"); a("v_mov_b32 v11, 0")
    for j in range(12):
        base = (KF + 4*j) if j < 10 else (QF + 4*(j-10))
        t = 12 + (j & 1)
        a(f"v_dot2_f32_bf16 v{t}, v{base}, v{base}, 0")
        for q in range(1, 4): a(f"v_dot2_f32_bf16 v{t}, v{base+q}, v{base+q}, v{t}")
        if j > 0:
            pj = j - 1; d = 10 if pj < 10 else 11
            a(f"v_max_f32 v{d}, v{d}, v{12+(pj&1)}")
    a("v_max_f32 v11, v11, v13")
    wave_max32(a, 10); wave_max32(a, 11)
    a(f"v_readlane_b32 s{sA}, v10, 31"); a(f"v_readlane_b32 s{sB}, v10, 63"); a(f"v_readlane_b32 s{sTmp}, v11, 31"); a(f"v_readlane_b32 s{sTmp2}, v11, 63")
    a(f"v_mov_b32 v10, s{sA}"); a(f"v_mov_b32 v11, s{sTmp}"); a(f"v_add_f32 v10, s{sB}, v10"); a(f"v_add_f32 v11, s{sTmp2}, v11")
    a("v_mul_f32 v10, v10, v11")
    a(f"v_cmp_nge_f32 vcc, {f32(cfg.get('bound2', BOUND2))}, v10")
    a("s_nop 4"); a("s_cmp_lg_u64 vcc, 0"); a("s_cbranch_scc1 L_attn_slow")

def attn_fast(a, cfg):
    tiles = attn_tiles()
    a.wait(vm=("k", 1))
    s_mfma(a, 0, tiles)
    for n in range(18):
        b, j = tiles[n]
        S = SB + 16 * (n & 1); P = PB + 8 * (n & 1)
        ex = lambda q: a(f"v_exp_f32 v{S+q}, v{S+q}")
        cv = lambda q: a(f"v_cvt_pk_bf16_f32 v{P+q}, v{S+2*q}, v{S+2*q+1}")
        if n == 0: s_mfma(a, 1, tiles)
        ex(0); ex(1)
        if n > 0: pv_mfma(a, n - 1, 1, tiles)
        for q in range(2, 5): ex(q)
        ld = cfg["_sched"].get(n, [])
        for o in ld[:1]: o(a)
        for q in range(5, 8): ex(q)
        cv(0)
        if 0 < n < 17: a.wait(vm=("k", tiles[n+1][1])); s_mfma(a, n + 1, tiles)
        cv(1); cv(2); cv(3)
        for q in range(8, 12): ex(q)
        a.wait(vm=("v", j))
        pv_mfma(a, n, 0, tiles)
        for q in range(12, 14): ex(q)
        for o in ld[1:]: o(a)
        for q in range(14, 16): ex(q)
        for q in range(4, 8): cv(q)
        if n == 9: bound_check(a, cfg); attn_epilogue(a, 0)
    pv_mfma(a, 17, 1, tiles)
    attn_epilogue(a, 1)
def attn_slow(a, cfg):
    tiles = attn_tiles()
    for n in range(10, 18):
        for o in cfg["_sched"].get(n, []): o(a)
    a("s_waitcnt vmcnt(0)"); a("s_nop 15"); a.vm = []
    for b in range(2):
        a("v_mov_b32 v10, 0xff800000")
        for n, (bb, j) in enumerate(tiles):
            if bb != b: continue
            skip = a.label("skip")
            a(f"s_add_i32 s{sTmp}, s{sTT}, {j-8}"); a(f"s_cmp_lt_i32 s{sTmp}, 0"); a(f"s_cbranch_scc1 {skip}")
            s_mfma(a, n, tiles)
            S = SB + 16 * (n & 1)
            for q in range(8): a(f"v_max3_f32 v10, v10, v{S+2*q}, v{S+2*q+1}")
            a(f"{skip}:")
            a("s_nop 7"); a("s_nop 7")
        a("v_mov_b32 v11, v10"); a("v_permlane32_swap_b32 v10, v11"); a("v_max_f32 v10, v10, v11")
        for n, (bb, j) in enumerate(tiles):
            if bb != b: continue
            s_mfma(a, n, tiles)
            S = SB + 16 * (n & 1); P = PB + 8 * (n & 1)
            for q in range(16):
                a(f"v_sub_f32 v{S+q}, v{S+q}, v10"); a(f"v_min_f32 v{S+q}, 0, v{S+q}"); a(f"v_exp_f32 v{S+q}, v{S+q}")
            for q in range(8): a(f"v_cvt_pk_bf16_f32 v{P+q}, v{S+2*q}, v{S+2*q+1}")
            pv_mfma(a, n, 0, tiles); pv_mfma(a, n, 1, tiles)
        attn_epilogue(a, b)
def wave_max32(a, v):
    for m in ("quad_perm:[1,0,3,2] row_mask:0xf bank_mask:0xf", "quad_perm:[2,3,0,1] row_mask:0xf bank_mask:0xf",
              "row_half_mirror row_mask:0xf bank_mask:0xf", "row_mirror row_mask:0xf bank_mask:0xf", "row_bcast:15 row_mask:0xa bank_mask:0xf"):
        a(f"v_max_f32_dpp v{v}, v{v}, v{v} {m}")
def w_src_addr(a, dst):
    a("v_lshrrev_b32 v5, 3, v0")
    a("v_bfe_u32 v6, v0, 4, 1"); a("v_lshlrev_b32 v6, 2, v6"); a("v_and_b32 v7, 7, v0"); a("v_xor_b32 v7, v7, v6"); a("v_lshlrev_b32 v7, 4, v7")
    a(f"v_lshl_add_u32 v{dst}, v5, 10, v7")
    a(f"s_lshl_b32 s{sTmp}, s{sCB2}, 7"); a(f"v_add_u32 v{dst}, s{sTmp}, v{dst}")
def tr_addr2(a, dst, base_s):
    a(f"v_lshrrev_b32 v5, 5, v0"); a(f"v_lshlrev_b32 v{dst}, 9, v5")
    a(f"v_bfe_u32 v5, v0, 2, 2"); a(f"v_lshl_add_u32 v{dst}, v5, 7, v{dst}")
    a(f"v_bfe_u32 v5, v0, 3, 1"); a(f"v_lshl_add_u32 v{dst}, v5, 6, v{dst}")
    a(f"v_bfe_u32 v5, v0, 4, 1"); a(f"v_lshl_add_u32 v{dst}, v5, 5, v{dst}")
    a(f"v_and_b32 v5, 3, v0"); a(f"v_lshl_add_u32 v{dst}, v5, 3, v{dst}")
    a(f"v_add_u32 v{dst}, {base_s}, v{dst}"); a(f"v_xor_b32 v{dst+1}, 64, v{dst}")

def attn_setup(a, cfg):
    sQ, sK, sV, sWO = R0, R2, R3, R4
    a(f"s_lshl_b32 s{sHD}, s{sCB2}, 2"); a(f"s_add_u32 s{sHD}, s{sHD}, s{sw4}")
    a(f"s_lshl_b32 s{sTmp}, s{sHD}, 16")
    a(f"s_add_u32 s{sTmp2}, s{sTmp}, {WS_QK}"); sub_srd(a, sQ, f"s{sTmp2}", 65536)
    a(f"s_add_u32 s{sTmp2}, s{sTmp}, {WS_QK + 32*65536}"); sub_srd(a, sK, f"s{sTmp2}", 65536)
    a(f"s_add_u32 s{sTmp2}, s{sTmp}, {WS_V}"); sub_srd(a, sV, f"s{sTmp2}", 65536)
    a("v_lshlrev_b32 v2, 4, v0"); a(f"s_lshl_b32 s{sM}, s{sTT}, 10")
    a("v_min_u32 v4, 11, v0"); a("v_cmp_gt_u32 vcc, 10, v4")
    a("v_add_u32 v5, -8, v4"); a("v_add_u32 v6, -10, v4"); a("v_cndmask_b32 v5, v6, v5, vcc")
    a(f"v_add_u32 v5, s{sTT}, v5"); a("v_max_i32 v5, 0, v5")
    a("v_cndmask_b32_e64 v6, 8, 0, vcc"); a(f"v_add_u32 v6, s{sCB2}, v6")
    a("v_lshrrev_b32 v7, 2, v5"); a("v_lshl_add_u32 v6, v7, 4, v6"); a("v_mul_u32_u24 v6, 384, v6")
    a("v_and_b32 v5, 3, v5"); a("v_lshl_add_u32 v6, v5, 2, v6"); a(f"v_add_u32 v12, {WS_F1}, v6")
    a("v_and_b32 v3, 27, v0"); a("v_cmp_eq_u32 vcc, 16, v3")
    a("v_mov_b32 v4, 0x3f803f80"); a("v_cndmask_b32 v4, 0, v4, vcc")
    a("v_lshrrev_b32 v3, 5, v0"); a("v_lshlrev_b32 v3, 8, v3"); a("v_and_b32 v5, 15, v0"); a("v_lshl_add_u32 v3, v5, 4, v3")
    for j in range(10):
        if j < 8:
            if j % 2 == 0:
                a(f"s_add_i32 s{sTmp}, s{sTT}, {j-8}"); a(f"s_cmp_ge_i32 s{sTmp}, 0"); a(f"s_cselect_b32 s{sTmp}, -1, 0")
                a(f"v_and_b32 v6, s{sTmp}, v4"); a("v_mov_b32 v7, v6")
        elif j == 8: a("v_mov_b32 v6, v4"); a("v_mov_b32 v7, v4")
        for q in range(4): a(f"v_mov_b64 {vr(VF+8*j+2*q,2)}, v[6:7]")
    a("v_and_b32 v5, 31, v0"); a("v_lshrrev_b32 v6, 5, v0"); a("v_lshlrev_b32 v6, 2, v6"); a("v_sub_u32 v5, v5, v6")
    a(f"v_mov_b32 v6, {f32(NEG)}")
    for r in range(16):
        a(f"v_cmp_le_i32 vcc, {8*(r>>2) + (r&3)}, v5")
        a(f"v_cndmask_b32_e64 v{CD+r}, v6, 0, vcc"); a(f"v_cndmask_b32_e64 v{CF+r}, 0, v6, vcc")

def l2_prefetch(a, cfg, v, RW=R4):
    nsh = int(cfg["map2"].split("x")[0]); per = 1888 // nsh; nins = -(-per // 256); pw = -(-per // (4 * nins))
    srd(a, R5, pW2, 1409024)
    a(f"s_and_b32 s{sTmp}, s{sRB2}, {nsh-1}"); a(f"s_mul_i32 s{sTmp}, s{sTmp}, {per}"); a(f"s_mul_i32 s{sTmp2}, s{sw4}, {pw}"); a(f"s_add_u32 s{sTmp}, s{sTmp}, s{sTmp2}")
    a(f"v_min_u32 v{v}, {pw-1}, v0"); a(f"v_add_u32 v{v}, s{sTmp}, v{v}"); a(f"v_lshlrev_b32 v{v}, 10, v{v}")
    a(f"s_lshl_b32 s{sTmp}, s{sCB2}, 7"); a(f"v_add_u32 v{v}, s{sTmp}, v{v}")
    for i in range(nins):
        if i: a(f"v_add_u32 v{v}, {4*pw*1024}, v{v}")
        a(f"v_add_u32 v{v+1}, {(-512*1024) & 0xffffffff}, v{v}")
        a.vmem(f"buffer_load_dword v1, v{v}, s[{RW}:{RW+3}], 0 offen", "pf")
        a.vmem(f"buffer_load_dword v1, v{v+1}, s[{R5}:{R5+3}], 0 offen", "pf")

def p2_A(a, cfg):
    ax = "sc1"
    sQ, sK, sV, sWO = R0, R2, R3, R4
    a.vm = []; a.lg = []
    stamp(a, cfg, 0)
    a(f"v_mov_b32 v14, {L_CNT}"); a("v_mov_b32 v15, 1")
    stamp(a, cfg, 1)
    flag_poll(a, 12, 13, 12)
    if cfg.get('wo_who', 'A8') == 'A8': lds_count(a, 14, 15, C_WO)
    if "prioA2" in cfg: a(f"s_setprio {cfg['prioA2']}")
    stamp(a, cfg, 2)
    for b in range(2):
        a.vmem(f"buffer_load_dwordx4 {vr(QF+4*b,4)}, v2, s[{sQ}:{sQ+3}], s{sM} offen offset:{b*1024} {ax}", "q")
    def kload(x, j):
        x(f"s_add_u32 s{sO}, s{sM}, {(j-8)*1024 & 0xffffffff}")
        x.vmem(f"buffer_load_dwordx4 {vr(KF+4*j,4)}, v2, s[{sK}:{sK+3}], s{sO} offen {ax}", ("k", j))
    def vload(x, j):
        x("s_mov_b32 exec_lo, 0xffff"); x("s_mov_b32 exec_hi, 0xffff")
        x(f"s_add_u32 s{sO}, s{sM}, {(j-8)*1024 & 0xffffffff}")
        for s in range(2):
            x.vmem(f"buffer_load_dwordx4 {vr(VF+8*j+4*s,4)}, v3, s[{sV}:{sV+3}], s{sO} offen offset:{s*512} {ax}", ("v", j))
        x("s_mov_b64 exec, -1")
    def wo_dma(x, g):
        if g % 4 == 0:
            x(f"s_add_u32 m0, s{sKW}, {WO_BASE[0] + g*1024}"); x(f"s_add_u32 s{sL}, s{sKHh}, {g*8192}")
        x.vmem(f"buffer_load_dwordx4 v{4+(g%4)}, s[{sWO}:{sWO+3}], s{sL} offen offset:{(g%4)*1024} {cfg['aux_w2']} lds", "wo")
    LA = int(cfg.get("attn_la", 10))
    kload(a, 0)
    for j in range(LA):
        if j < 9: kload(a, j + 1)
        vload(a, j)
    a(f"v_mov_b32 v14, {L_CNT}"); a("v_mov_b32 v15, 1")
    if cfg.get("hold") and LA >= 10: lds_count(a, 14, 15, C_HOLD)
    a(f"s_lshr_b32 s{sTmp}, s{sw4}, 1"); a(f"s_lshl_b32 s{sTmp}, s{sTmp}, 16"); a(f"s_and_b32 s{sTmp2}, s{sw4}, 1"); a(f"s_lshl_b32 s{sTmp2}, s{sTmp2}, 14")
    a(f"s_add_u32 s{sKW}, s{sTmp}, s{sTmp2}"); a(f"s_lshl_b32 s{sKHh}, s{sw4}, 17")
    sched = {}
    for n in range(18):
        j = n + LA
        if j <= 9: sched[n] = ([lambda x, j=j: kload(x, j + 1)] if j < 9 else []) + [lambda x, j=j: vload(x, j)]
        if j == 9 and cfg.get("hold"): sched[n].append(lambda x: lds_count(x, 14, 15, C_HOLD))
    n0 = int(cfg.get("wo_n0", 10 - LA))
    if cfg.get("wo_by", "B") == "A":
        for g in range(16): sched.setdefault(min(n0 + g // 2, 17), []).append(lambda x, g=g: wo_dma(x, g))
    cfg["_sched"] = sched
    stamp(a, cfg, 3)
    saved = list(a.vm)
    stamp(a, cfg, 4)
    attn_fast(a, cfg)
    a("L_attn_done:")
    stamp(a, cfg, 5)
    a.vm = ["x"]
    a(f"s_lshl_b32 s{sO}, s{sRB2}, 5"); a(f"s_add_u32 s{sO}, s{sO}, s{sHD}"); a(f"s_lshl_b32 s{sO}, s{sO}, 7"); a(f"s_add_u32 s{sO}, s{sO}, {WS_F2}")
    publish(a, f"s{sO}", 4)
    a(f"v_mov_b32 v6, {L_CNT}"); a("v_mov_b32 v5, 1")
    if cfg.get("wo_by", "B") == "A": lds_count(a, 6, 5, C_WO)
    stamp(a, cfg, 6)
    OF, ACC, XR, WF = 16, 96, 128, 144
    a(f"s_lshr_b32 s{sKH}, s{sw4}, 1"); a(f"s_and_b32 s{sT1}, s{sw4}, 1"); a(f"s_add_u32 s{sT1}, s{sT1}, s{sTT}")
    a(f"s_lshl_b32 s{sTmp}, s{sCB2}, 7"); a(f"s_lshl_b32 s{sTmp2}, s{sKH}, 6"); a(f"s_add_u32 s{sTmp}, s{sTmp}, s{sTmp2}")
    a("v_lshrrev_b32 v7, 5, v0"); a("v_lshlrev_b32 v8, 4, v7"); a(f"v_add_u32 v8, s{sTmp}, v8")
    a("v_and_b32 v9, 31, v0"); a(f"s_lshl_b32 s{sTmp2}, s{sT1}, 5"); a(f"v_add_u32 v9, s{sTmp2}, v9")
    a("v_lshl_add_u32 v11, v9, 10, v8")
    a(f"s_lshl_b32 s{sO}, s{sRB2}, 5"); a(f"s_lshl_b32 s{sTmp}, s{sKH}, 4"); a(f"s_add_u32 s{sO}, s{sO}, s{sTmp}"); a(f"s_lshl_b32 s{sO}, s{sO}, 7"); a(f"s_add_u32 s{sO}, s{sO}, {WS_F2}")
    a("v_and_b32 v12, 15, v0"); a("v_lshlrev_b32 v12, 7, v12"); a(f"v_add_u32 v12, s{sO}, v12")
    a(f"s_lshl_b32 s{sTmp}, s{sKH}, 16"); a(f"s_add_u32 s{sTmp}, s{sTmp}, {WO_BASE[0]}")
    tr_addr2(a, 14, f"s{sTmp}")
    a(f"s_lshl_b32 s{sTmp}, s{sKH}, 6"); a(f"v_xor_b32 v14, s{sTmp}, v14"); a(f"v_xor_b32 v15, s{sTmp}, v15")
    lds_spin(a, 6, 7, C_POLL, int(cfg.get("poll_cnt", 4)), sleep=2)
    stamp(a, cfg, 7)
    flag_poll(a, 12, 13, 16)
    a(f"s_lshl_b32 s{sO}, s{sT1}, 5"); a(f"s_lshl_b32 s{sTmp}, s{sKH}, 4"); a(f"s_add_u32 s{sO}, s{sO}, s{sTmp}"); a(f"s_lshl_b32 s{sO}, s{sO}, 10"); a(f"s_add_u32 s{sO}, s{sO}, {WS_O}")
    for n in range(16):
        if n and n % 4 == 0: a(f"s_add_u32 s{sO}, s{sO}, 4096")
        a.vmem(f"buffer_load_dwordx4 {vr(OF+4*n,4)}, v2, s[{sWS}:{sWS+3}], s{sO} offen offset:{(n%4)*1024} sc1", ("o", n))
    stamp(a, cfg, 8)
    lds_spin(a, 6, 7, C_WO, 4)
    def reads(n):
        return [f"ds_read_b64_tr_b16 {vr(WF+8*(n%4)+4*t+2*sec,2)}, v{14+t} offset:{n*2048 + sec*1024}" for t in range(2) for sec in range(2)]
    for n in range(3):
        for r in reads(n): a.lds(r, ("f", n))
    for n in range(16):
        nxt = reads(n + 3) if n < 13 else []
        a.wait(vm=("o", n), lg=("f", n))
        for t in range(2):
            acc = vr(ACC + 16*t, 16)
            a(f"v_mfma_f32_32x32x16_bf16 {acc}, {vr(WF+8*(n%4)+4*t,4)}, {vr(OF+4*n,4)}, {'0' if n == 0 else acc}")
            for r in nxt[2*t:2*t+2]: a.lds(r, ("f", n + 3))
    stamp(a, cfg, 9)
    a(f"s_lshl_b32 s{sTmp}, s{sw4}, 12"); a(f"s_add_u32 s{sTmp}, s{sTmp}, {L_EX}"); a(f"v_add_u32 v12, s{sTmp}, v2")
    a(f"s_xor_b32 s{sTmp}, s{sw4}, 2"); a(f"s_lshl_b32 s{sTmp}, s{sTmp}, 12"); a(f"s_add_u32 s{sTmp}, s{sTmp}, {L_EX}"); a(f"v_add_u32 v13, s{sTmp}, v2")
    for q in range(4): a.lds(f"ds_write_b128 v12, {vr(ACC+16+4*q,4)} offset:{q*1024}", "ex")
    a(f"s_and_b32 s{sTmp}, s{sw4}, 1"); a(f"s_lshl_b32 s{sTmp}, s{sTmp}, 1"); a(f"s_add_u32 s{sTmp}, s{sTmp}, s{sKH}"); a(f"s_lshl_b32 s{sTmp}, s{sTmp}, 12")
    a(f"v_add_u32 v12, s{sTmp}, v2"); a("v_add_u32 v10, 0x10000, v12")
    a.wait(lg="all"); a("s_barrier")
    PT = 16
    for p in range(5):
        for q in range(4):
            if p < 4: a.lds(f"ds_read_b128 {vr(PT+16*p+4*q,4)}, v{12 if p < 2 else 10} offset:{(p&1)*16384 + q*1024}", ("p", p))
            else: a.lds(f"ds_read_b128 {vr(PT+16*p+4*q,4)}, v13 offset:{q*1024}", ("p", p))
    for p in range(5):
        a.wait(lg=("p", p))
        for q in range(8): a(f"v_pk_add_f32 {vr(ACC+2*q,2)}, {vr(ACC+2*q,2)}, {vr(PT+16*p+2*q,2)}")
    for q in range(8): a(f"v_cvt_pk_bf16_f32 v{XR+q}, v{ACC+2*q}, v{ACC+2*q+1}")
    srd(a, R0, pOUT, 0x200000)
    for jp in range(2):
        a(f"v_permlane32_swap_b32 v{XR+4*jp}, v{XR+4*jp+2}"); a(f"v_permlane32_swap_b32 v{XR+4*jp+1}, v{XR+4*jp+3}")
        a.vmem(f"buffer_store_dwordx4 {vr(XR+4*jp,4)}, v11, s[{R0}:{R0+3}], 0 offen offset:{jp*32} {cfg.get('aux_out', '')}", "out")
    return saved

def p2_B(a, cfg):
    ACC, HR, WF, XR = 16, 176, 160, 136
    D = 8
    sH0, sH1 = R5, R3
    sL = sL2
    a(f"s_mul_i32 s{sKHh}, s{sw4}, {22*1024}")
    def w_ops(n): return [lambda: w2_op(a, cfg, n, 0), lambda: w2_op(a, cfg, n, 1)]
    def h_ops(n):
        def h(t):
            if t == 0: a(f"s_add_u32 s{sM}, s{sKHh}, {n*1024}")
            a.vmem(f"buffer_load_dwordx4 {vr(HR+8*(n%D)+4*t,4)}, v2, s[{(sH0,sH1)[t]}:{(sH0,sH1)[t]+3}], s{sM} offen sc1", ("h", n))
        return [lambda: h(0), lambda: h(1)]
    WD = int(cfg.get("w2_pre", 7)); W0 = int(cfg.get("w2_prepub", WD))
    WG0 = int(cfg.get("w2_gelu", 7))
    if not WG0: lds_spin(a, 12, 7, C_RING, 4)
    for n in range(WG0, W0):
        for o in w_ops(n): o()
    a(f"s_mul_i32 s{sTmp}, s{sT1}, {86*1024}"); a(f"s_add_u32 s{sTmp}, s{sTmp}, {WS_H}")
    sub_srd(a, sH0, f"s{sTmp}", 86 * 1024)
    a(f"s_xor_b32 s{sTmp2}, s{sT1}, 1"); a(f"s_mul_i32 s{sTmp}, s{sTmp2}, {86*1024}"); a(f"s_add_u32 s{sTmp}, s{sTmp}, {WS_H}")
    sub_srd(a, sH1, f"s{sTmp}", 86 * 1024)
    tr_addr2(a, 10, f"s{sL}")
    a(f"v_xor_b32 v10, s{sKH}, v10"); a(f"v_xor_b32 v11, s{sKH}, v11")
    a("v_min_u32 v4, 11, v0"); a("v_lshrrev_b32 v5, 1, v4"); a(f"s_mul_i32 s{sTmp}, s{sw4}, 11"); a(f"s_lshr_b32 s{sTmp}, s{sTmp}, 1"); a(f"v_add_u32 v5, s{sTmp}, v5")
    a("v_cmp_gt_u32 vcc, 8, v5"); a("v_xor_b32 v6, 8, v5"); a("v_add_u32 v7, -8, v5"); a("v_cndmask_b32 v5, v7, v6, vcc")
    a("v_mov_b32 v6, 128"); a("v_mov_b32 v7, 256"); a("v_cndmask_b32 v6, v6, v7, vcc")
    a("v_and_b32 v4, 1, v4"); a(f"v_add_u32 v4, s{sTT}, v4"); a("v_lshrrev_b32 v7, 2, v4"); a("v_lshl_add_u32 v5, v7, 4, v5"); a("v_mul_u32_u24 v5, 384, v5")
    a("v_and_b32 v4, 3, v4"); a("v_lshl_add_u32 v5, v4, 2, v5"); a("v_add_u32 v5, v5, v6"); a(f"v_add_u32 v3, {WS_F1}, v5")
    a.wait(vm="xb")
    for j in range(4):
        for d in range(2):
            x, bb, o = XR + 2*j + d, XR + 8 + 2*j + d, ACC + 4*j + 2*d
            a(f"v_lshlrev_b32 v14, 16, v{x}"); a(f"v_lshlrev_b32 v15, 16, v{bb}"); a(f"v_add_f32 v{o}, v14, v15")
            a(f"v_and_b32 v14, 0xffff0000, v{x}"); a(f"v_and_b32 v15, 0xffff0000, v{bb}"); a(f"v_add_f32 v{o+1}, v14, v15")
    f1_addr(a, 1); publish(a, f"s{sO}", 6, "out")
    if cfg.get('wo_who', 'A8') == 'B': lds_count(a, 12, 13, C_WO)
    stamp(a, cfg, 9)
    stamp_dump(a, cfg, 0, 96)
    stamp(a, cfg, 0)
    WP = int(cfg.get("w2_prefill", WD))
    for n in range(W0, WP):
        for o in w_ops(n): o()
    if cfg.get("hold"): lds_spin(a, 12, 7, C_HOLD, 4, sleep=1)
    stamp(a, cfg, 1)
    flag_poll(a, 3, 4, 12)
    stamp(a, cfg, 2)
    if cfg.get("prio", True): a(f"s_setprio {cfg.get('prioB2', 0)}")
    DI = int(cfg.get("p2_depth", 5))
    for n in range(max(DI, WD)):
        if n < DI:
            for o in h_ops(n): o()
        if WP <= n < WD:
            for o in w_ops(n): o()
    def reads(n):
        return [f"ds_read_b64_tr_b16 {vr(WF+8*(n&1)+4*t+2*sec,2)}, v{10+t} offset:{(n%D)*2048 + sec*1024}" for t in range(2) for sec in range(2)]
    gwo = 0
    a.wait(vm=("w", 0))
    for r in reads(0): a.lds(r, ("f", 0))
    for n in range(22):
        ops = (h_ops(n + DI) if n + DI < 22 else [None, None]) + (w_ops(n + WD) if n + WD < 22 else [None, None])
        if cfg.get('wo_who') == 'S' and n + WD >= 22 and gwo < 16:
            g0 = gwo; gwo += 4
            ops[2] = lambda g0=g0: (wo_op(a, cfg, g0), wo_op(a, cfg, g0 + 1)); ops[3] = lambda g0=g0: (wo_op(a, cfg, g0 + 2), wo_op(a, cfg, g0 + 3))
        if cfg.get('wo_who') == 'S' and n == 21:
            a.wait(vm="wo"); lds_count(a, 12, 13, C_WO)
        if n == int(cfg.get('poll_n', 12)): lds_count(a, 12, 13, C_POLL)
        if n < 21:
            a.wait(vm=("w", n + 1))
            for r in reads(n + 1): a.lds(r, ("f", n + 1))
        a.wait(lg=("f", n), vm=("h", n))
        for tt in range(2):
            for ft in range(2):
                acc = vr(ACC + 16*(2*tt+ft), 16)
                a(f"v_mfma_f32_32x32x16_bf16 {acc}, {vr(WF+8*(n&1)+4*ft,4)}, {vr(HR+8*(n%D)+4*tt,4)}, {'0' if (n == 0 and tt+ft) else acc}")
                if ops[2*tt+ft]: ops[2*tt+ft]()
        if n in (0, 5, 10, 15, 21): stamp(a, cfg, 3 + (0, 5, 10, 15, 21).index(n))
    a(f"v_add_u32 v14, s{sL}, v2"); a(f"s_lshl_b32 s{sTmp}, s{sw4}, 12"); a(f"v_xor_b32 v14, s{sTmp}, v14")
    for t in range(4):
        if t: a(f"v_xor_b32 v15, {t*4096}, v14")
        for q in range(4): a.lds(f"ds_write_b128 v{15 if t else 14}, {vr(ACC+16*t+4*q,4)} offset:{q*1024}", "d")
    a.wait(lg="all"); stamp(a, cfg, 8); a("s_barrier")

def build(cfg):
    cfg = dict(cfg)
    a = Asm()
    a("s_cmp_ge_u32 s2, 256"); a("s_cbranch_scc1 L_end")
    if cfg.get("stamp"):
        for i in range(NSTAMP): a(f"s_mov_b32 s{STAMP0+2*i}, 0")
    stamp(a, cfg, 0, True)
    prologue(a, cfg)
    if cfg.get("dbgspan"): a("s_waitcnt lgkmcnt(0)"); a(f"s_mov_b32 s10, s{STAMP0}")
    a(f"s_cmp_lt_u32 s{sW}, 4"); a("s_cbranch_scc1 L_A")
    B = Asm(); B.uid = 1000
    p1_B(B, cfg); p2_B(B, cfg)
    if cfg.get("stamp"): B("s_waitcnt vmcnt(0)"); stamp(B, cfg, 10, True); stamp_dump(B, cfg, 0x20000, 16)
    B("s_endpgm")
    X = Asm(); X.uid = 2000
    X("L_A:"); X(f"s_cmp_ge_u32 s{sCB}, 8"); X("s_cbranch_scc1 L_AY")
    p1_A(X, "X", cfg); stamp_dump(X, cfg, 0, 16); X("s_branch L_A2")
    Y = Asm(); Y.uid = 3000
    Y("L_AY:"); p1_A(Y, "Y", cfg); stamp_dump(Y, cfg, 0, 16)
    A2 = Asm(); A2.uid = 4000
    A2("L_A2:"); A2("s_nop 15"); saved = p2_A(A2, cfg)
    if cfg.get("dbgspan"):
        A2("s_waitcnt vmcnt(0)"); A2("s_memrealtime s[100:101]"); A2("s_waitcnt lgkmcnt(0)")
        srd(A2, R6, pDBG, 256)
        A2("s_not_b32 s62, s10"); A2("v_mov_b32 v4, s62"); A2("v_mov_b32 v5, s100"); A2("v_mov_b32 v6, 0"); A2("s_mov_b64 exec, 1")
        A2(f"buffer_atomic_umax v4, v6, s[{R6}:{R6+3}], 0 offen offset:8"); A2(f"buffer_atomic_umax v5, v6, s[{R6}:{R6+3}], 0 offen offset:12")
        A2(f"s_cmp_lg_u32 s2, {cfg['dbgspan']}"); A2("s_cbranch_scc1 L_nodbg"); A2(f"s_cmp_lg_u32 s{sW}, 0"); A2("s_cbranch_scc1 L_nodbg")
        for i, sl in enumerate([0, 1, 2, 3, 5, 6, 7, 8, 9, 10]):
            A2(f"s_sub_u32 s62, s{STAMP0+2*sl}, s10"); A2("v_mov_b32 v4, s62"); A2(f"buffer_store_dword v4, v6, s[{R6}:{R6+3}], 0 offen offset:{16+4*i}")
        A2("L_nodbg:")
    elif cfg.get("stamp"): A2("s_waitcnt vmcnt(0)"); stamp(A2, cfg, 10, True); stamp_dump(A2, cfg, 0x20000, 16)
    A2("s_endpgm")
    S = Asm(); S.uid = 5000; S.vm = saved
    S("L_attn_slow:"); attn_slow(S, cfg); S("s_branch L_attn_done")
    E = Asm(); E("L_end:"); E("s_endpgm")
    body = a.text() + B.text() + X.text() + Y.text() + A2.text() + S.text() + E.text()
    name = KN + "_kernel"
    return file_text([(name, body, 256, 102, 0)], [(name, 256, 512, LDS_BYTES)])

if __name__ == "__main__":
    import sys
    cfg = dict(map1="8x4", map2="4x8", aux_x="", aux_w="", aux_w2="", prio=True)
    for kv in sys.argv[2:]:
        k, v = kv.split("=", 1)
        cfg[k] = {"True": True, "False": False}.get(v, v)
    if "bound2" in cfg: cfg["bound2"] = float(cfg["bound2"])
    open(sys.argv[1], "w").write(build(cfg))
```

```python
from asmlib import *
from layout import *

L_X = 0x0; L_W = 0x10000
L_CS = 0x24000; L_CNT = 0x24c00; L_VS = 0x25000
L_EX = 0x18000
WO_BASE = (0x10000, 0x1c000)
LDS_BYTES = 0x27400
C_CS, C_S1, C_S2, C_S3, C_RING, C_WO, C_POLL, C_HOLD, C_P1, C_P2, C_P3 = 0, 4, 8, 12, 16, 20, 24, 28, 32, 36, 40
SPIN_MAX = 400000
BOUND2 = 64.0 * 64.0
NEG = float("-inf")
WS_ST = 0x60000
WS_EPOCH = 0x70000
WS_F1 = 0x80000
WS_F2 = 0xA0000

pX, pQKV, pWO, pW1, pB1, pW2, pB2, pOUT, pDBG, pWS = 4, 6, 8, 12, 14, 16, 18, 20, 22, 24
R0, sWS, R2, R3, R4, R5, R6 = 28, 32, 36, 40, 44, 48, 52
sW, sw4, sRB, sCB, sROT, sN = 56, 57, 58, 59, 60, 61
sO, sKC, sTmp, sTmp2, sA, sB = 62, 63, 64, 65, 66, 67
sCol, sT0, sLdsW, sLdsX, sTok = 68, 69, 70, 71, 72
sRB2, sCB2, sTT = 76, 77, 78
sHD, sM, sKH, sT1, sKHh = 68, 69, 70, 71, 73
sKW2, sL2, sWoG, sD = 26, 27, 79, 74
sRBa, sCBa, sTTa = 10, 11, 75
STAMP0 = 80; NSTAMP = 11

def stamp(a, cfg, i, force=False):
    if cfg.get("stamp") == "light" and not force: return
    if getattr(a, "mute", False) and not force: return
    if cfg.get("stamp"):
        a(f"{'s_memtime' if cfg.get('stamp') == 'cyc' else 's_memrealtime'} s[{STAMP0+2*i}:{STAMP0+2*i+1}]")
def stamp_dump(a, cfg, base, v):
    if not cfg.get("stamp") or (cfg.get("stamp") == "light" and base == 0): return
    a("s_waitcnt lgkmcnt(0)"); a.lg = []
    a(f"s_lshl_b32 s{sA}, s2, 3"); a(f"s_add_u32 s{sA}, s{sA}, s{sW}"); a(f"s_lshl_b32 s{sA}, s{sA}, 6"); a(f"s_add_u32 s{sA}, s{sA}, {base}")
    for i in range(12): a(f"v_mov_b32 v{v+i}, {'s%d' % (STAMP0+2*i) if i < NSTAMP else 0}")
    a(f"v_mov_b32 v{v+12}, 0"); a("s_mov_b64 exec, 1")
    for q in range(3): a.vmem(f"buffer_store_dwordx4 {vr(v+4*q,4)}, v{v+12}, s[{sWS}:{sWS+3}], s{sA} offen offset:{16*q}", "stamp")
    a("s_mov_b64 exec, -1")
    for i in range(NSTAMP): a(f"s_mov_b32 s{STAMP0+2*i}, 0")

def srd(a, d, p, size):
    a(f"s_mov_b32 s{d}, s{p}"); a(f"s_mov_b32 s{d+1}, s{p+1}"); a(f"s_mov_b32 s{d+2}, {size}"); a(f"s_mov_b32 s{d+3}, 0x20000")
def sub_srd(a, d, off_s, size):
    a(f"s_add_u32 s{d}, s{pWS}, {off_s}"); a(f"s_addc_u32 s{d+1}, s{pWS+1}, 0"); a(f"s_mov_b32 s{d+2}, {size}"); a(f"s_mov_b32 s{d+3}, 0x20000")
def lds_spin(a, vaddr, vtmp, off, target, sleep=0):
    lp = a.label("spin"); lq = a.label("spinx")
    a(f"s_mov_b32 s{sA}, 0")
    a(f"{lp}:")
    a(f"ds_read_b32 v{vtmp}, v{vaddr} offset:{off}")
    a(f"s_add_u32 s{sA}, s{sA}, 1"); a(f"s_cmp_gt_u32 s{sA}, {SPIN_MAX}"); a(f"s_cbranch_scc1 {lq}")
    a("s_waitcnt lgkmcnt(0)"); a(f"v_readfirstlane_b32 s{sB}, v{vtmp}"); a(f"s_cmp_ge_u32 s{sB}, {target}"); a(f"s_cbranch_scc1 {lq}")
    if sleep: a(f"s_sleep {sleep}")
    a(f"s_branch {lp}")
    a(f"{lq}:")
    a("s_waitcnt lgkmcnt(0)"); a.lg = []
def lds_count(a, vaddr, vone, off):
    a("s_mov_b64 exec, 1"); a.lds(f"ds_add_u32 v{vaddr}, v{vone} offset:{off}", "cnt"); a("s_mov_b64 exec, -1")
def flag_poll(a, vaddr, vdat, sleep=2):
    lp = a.label("poll"); lq = a.label("pollx")
    a(f"s_mov_b32 s{sA}, 0")
    a(f"{lp}:")
    a(f"buffer_load_dword v{vdat}, v{vaddr}, s[{sWS}:{sWS+3}], 0 offen sc1")
    a(f"s_add_u32 s{sA}, s{sA}, 1"); a(f"s_cmp_gt_u32 s{sA}, {SPIN_MAX}"); a(f"s_cbranch_scc1 {lq}")
    a("s_waitcnt vmcnt(0)")
    a(f"v_cmp_ne_u32 vcc, s{sN}, v{vdat}")
    a("s_nop 4"); a("s_cmp_eq_u64 vcc, 0"); a(f"s_cbranch_scc1 {lq}")
    a(f"s_sleep {sleep}"); a(f"s_branch {lp}")
    a(f"{lq}:")
    a("s_waitcnt vmcnt(0)"); a.vm = []
def group_poll(a, cfg, vaddr, vdat, vcnt, vone, coff, sleep):
    if not cfg.get("poll1", True):
        flag_poll(a, vaddr, vdat, sleep); return
    lo = a.label("gp_o"); le = a.label("gp_e")
    a(f"s_cmp_lg_u32 s{sw4}, 0"); a(f"s_cbranch_scc1 {lo}")
    flag_poll(a, vaddr, vdat, sleep)
    a("s_mov_b64 exec, 1"); a(f"ds_add_u32 v{vcnt}, v{vone} offset:{coff}"); a("s_mov_b64 exec, -1")
    a(f"s_branch {le}")
    a(f"{lo}:")
    lds_spin(a, vcnt, vdat, coff, 1, sleep=1)
    a("s_waitcnt vmcnt(0)")
    a(f"{le}:")
    a.vm = []
def publish(a, off_s, v, tag="all"):
    a.wait(vm=tag)
    a(f"v_mov_b32 v{v}, s{sN}"); a(f"v_mov_b32 v{v+1}, 0"); a("s_mov_b64 exec, 1")
    a.vmem(f"buffer_store_dword v{v}, v{v+1}, s[{sWS}:{sWS+3}], {off_s} offen sc1", "flag")
    a("s_mov_b64 exec, -1")
def f1_addr(a, cls):
    a(f"s_lshl_b32 s{sO}, s{sRB}, 4"); a(f"s_add_u32 s{sO}, s{sO}, s{sCB}"); a(f"s_lshl_b32 s{sO}, s{sO}, 8")
    a(f"s_lshl_b32 s{sTmp}, s{sw4}, 2"); a(f"s_add_u32 s{sO}, s{sO}, s{sTmp}"); a(f"s_add_u32 s{sO}, s{sO}, {WS_F1 + cls*128}")
def tag_load(a):
    a(f"s_add_u32 s{sA}, s{pWS}, {WS_EPOCH}"); a(f"s_addc_u32 s{sB}, s{pWS+1}, 0"); a(f"s_load_dword s{sN}, s[{sA}:{sB}], 0")
def tag_make(a):
    a(f"s_mul_i32 s{sN}, s{sN}, 0x9e3779b1"); a(f"s_add_u32 s{sN}, s{sN}, 0x7f4a7c15")
def stats_issue(a, v, vaddr):
    a(f"v_and_b32 v{vaddr}, 31, v0"); a(f"s_lshl_b32 s{sTmp}, s{sTok}, 5"); a(f"v_add_u32 v{vaddr}, s{sTmp}, v{vaddr}"); a(f"v_lshlrev_b32 v{vaddr}, 4, v{vaddr}")
    a(f"v_add_u32 v{vaddr}, {WS_ST}, v{vaddr}")
    a.vmem(f"buffer_load_dwordx4 {vr(v,4)}, v{vaddr}, s[{sWS}:{sWS+3}], 0 offen sc1", "stats")
def stats_check(a, v, vaddr):
    a.wait(vm="stats")
    lp = a.label("stat"); lq = a.label("statx")
    a(f"s_mov_b32 s{sA}, 0")
    a(f"{lp}:")
    a(f"v_cmp_ne_u32 vcc, s{sN}, v{v+1}"); a(f"v_cmp_ne_u32_e64 s[{sTmp}:{sTmp2}], s{sN}, v{v+3}")
    a("s_nop 4"); a(f"s_or_b64 vcc, vcc, s[{sTmp}:{sTmp2}]"); a(f"s_cbranch_scc0 {lq}")
    a(f"s_add_u32 s{sA}, s{sA}, 1"); a(f"s_cmp_gt_u32 s{sA}, {SPIN_MAX}"); a(f"s_cbranch_scc1 {lq}")
    a(f"buffer_load_dwordx4 {vr(v,4)}, v{vaddr}, s[{sWS}:{sWS+3}], 0 offen sc1"); a("s_waitcnt vmcnt(0)")
    a(f"s_branch {lp}")
    a(f"{lq}:")

class Fill:
    def __init__(self, fn=None):
        self.q = []
        if fn: self.add(fn)
    def add(self, fn):
        t = Asm(); t.uid = 9000 + len(self.q); fn(t); self.q += t.lines
    def emit(self, a, k):
        for l in self.q[:k]: a(l)
        self.q = self.q[k:]
    def flush(self, a): self.emit(a, len(self.q))

def mapping(a, cfg):
    m1, m2 = cfg["map1"], cfg["map2"]
    a(f"s_and_b32 s{sA}, s2, 7"); a(f"s_lshr_b32 s{sB}, s2, 3")
    t, u = sTmp, sTmp2
    if m1 == "8x4":
        a(f"s_lshr_b32 s{t}, s{sA}, 2"); a(f"s_lshl_b32 s{t}, s{t}, 3"); a(f"s_lshr_b32 s{u}, s{sB}, 2"); a(f"s_add_u32 s{sRB}, s{t}, s{u}")
        a(f"s_and_b32 s{t}, s{sB}, 3"); a(f"s_lshl_b32 s{sROT}, s{t}, 1"); a(f"s_add_u32 s{sROT}, s{sROT}, s{u}")
        a(f"s_and_b32 s{u}, s{sA}, 3"); a(f"s_lshl_b32 s{u}, s{u}, 2"); a(f"s_add_u32 s{sCB}, s{t}, s{u}")
    elif m1 == "4x8":
        a(f"s_lshr_b32 s{t}, s{sA}, 1"); a(f"s_lshl_b32 s{t}, s{t}, 2"); a(f"s_lshr_b32 s{u}, s{sB}, 3"); a(f"s_add_u32 s{sRB}, s{t}, s{u}")
        a(f"s_and_b32 s{t}, s{sB}, 7"); a(f"s_lshl_b32 s{sROT}, s{u}, 1"); a(f"s_add_u32 s{sROT}, s{sROT}, s{t}")
        a(f"s_and_b32 s{u}, s{sA}, 1"); a(f"s_lshl_b32 s{u}, s{u}, 3"); a(f"s_add_u32 s{sCB}, s{t}, s{u}")
    elif m1 == "2x16":
        a(f"s_lshl_b32 s{t}, s{sA}, 1"); a(f"s_lshr_b32 s{u}, s{sB}, 4"); a(f"s_add_u32 s{sRB}, s{t}, s{u}")
        a(f"s_and_b32 s{sCB}, s{sB}, 15"); a(f"s_lshl_b32 s{sROT}, s{u}, 2"); a(f"s_add_u32 s{sROT}, s{sROT}, s{sCB}")
    a(f"s_and_b32 s{sROT}, s{sROT}, {int(cfg.get('rotmask', 7))}")
    if m2 == "4x8":
        a(f"s_lshl_b32 s{t}, s{sA}, 2"); a(f"s_lshr_b32 s{u}, s{sB}, 3"); a(f"s_add_u32 s{sRB2}, s{t}, s{u}"); a(f"s_and_b32 s{sCB2}, s{sB}, 7")
    elif m2 == "8x4":
        a(f"s_lshr_b32 s{t}, s{sA}, 1"); a(f"s_lshl_b32 s{t}, s{t}, 3"); a(f"s_lshr_b32 s{u}, s{sB}, 2"); a(f"s_add_u32 s{sRB2}, s{t}, s{u}")
        a(f"s_and_b32 s{t}, s{sA}, 1"); a(f"s_lshl_b32 s{t}, s{t}, 2"); a(f"s_and_b32 s{u}, s{sB}, 3"); a(f"s_add_u32 s{sCB2}, s{t}, s{u}")
    elif m2 == "16x2":
        a(f"s_lshr_b32 s{t}, s{sA}, 2"); a(f"s_lshl_b32 s{t}, s{t}, 4"); a(f"s_lshr_b32 s{u}, s{sB}, 1"); a(f"s_add_u32 s{sRB2}, s{t}, s{u}")
        a(f"s_and_b32 s{t}, s{sA}, 3"); a(f"s_lshl_b32 s{t}, s{t}, 1"); a(f"s_and_b32 s{u}, s{sB}, 1"); a(f"s_add_u32 s{sCB2}, s{t}, s{u}")
    a(f"s_lshl_b32 s{sTT}, s{sRB2}, 1")

def mapping_attn(a, cfg):
    m = cfg.get("mapa", "32x1")
    if m == "same":
        a(f"s_mov_b32 s{sRBa}, s{sRB2}"); a(f"s_mov_b32 s{sCBa}, s{sCB2}")
    elif m == "32x1":
        a(f"s_lshr_b32 s{sRBa}, s2, 3"); a(f"s_and_b32 s{sCBa}, s2, 7")
    elif m == "16x2":
        a(f"s_and_b32 s{sTmp}, s2, 7"); a(f"s_lshr_b32 s{sTmp2}, s2, 3")
        a(f"s_lshr_b32 s{sRBa}, s{sTmp}, 2"); a(f"s_lshl_b32 s{sRBa}, s{sRBa}, 4"); a(f"s_lshr_b32 s{sCBa}, s{sTmp2}, 1"); a(f"s_add_u32 s{sRBa}, s{sRBa}, s{sCBa}")
        a(f"s_and_b32 s{sCBa}, s{sTmp}, 3"); a(f"s_lshl_b32 s{sCBa}, s{sCBa}, 1"); a(f"s_and_b32 s{sTmp2}, s{sTmp2}, 1"); a(f"s_add_u32 s{sCBa}, s{sCBa}, s{sTmp2}")
    a(f"s_lshl_b32 s{sTTa}, s{sRBa}, 1")

def prologue(a, cfg):
    a("s_load_dwordx16 s[4:19], s[0:1], 0")
    a("s_load_dwordx4 s[20:23], s[0:1], 64")
    a("s_load_dwordx2 s[24:25], s[0:1], 80")
    a("v_lshrrev_b32 v1, 6, v0"); a("v_and_b32 v0, 63, v0"); a(f"v_readfirstlane_b32 s{sW}, v1")
    mapping(a, cfg)
    a(f"s_and_b32 s{sw4}, s{sW}, 3")
    a(f"s_mul_i32 s{sCol}, s{sCB}, 192"); a(f"s_mul_i32 s{sT0}, s{sCB}, 3")
    a(f"s_lshl_b32 s{sTok}, s{sRB}, 2"); a(f"s_add_u32 s{sTok}, s{sTok}, s{sw4}")

def read_addrs(a, vXA, vWA, base, tmp):
    a(f"v_lshrrev_b32 v{tmp}, 5, v0"); a(f"v_lshlrev_b32 v{tmp}, 3, v{tmp}"); a(f"v_bfe_u32 v{tmp+1}, v0, 2, 2"); a(f"v_add_u32 v{tmp}, v{tmp}, v{tmp+1}")
    a(f"v_mul_u32_u24 v{tmp+1}, 192, v{tmp}")
    a(f"v_bfe_u32 v{tmp}, v0, 4, 1"); a(f"v_lshl_add_u32 v{tmp+1}, v{tmp}, 5, v{tmp+1}")
    a(f"v_and_b32 v{tmp}, 3, v0"); a(f"v_lshl_add_u32 v{tmp+1}, v{tmp}, 3, v{tmp+1}")
    a(f"v_and_b32 v{tmp+2}, 31, v0"); a(f"v_lshlrev_b32 v{tmp+2}, 7, v{tmp+2}"); a(f"s_lshl_b32 s{sTmp}, s{sw4}, 12"); a(f"v_add_u32 v{tmp+2}, s{sTmp}, v{tmp+2}")
    a(f"v_lshrrev_b32 v{tmp}, 5, v0"); a(f"v_bfe_u32 v{tmp+3}, v0, 1, 3"); a(f"v_xor_b32 v{tmp+3}, v{tmp+3}, v{tmp}")
    for i in range(4):
        a(f"s_xor_b32 s{sTmp2}, s{sw4}, {i}")
        a(f"s_lshl_b32 s{sTmp}, s{sTmp2}, 1"); a(f"v_xor_b32 v{tmp}, s{sTmp}, v{tmp+3}"); a(f"v_lshl_add_u32 v{vXA+i}, v{tmp}, 4, v{tmp+2}")
        a(f"s_mul_i32 s{sTmp}, s{sTmp2}, 3072"); a(f"s_add_u32 s{sTmp}, s{sTmp}, {base}"); a(f"v_add_u32 v{vWA+i}, s{sTmp}, v{tmp+1}")
def split_hi_lo(a, v, hi, lo, t):
    a(f"v_cvt_pk_bf16_f32 v{hi}, v{v}, v{v}"); a(f"v_and_b32 v{t}, 0xffff0000, v{hi}"); a(f"v_sub_f32 v{t}, v{v}, v{t}"); a(f"v_cvt_pk_bf16_f32 v{lo}, v{t}, v{t}")
def w_aug(a, dst, cs, bias, t0, t1, t2, vM):
    split_hi_lo(a, cs, t0, t1, t2)
    a(f"v_bfi_b32 v{dst}, v{vM}, v{t0}, v{t1}")
    if bias is None: a(f"v_and_b32 v{dst+1}, 0xffff, v{t0}")
    else: a(f"v_bfi_b32 v{dst+1}, v{vM}, v{t0}, v{bias}")
def x_aug(a, dst, mean, inv, t0, t1, t2, t3, vM):
    a(f"v_mov_b32 v{vM}, 0xffff")
    a(f"v_sub_f32 v{t3}, 0, v{mean}")
    split_hi_lo(a, t3, dst, t1, t2)
    if inv is None:
        a(f"v_and_b32 v{dst+1}, 0xffff, v{t1}"); a(f"v_mov_b32 v{dst+2}, 0")
    else:
        split_hi_lo(a, inv, t0, t3, t2)
        a(f"v_bfi_b32 v{dst+1}, v{vM}, v{t1}, v{t0}"); a(f"v_and_b32 v{dst+2}, 0xffff, v{t3}")
    a(f"v_mov_b32 v{dst+3}, 0")
    a("v_cmp_gt_u32 vcc, 32, v0")
    for i in range(3): a(f"v_cndmask_b32 v{dst+i}, 0, v{dst+i}, vcc")
def selector(a, dst):
    a("v_bfe_u32 v5, v0, 4, 1"); a("v_and_b32 v7, 15, v0"); a("v_cmp_eq_u32 vcc, v5, v7")
    a("v_mov_b32 v5, 0x3f803f80"); a(f"v_cndmask_b32 v{dst}, 0, v5, vcc")
    for q in range(1, 4): a(f"v_mov_b32 v{dst+q}, v{dst}")
def cs_addr(a, vw, vrd, t0):
    a(f"s_mul_i32 s{sTmp}, s{sw4}, 768"); a(f"s_add_u32 s{sTmp}, s{sTmp}, {L_CS + t0*128}")
    a(f"v_lshlrev_b32 v{vw}, 2, v0"); a(f"v_and_b32 v{vrd}, 124, v{vw}"); a(f"v_add_u32 v{vw}, s{sTmp}, v{vw}"); a(f"v_add_u32 v{vrd}, {L_CS + t0*128}, v{vrd}")
def cs_publish(a, vCS, vw):
    a("s_mov_b64 exec, 0xffff")
    for t in range(3): a.lds(f"ds_write2_b32 v{vw}, v{vCS+4*t}, v{vCS+4*t+1} offset0:{t*32} offset1:{t*32+16}", "cs")
    a("s_mov_b64 exec, -1")
def cs_read(a, dst, vrd):
    for t in range(3):
        for w in range(4): a.lds(f"ds_read_b32 v{dst+4*t+w}, v{vrd} offset:{w*768 + t*128}", ("cs", t))
def cs_sum(a, d):
    a(f"v_add_f32 v{d}, v{d}, v{d+1}"); a(f"v_add_f32 v{d+2}, v{d+2}, v{d+3}"); a(f"v_add_f32 v{d}, v{d}, v{d+2}")
def mlp_scale(a, vRstd, vS, vInv, vA1, vB1):
    a(f"v_mul_f32 v{vS}, v{vRstd}, v{vRstd}"); a(f"v_mov_b32 v{vInv}, {f32(1.0+EPS)}")
    a(f"v_fmamk_f32 v{vS}, v{vS}, {f32(-EPS)}, v{vInv}"); a(f"v_rsq_f32 v{vS}, v{vS}")
    a(f"v_mul_f32 v{vS}, v{vS}, v{vRstd}"); a(f"v_rcp_f32 v{vInv}, v{vS}")
    a(f"v_mul_f32 v{vA1}, {f32(GELU_A)}, v{vS}")
    a(f"v_mul_f32 v{vB1}, v{vS}, v{vS}"); a(f"v_mul_f32 v{vB1}, v{vB1}, v{vS}"); a(f"v_mul_f32 v{vB1}, {f32(GELU_B)}, v{vB1}")
from fused_v2 import gelu_pk, gelu_sc
def h_store(a, pk, dt, vL16):
    a(f"s_add_u32 s{sTmp}, s{sT0}, {dt}"); a(f"s_cmp_lt_u32 s{sTmp}, 43")
    a(f"s_mov_b32 s{R5}, s{sWS}"); a(f"s_mov_b32 s{R5+1}, s{sWS+1}"); a(f"s_cselect_b32 s{R5+2}, s{sWS+2}, 0"); a(f"s_mov_b32 s{R5+3}, 0x20000")
    a(f"s_mul_i32 s{sO}, s{sTok}, 86"); a(f"s_lshl_b32 s{sTmp}, s{sTmp}, 1"); a(f"s_add_u32 s{sO}, s{sO}, s{sTmp}"); a(f"s_lshl_b32 s{sO}, s{sO}, 10"); a(f"s_add_u32 s{sO}, s{sO}, {WS_H}")
    for s in range(2):
        a.vmem(f"buffer_store_dwordx4 {vr(pk+4*s,4)}, v{vL16}, s[{R5}:{R5+3}], s{sO} offen offset:{s*1024} sc1", "out")
def l2_prefetch(a, cfg, v, RW, R2_):
    nsh = int(cfg["map2"].split("x")[0]); per = 1888 // nsh; nins = -(-per // 256); pw = -(-per // (4 * nins))
    a(f"s_and_b32 s{sTmp}, s{sRB2}, {nsh-1}"); a(f"s_mul_i32 s{sTmp}, s{sTmp}, {per}"); a(f"s_mul_i32 s{sTmp2}, s{sw4}, {pw}"); a(f"s_add_u32 s{sTmp}, s{sTmp}, s{sTmp2}")
    a(f"v_min_u32 v{v}, {pw-1}, v0"); a(f"v_add_u32 v{v}, s{sTmp}, v{v}"); a(f"v_lshlrev_b32 v{v}, 10, v{v}")
    a(f"s_lshl_b32 s{sTmp}, s{sCB2}, 7"); a(f"v_add_u32 v{v}, s{sTmp}, v{v}")
    for i in range(nins):
        if i: a(f"v_add_u32 v{v}, {4*pw*1024}, v{v}")
        a(f"v_add_u32 v{v+1}, {(-512*1024) & 0xffffffff}, v{v}")
        a.vmem(f"buffer_load_dword v1, v{v}, s[{RW}:{RW+3}], 0 offen {cfg.get('aux_pf', '')}", "pf")
        a.vmem(f"buffer_load_dword v1, v{v+1}, s[{R2_}:{R2_+3}], 0 offen {cfg.get('aux_pf', '')}", "pf")
def dpp_sum64(a, regs):
    for m in ("row_shr:1 row_mask:0xf bank_mask:0xf", "row_shr:2 row_mask:0xf bank_mask:0xf", "row_shr:4 row_mask:0xf bank_mask:0xf", "row_shr:8 row_mask:0xf bank_mask:0xf",
              "row_bcast:15 row_mask:0xa bank_mask:0xf", "row_bcast:31 row_mask:0xc bank_mask:0xf"):
        for v in regs: a(f"v_add_f32_dpp v{v}, v{v}, v{v} {m} bound_ctrl:0" if "shr" in m else f"v_add_f32_dpp v{v}, v{v}, v{v} {m}")

def p1_A(a, cfg):
    ACC, XF, WF, NB = 16, 64, 76, 3
    vXA, vWA, vCS, vSel, vSt, XA, WA, vM, T = 112, 116, 120, 132, 136, 140, 144, 156, 160
    PK, VT = 176, 200
    stamp(a, cfg, 1)
    a("s_waitcnt lgkmcnt(0)")
    tag_load(a)
    srd(a, R0, pX, 0x200000); srd(a, sWS, pWS, 0x10000000)
    a(f"s_lshl_b32 s{sTmp}, s{sRB}, 4"); a(f"s_add_u32 s{sTmp}, s{sTmp}, s{sCB}"); a(f"s_lshl_b32 s{sTmp}, s{sTmp}, 2"); a(f"s_add_u32 s{sTmp}, s{sTmp}, s{sw4}"); a(f"s_lshl_b32 s{sD}, s{sTmp}, 1")
    a(f"s_lshl_b32 s{sO}, s{sD}, 10"); a("v_lshlrev_b32 v2, 4, v0")
    for r in range(2): a.vmem(f"buffer_load_dwordx4 {vr(T+4*r,4)}, v2, s[{R0}:{R0+3}], s{sO} offen offset:{r*1024}", "row")
    if cfg.get("codepf", True):
        nopf = a.label("nopf"); here = a.label("here")
        a(f"s_lshr_b32 s{sTmp}, s2, 3"); a(f"s_cmp_ge_u32 s{sTmp}, 4"); a(f"s_cbranch_scc1 {nopf}")
        a(f"s_cmp_lg_u32 s{sW}, 1"); a(f"s_cbranch_scc1 {nopf}")
        a(f"s_getpc_b64 s[{R6}:{R6+1}]"); a(f"{here}:")
        a(f"s_sub_u32 s{R6}, s{R6}, {here}-{KN}_kernel"); a(f"s_subb_u32 s{R6+1}, s{R6+1}, 0")
        a(f"s_lshl_b32 s{sTmp}, s{sTmp}, 13"); a("v_lshlrev_b32 v3, 7, v0"); a(f"v_add_u32 v3, s{sTmp}, v3")
        a(f"v_min_u32 v3, L_attn_slow-{KN}_kernel, v3")
        a(f"global_load_dword v1, v3, s[{R6}:{R6+1}]")
        a(f"{nopf}:")
    read_addrs(a, vXA, vWA, L_W, 4)
    selector(a, vSel)
    cs_addr(a, 8, 9, 0)
    for t in range(3): a(f"v_mov_b32 v{WA+4*t+2}, 0"); a(f"v_mov_b32 v{WA+4*t+3}, 0")
    a("s_waitcnt lgkmcnt(0)"); tag_make(a)
    a("s_waitcnt vmcnt(0)"); a.vm = []
    a("s_mov_b32 s62, 0x3f803f80")
    for r in range(2):
        a(f"v_dot2_f32_bf16 v{4+2*r}, v{T+4*r}, s62, 0"); a(f"v_dot2_f32_bf16 v{5+2*r}, v{T+4*r}, v{T+4*r}, 0")
        for q in range(1, 4):
            a(f"v_dot2_f32_bf16 v{4+2*r}, v{T+4*r+q}, s62, v{4+2*r}"); a(f"v_dot2_f32_bf16 v{5+2*r}, v{T+4*r+q}, v{T+4*r+q}, v{5+2*r}")
    dpp_sum64(a, [4, 5, 6, 7])
    for r in range(2):
        m, q = 4 + 2*r, 5 + 2*r; d = T + 4*r
        a(f"v_mul_f32 v{d}, {f32(1/512)}, v{m}"); a(f"v_mul_f32 v{m}, v{d}, v{d}"); a(f"v_mul_f32 v{q}, {f32(1/512)}, v{q}"); a(f"v_sub_f32 v{q}, v{q}, v{m}")
        a(f"v_max_f32 v{q}, 0, v{q}"); a(f"v_add_f32 v{q}, {f32(EPS)}, v{q}"); a(f"v_rsq_f32 v{d+2}, v{q}")
        a(f"v_mov_b32 v{d+1}, s{sN}"); a(f"v_mov_b32 v{d+3}, s{sN}")
    a(f"s_lshl_b32 s{sO}, s{sD}, 4"); a(f"s_add_u32 s{sO}, s{sO}, {WS_ST}"); a("v_mov_b32 v4, 0")
    a("s_mov_b32 exec_lo, 0"); a("s_mov_b32 exec_hi, 0x80000000")
    for r in range(2): a.vmem(f"buffer_store_dwordx4 {vr(T+4*r,4)}, v4, s[{sWS}:{sWS+3}], s{sO} offen offset:{r*16} sc1", "stst")
    noc = a.label("nocnt")
    a(f"s_cmp_lg_u32 s{sW}, 2"); a(f"s_cbranch_scc1 {noc}")
    srd(a, R6, pDBG, 256); a("v_mov_b32 v5, 1"); a(f"s_and_b32 s{sTmp}, s2, 1"); a(f"s_lshl_b32 s{sTmp}, s{sTmp}, 7")
    a(f"buffer_atomic_add v5, v4, s[{R6}:{R6+3}], s{sTmp} offen")
    a(f"{noc}:")
    a("s_mov_b64 exec, -1")
    def reads(n):
        c, i = n >> 2, n & 3; b = n % NB
        r = [f"ds_read_b128 {vr(XF+4*b,4)}, v{vXA+i} offset:{(c & 3)*16384}"]
        for t in range(3):
            for sec in range(2):
                r.append(f"ds_read_b64_tr_b16 {vr(WF+12*b+4*t+2*sec,2)}, v{vWA+i} offset:{(c & 3)*12288 + t*64 + sec*768}")
        return r
    a("s_barrier")
    stamp(a, cfg, 2)
    for n in range(2):
        for r in reads(n): a.lds(r, ("f", n))
    fill = Fill()
    SN = int(cfg.get("st_n", 18))
    for n in range(32):
        c, i = n >> 2, n & 3; b = n % NB
        if i == 2 and c < 7:
            a("s_barrier")
            if c in (0, 3): stamp(a, cfg, 3 + c // 3)
        if n == SN: stats_issue(a, vSt, 10)
        if n == SN + 6:
            stats_check(a, vSt, 10)
            fill.add(lambda f: x_aug(f, XA, vSt, None, T, T + 1, T + 2, T + 3, vM))
        if n == 30: cs_publish(a, vCS, 8)
        a.wait(lg=("f", n))
        nxt = reads(n + 2) if n < 30 else []
        k = 0
        for t in range(3):
            wf = vr(WF + 12*b + 4*t, 4); xf = vr(XF + 4*b, 4); acc = vr(ACC + 16*t, 16)
            a(f"v_mfma_f32_32x32x16_bf16 {acc}, {wf}, {xf}, {'0' if n == 0 else acc}")
            take = 3 if t == 0 else 2
            for r in nxt[k:k+take]: a.lds(r, ("f", n + 2))
            k += take
            if i == 0: a(f"v_mfma_f32_16x16x32_bf16 {vr(vCS+4*t,4)}, {vr(vSel,4)}, {wf}, {'0' if n == 0 else vr(vCS+4*t,4)}")
            fill.emit(a, 2)
        if n == 30:
            a.wait(lg="all"); a("s_barrier")
            stamp(a, cfg, 5)
            cs_read(a, vCS, 9)
    fill.flush(a)
    for t in range(3):
        a.wait(lg=("cs", t)); cs_sum(a, vCS + 4*t)
        w_aug(a, WA + 4*t, vCS + 4*t, None, T, T + 1, T + 2, vM)
        acc = vr(ACC + 16*t, 16)
        a(f"v_mfma_f32_32x32x16_bf16 {acc}, {vr(WA+4*t,4)}, {vr(XA,4)}, {acc}")
    stamp(a, cfg, 6)
    if cfg.get("prioA"): a(f"s_setprio {cfg['prioA']}")
    a(f"s_mul_i32 s{sTmp}, s{sw4}, 2304"); a(f"s_add_u32 s{sTmp}, s{sTmp}, {L_VS}")
    a("v_and_b32 v4, 31, v0"); a("v_mul_u32_u24 v4, 72, v4"); a("v_lshrrev_b32 v5, 5, v0"); a("v_lshl_add_u32 v4, v5, 3, v4"); a(f"v_add_u32 v4, s{sTmp}, v4")
    a("v_lshlrev_b32 v6, 2, v5"); a("v_bfe_u32 v7, v0, 2, 2"); a("v_add_u32 v6, v6, v7"); a("v_mul_u32_u24 v6, 72, v6")
    a("v_bfe_u32 v7, v0, 4, 1"); a("v_lshl_add_u32 v6, v7, 5, v6"); a("v_and_b32 v8, 3, v0"); a("v_lshl_add_u32 v6, v8, 3, v6"); a(f"v_add_u32 v6, s{sTmp}, v6")
    a("v_lshlrev_b32 v7, 16, v7"); a("v_lshl_add_u32 v7, v5, 8, v7"); a("v_and_b32 v8, 15, v0"); a("v_lshl_add_u32 v7, v8, 4, v7")
    a(f"s_lshl_b32 s{sKC}, s{sTok}, 10"); a(f"s_add_u32 s{sKC}, s{sKC}, {WS_QK}")
    for t in range(3):
        z = ACC + 16*t; pk = PK + 8*t
        a(f"s_add_u32 s{sTmp}, s{sT0}, {t}"); a(f"s_cmp_lt_u32 s{sTmp}, 16"); a(f"s_cselect_b32 s{sTmp2}, {f32(QSCALE)}, 1.0")
        a(f"v_mul_f32 v9, s{sTmp2}, v{vSt+2}")
        a(f"s_lshl_b32 s{sO}, s{sTmp}, 17"); a(f"s_add_u32 s{sO}, s{sO}, s{sKC}")
        for q in range(16): a(f"v_mul_f32 v{z+q}, v{z+q}, v9")
        for q in range(8): a(f"v_cvt_pk_bf16_f32 v{pk+q}, v{z+2*q}, v{z+2*q+1}")
        lv = a.label("vt"); le = a.label("vte")
        a(f"s_cmp_ge_u32 s{sTmp}, 32"); a(f"s_cbranch_scc1 {lv}")
        a(f"buffer_store_dwordx4 {vr(pk,4)}, v2, s[{sWS}:{sWS+3}], s{sO} offen sc1")
        a(f"s_add_u32 s{sO}, s{sO}, 65536")
        a(f"buffer_store_dwordx4 {vr(pk+4,4)}, v2, s[{sWS}:{sWS+3}], s{sO} offen sc1")
        a(f"s_branch {le}")
        a(f"{lv}:")
        for j in range(4): a(f"ds_write_b64 v4, {vr(pk+2*j,2)} offset:{j*16}")
        for s in range(2):
            for sec in range(2): a(f"ds_read_b64_tr_b16 {vr(VT+8*(t&1)+4*s+2*sec,2)}, v6 offset:{(16*s + 8*sec)*72}")
        a("s_waitcnt lgkmcnt(0)")
        for s in range(2): a(f"buffer_store_dwordx4 {vr(VT+8*(t&1)+4*s,4)}, v7, s[{sWS}:{sWS+3}], s{sO} offen offset:{s*512} sc1")
        a(f"{le}:")
        a.vm += ["out", "out"]
    stamp(a, cfg, 7)
    attn_setup(a, cfg)
    stamp(a, cfg, 8)
    f1_addr(a, 0); publish(a, f"s{sO}", 14)
    if cfg.get("l2pf", "B8") == "A":
        srd(a, R4, pWO, 524288); srd(a, R5, pW2, 1409024); l2_prefetch(a, cfg, 14, R4, R5)
    stamp(a, cfg, 9)

vW = 128
def p2w_setup(a):
    a("v_lshrrev_b32 v132, 3, v0"); a("v_bfe_u32 v133, v0, 4, 1"); a("v_lshlrev_b32 v133, 2, v133"); a("v_and_b32 v134, 7, v0"); a("v_xor_b32 v134, v134, v133"); a("v_lshlrev_b32 v134, 4, v134")
    a(f"v_lshl_add_u32 v{vW}, v132, 10, v134"); a(f"s_lshl_b32 s{sWoG}, s{sCB2}, 7"); a(f"v_add_u32 v{vW}, s{sWoG}, v{vW}")
    for g in range(1, 4): a(f"v_add_u32 v{vW+g}, {g*7168}, v{vW}")
    a(f"s_mul_i32 s{sKW2}, s{sw4}, {22*16*1024}"); a(f"s_lshl_b32 s{sL2}, s{sw4}, 14")
    srd(a, R0, pW2, 1409024); srd(a, R2, pWO, 524288)
def wo_op(a, cfg, half, g):
    if g % 4 == 0:
        a(f"s_lshl_b32 s{sD}, s{sw4}, 13"); a(f"s_add_u32 m0, s{sD}, {WO_BASE[half] + g*1024}"); a(f"s_lshl_b32 s{sD}, s{sw4}, 16"); a(f"s_add_u32 s{sD}, s{sD}, {half*262144 + g*8192}")
    a.vmem(f"buffer_load_dwordx4 v{vW+(g%4)}, s[{R2}:{R2+3}], s{sD} offen offset:{(g%4)*1024} {cfg['aux_w2']} lds", "wo")
def w2_op(a, cfg, n, kb):
    if kb == 0: a(f"s_add_u32 m0, s{sL2}, {(n % 8)*2048}"); a(f"s_add_u32 s{sD}, s{sKW2}, {n*16384}")
    a.vmem(f"buffer_load_dwordx4 v{vW+kb}, s[{R0}:{R0+3}], s{sD} offen offset:{kb*1024} {cfg['aux_w2']} lds", ("w", n))
def xb_load(a, XR):
    sXO, sB2 = R3, R5
    srd(a, sXO, pX, 0x200000); srd(a, sB2, pB2, 1024)
    a(f"s_lshr_b32 s{sTmp2}, s{sw4}, 1"); a(f"s_add_u32 s{sT1}, s{sTT}, s{sTmp2}")
    a(f"s_and_b32 s{sKH}, s{sw4}, 1"); a(f"s_lshl_b32 s{sKH}, s{sKH}, 6"); a(f"s_lshl_b32 s{sTmp}, s{sCB2}, 7"); a(f"s_add_u32 s{sTmp}, s{sTmp}, s{sKH}")
    a("v_lshrrev_b32 v154, 5, v0"); a("v_lshlrev_b32 v152, 3, v154"); a(f"v_add_u32 v152, s{sTmp}, v152")
    a("v_and_b32 v155, 31, v0"); a(f"s_lshl_b32 s{sTmp}, s{sT1}, 5"); a(f"v_add_u32 v155, s{sTmp}, v155"); a("v_lshl_add_u32 v153, v155, 10, v152")
    for j in range(4):
        a.vmem(f"buffer_load_dwordx2 {vr(XR+2*j,2)}, v153, s[{sXO}:{sXO+3}], 0 offen offset:{j*16}", "xb")
        a.vmem(f"buffer_load_dwordx2 {vr(XR+8+2*j,2)}, v152, s[{sB2}:{sB2+3}], 0 offen offset:{j*16}", "xb")

def p1_B(a, cfg):
    XR, ACC, WF, NB = 128, 16, 64, 3
    vXs, vU, vWB = 16, 20, 124
    vXA, vWX, vWA, vCS, vSel = 24, 100, 104, 108, 120
    vSt, vBias = 4, 8
    sX, sU0, sUB = R0, R2, R4
    a("v_lshrrev_b32 v5, 3, v0"); a("v_lshrrev_b32 v6, 4, v0")
    a("v_and_b32 v7, 7, v0"); a("v_xor_b32 v7, v7, v6"); a("v_lshlrev_b32 v7, 4, v7")
    a(f"s_lshl_b32 s{sTmp}, s{sTok}, 5"); a(f"v_add_u32 v4, s{sTmp}, v5"); a(f"v_lshl_add_u32 v{vXs}, v4, 10, v7")
    a(f"v_xor_b32 v{vXs+1}, 64, v{vXs}"); a(f"v_add_u32 v{vXs+2}, {2*7168}, v{vXs}"); a(f"v_add_u32 v{vXs+3}, {3*7168}, v{vXs+1}"); a(f"v_add_u32 v{vXs+1}, 7168, v{vXs+1}")
    a(f"s_lshl_b32 s{sLdsX}, s{sw4}, 12"); a(f"s_mul_i32 s{sLdsW}, s{sw4}, 3072"); a(f"s_lshl_b32 s{sTmp}, s{sw4}, 4")
    for i in range(3):
        a(f"v_add_u32 v4, {64*i}, v0"); a("v_mul_u32_u24 v5, 43691, v4"); a("v_lshrrev_b32 v5, 19, v5"); a("v_mul_u32_u24 v6, 12, v5"); a("v_sub_u32 v4, v4, v6")
        a(f"v_add_u32 v5, s{sTmp}, v5"); a(f"v_lshlrev_b32 v4, 4, v4"); a(f"v_add_u32 v4, s{sCol}, v4")
        if i: a(f"v_add_u32 v4, {(-1024*i) & 0xffffffff}, v4")
        a(f"v_mul_u32_u24 v6, 3072, v5"); a(f"v_add_u32 v{vU+i}, v6, v4"); a(f"v_mul_u32_u24 v6, 2752, v5"); a(f"v_add_u32 v{vWB+i}, v6, v4")
    a("s_waitcnt lgkmcnt(0)")
    srd(a, sX, pX, 0x200000); srd(a, sU0, pQKV, 1572864)
    def dma_i(vaddr, srdreg, off, tag, aux):
        a.vmem(f"buffer_load_dwordx4 v{vaddr}, s[{srdreg}:{srdreg+3}], s{sO} offen offset:{off} {aux} lds".replace("  ", " "), tag)
    def stage(c):
        a(f"s_add_u32 s{sKC}, s{sROT}, {c}"); a(f"s_and_b32 s{sKC}, s{sKC}, 7")
        a(f"s_add_u32 m0, s{sLdsX}, {L_X + (c & 3)*16384}"); a(f"s_lshl_b32 s{sO}, s{sKC}, 7")
        for g in range(4): dma_i(vXs + g, sX, g * 1024, ("st", c), cfg["aux_x"])
        a(f"s_add_u32 m0, s{sLdsW}, {L_W + (c & 3)*12288}"); a(f"s_mul_i32 s{sO}, s{sKC}, {64*3072}")
        for g in range(3): dma_i(vU + g, sU0, g * 1024, ("st", c), cfg["aux_w"])
    def wb_base(cb): return (L_X + (cb >> 1)*16384) if cb & 1 else (L_W + (cb >> 1)*12288)
    def wb_op(cb, g):
        if g == 0:
            a(f"s_add_u32 s{sKC}, s{sROT}, {cb}"); a(f"s_and_b32 s{sKC}, s{sKC}, 7")
            a(f"s_add_u32 m0, s{sLdsW}, {wb_base(cb)}"); a(f"s_mul_i32 s{sO}, s{sKC}, {64*2752}")
        dma_i(vWB + g, sUB, g * 1024, ("wb", cb), cfg["aux_w"])
    stamp(a, cfg, 1)
    stage(0)
    tag_load(a)
    srd(a, sWS, pWS, 0x10000000); srd(a, sUB, pW1, 1409024)
    a(f"s_cmp_lt_u32 s{sT0}, 43"); a(f"s_cselect_b32 s{sUB+2}, s{sUB+2}, 0")
    a("v_mov_b32 v6, 0"); a("v_lshlrev_b32 v7, 2, v0"); a("v_and_b32 v7, 63, v7"); a(f"v_add_u32 v7, {L_CNT}, v7"); a("ds_write_b32 v7, v6")
    read_addrs(a, vXA, vWX, 0, 4)
    for i in range(4): a(f"v_add_u32 v{vWA+i}, {L_W}, v{vWX+i}")
    selector(a, vSel)
    cs_addr(a, 14, 15, 3)
    a(f"v_mov_b32 v12, {L_CNT}"); a("v_mov_b32 v13, 1")
    srd(a, R5, pB1, 2752)
    a("v_and_b32 v4, 31, v0"); a("v_lshlrev_b32 v4, 1, v4"); a(f"s_lshl_b32 s{sTmp}, s{sT0}, 6"); a(f"v_add_u32 v4, s{sTmp}, v4")
    for t in range(3): a(f"v_mov_b32 v{vBias+t}, 0")
    for t in range(3): a.vmem(f"buffer_load_short_d16_hi v{vBias+t}, v4, s[{R5}:{R5+3}], 0 offen offset:{t*64}", "bias")
    stage(1)
    a("s_waitcnt lgkmcnt(0)"); tag_make(a)
    a.wait(vm=("st", 0)); a("s_barrier")
    stamp(a, cfg, 2)
    SC = int(cfg.get("st_c", 4))
    for c in range(8):
        for i in range(4):
            a.lds(f"ds_read_b128 {vr(XR+16*c+4*i,4)}, v{vXA+i} offset:{(c&3)*16384}", ("x", c))
        if c < 6: stage(c + 2)
        else:
            for cb in (2*(c-6), 2*(c-6) + 1):
                for g in range(3): wb_op(cb, g)
        if c == SC: stats_issue(a, vSt, 11)
        if cfg.get("l2pf") == "C" and c == int(cfg.get("pf_c", 4)):
            srd(a, R3, pWO, 524288); srd(a, R6, pW2, 1409024); l2_prefetch(a, cfg, 2, R3, R6)
        a.wait(lg=("x", c))
        if c == 7: a.wait(vm=("wb", 1))
        else: a.wait(vm=("st", c + 1))
        a("s_barrier")
        if c in (0, 3): stamp(a, cfg, 3 + c // 3)
    stamp(a, cfg, 5)
    def reads(n):
        c, i = n >> 2, n & 3; b = n % NB
        base = (vWX if c & 1 else vWA); so = (c >> 1) * (16384 if c & 1 else 12288)
        return [f"ds_read_b64_tr_b16 {vr(WF+12*b+4*t+2*sec,2)}, v{base+i} offset:{so + t*64 + sec*768}" for t in range(3) for sec in range(2)]
    for n in range(2):
        for r in reads(n): a.lds(r, ("f", n))
    late = [(cb, g) for cb in range(4, 8) for g in range(3)]
    XA, vS, vInv, vA1, vB1, vM, T, WA = 156, 160, 162, 164, 166, 168, 170, 176
    fill = Fill()
    for n in range(32):
        c, i = n >> 2, n & 3; b = n % NB
        if n == int(cfg.get("prio_n", 2)) and cfg.get("prio", True): a(f"s_setprio {cfg.get('prioB1', 1)}")
        if n == 2: fill.add(p2w_setup)
        if n == 4: a.wait(vm=("wb", 3)); lds_count(a, 12, 13, C_S1)
        if n == 6: lds_spin(a, 12, 3, C_S1, 4)
        if n == int(cfg.get("pf_n", 13)) and cfg.get("l2pf", "B8") == "B8":
            fill.flush(a); l2_prefetch(a, cfg, 2, R2, R0)
        if n == int(cfg.get("s2_n", 11)): a.wait(vm=("wb", 5)); lds_count(a, 12, 13, C_S2)
        if n == 14: lds_spin(a, 12, 3, C_S2, 4)
        if n == 15:
            stats_check(a, vSt, 11)
            fill.add(lambda f: (mlp_scale(f, vSt + 2, vS, vInv, vA1, vB1), x_aug(f, XA, vSt, vInv, T, T + 1, T + 2, T + 3, vM)))
            fill.add(lambda f: [(f(f"v_lshrrev_b32 v{WA+4*t+2}, 16, v{vBias+t}"), f(f"v_mov_b32 v{WA+4*t+3}, 0")) for t in range(3)])
        if n == int(cfg.get("s3_n", 19)): a.wait(vm=("wb", 7)); lds_count(a, 12, 13, C_S3)
        if n == 22: lds_spin(a, 12, 3, C_S3, 4)
        if n == int(cfg.get("xb_n", 99)): xb_load(a, 136)
        if cfg.get("detB") and str(n) in cfg["detB"].split(","): stamp(a, cfg, (1, 2, 3, 4, 7, 8, 9)[cfg["detB"].split(",").index(str(n))], True)
        a.wait(lg=("f", n))
        nxt = reads(n + 2) if n < 30 else []
        for t in range(3):
            acc = vr(ACC + 16*t, 16); wf = vr(WF+12*b+4*t, 4)
            a(f"v_mfma_f32_32x32x16_bf16 {acc}, {wf}, {vr(XR+4*n,4)}, {'0' if n == 0 else acc}")
            for r in nxt[2*t:2*t+2]: a.lds(r, ("f", n + 2))
            if i == 0: a(f"v_mfma_f32_16x16x32_bf16 {vr(vCS+4*t,4)}, {vr(vSel,4)}, {wf}, {'0' if n == 0 else vr(vCS+4*t,4)}")
            if late and t < int(cfg.get("wb_rate", 1)): wb_op(*late.pop(0))
            fill.emit(a, 2)
        if n == 29: cs_publish(a, vCS, 14); lds_count(a, 12, 13, C_CS)
        if n == 31: lds_count(a, 12, 13, C_RING)
    fill.flush(a)
    stamp(a, cfg, 6)
    if cfg.get("detB"): a.mute = True
    if cfg.get("prio", True): a(f"s_setprio {cfg.get('prioB1b', 3)}")
    lds_spin(a, 12, 3, C_CS, 4)
    cs_read(a, vCS, 15)
    for t in range(3):
        a.wait(lg=("cs", t)); cs_sum(a, vCS + 4*t)
        w_aug(a, WA + 4*t, vCS + 4*t, vBias + t, T, T + 1, T + 2, vM)
        acc = vr(ACC + 16*t, 16)
        a(f"v_mfma_f32_32x32x16_bf16 {acc}, {vr(WA+4*t,4)}, {vr(XA,4)}, {acc}")
    a("v_lshlrev_b32 v2, 4, v0")
    PK = 64
    stamp(a, cfg, 7)
    for t in range(3):
        (gelu_pk if cfg.get("geluB", "pk") == "pk" else gelu_sc)(a, ACC + 16*t, PK + 8*t, 100, vA1, vB1, vInv)
        h_store(a, PK + 8*t, t, 2)
    stamp(a, cfg, 8)

KF, VF, QF, CD, CF, SB, PB, OA = 16, 56, 136, 144, 160, 176, 208, 224
def attn_tiles(): return [(b, j) for b in range(2) for j in range(b, b + 9)]
def attn_epilogue(a, b):
    o = OA + 16 * b
    a(f"v_rcp_f32 v8, v{o+8}")
    for q in range(8): a(f"v_mul_f32 v{o+q}, v{o+q}, v8")
    for q in range(4): a(f"v_cvt_pk_bf16_f32 v{o+8+q}, v{o+2*q}, v{o+2*q+1}")
    a(f"s_add_u32 s{sO}, s{sTTa}, {b}"); a(f"s_lshl_b32 s{sO}, s{sO}, 5"); a(f"s_add_u32 s{sO}, s{sO}, s{sHD}"); a(f"s_lshl_b32 s{sO}, s{sO}, 10"); a(f"s_add_u32 s{sO}, s{sO}, {WS_O}")
    a.vmem(f"buffer_store_dwordx4 {vr(o+8,4)}, v2, s[{sWS}:{sWS+3}], s{sO} offen sc1", "ost")
def s_mfma(a, n, tiles):
    b, j = tiles[n]
    c = vr(CF, 16) if j == b else (vr(CD, 16) if j == b + 8 else "0")
    a(f"v_mfma_f32_32x32x16_bf16 {vr(SB+16*(n&1),16)}, {vr(KF+4*j,4)}, {vr(QF+4*b,4)}, {c}")
def pv_mfma(a, n, s, tiles):
    b, j = tiles[n]; o = vr(OA + 16 * b, 16)
    a(f"v_mfma_f32_32x32x16_bf16 {o}, {vr(VF+8*j+4*s,4)}, {vr(PB+8*(n&1)+4*s,4)}, {'0' if (j == b and s == 0) else o}")
def bound_check(a, cfg):
    a.wait(vm=("k", 9))
    a("v_mov_b32 v10, 0"); a("v_mov_b32 v11, 0")
    for j in range(12):
        base = (KF + 4*j) if j < 10 else (QF + 4*(j-10))
        t = 12 + (j & 1)
        a(f"v_dot2_f32_bf16 v{t}, v{base}, v{base}, 0")
        for q in range(1, 4): a(f"v_dot2_f32_bf16 v{t}, v{base+q}, v{base+q}, v{t}")
        if j > 0:
            pj = j - 1; d = 10 if pj < 10 else 11
            a(f"v_max_f32 v{d}, v{d}, v{12+(pj&1)}")
    a("v_max_f32 v11, v11, v13")
    wave_max32(a, 10); wave_max32(a, 11)
    a(f"v_readlane_b32 s{sA}, v10, 31"); a(f"v_readlane_b32 s{sB}, v10, 63"); a(f"v_readlane_b32 s{sTmp}, v11, 31"); a(f"v_readlane_b32 s{sTmp2}, v11, 63")
    a(f"v_mov_b32 v10, s{sA}"); a(f"v_mov_b32 v11, s{sTmp}"); a(f"v_add_f32 v10, s{sB}, v10"); a(f"v_add_f32 v11, s{sTmp2}, v11")
    a("v_mul_f32 v10, v10, v11")
    a(f"v_cmp_nge_f32 vcc, {f32(cfg.get('bound2', BOUND2))}, v10")
    a("s_nop 4"); a("s_cmp_lg_u64 vcc, 0"); a("s_cbranch_scc1 L_attn_slow")

def attn_fast(a, cfg):
    tiles = attn_tiles()
    a.wait(vm=("k", 1))
    s_mfma(a, 0, tiles)
    for n in range(18):
        b, j = tiles[n]
        S = SB + 16 * (n & 1); P = PB + 8 * (n & 1)
        ex = lambda q: a(f"v_exp_f32 v{S+q}, v{S+q}")
        cv = lambda q: a(f"v_cvt_pk_bf16_f32 v{P+q}, v{S+2*q}, v{S+2*q+1}")
        if n == 0: s_mfma(a, 1, tiles)
        ex(0); ex(1)
        if n > 0: pv_mfma(a, n - 1, 1, tiles)
        for q in range(2, 5): ex(q)
        ld = cfg["_sched"].get(n, [])
        for o in ld[:1]: o(a)
        for q in range(5, 8): ex(q)
        cv(0)
        if 0 < n < 17: a.wait(vm=("k", tiles[n+1][1])); s_mfma(a, n + 1, tiles)
        cv(1); cv(2); cv(3)
        for q in range(8, 12): ex(q)
        a.wait(vm=("v", j))
        pv_mfma(a, n, 0, tiles)
        for q in range(12, 14): ex(q)
        for o in ld[1:]: o(a)
        for q in range(14, 16): ex(q)
        for q in range(4, 8): cv(q)
        if n == 9: bound_check(a, cfg); attn_epilogue(a, 0)
    pv_mfma(a, 17, 1, tiles)
    attn_epilogue(a, 1)
def attn_slow(a, cfg):
    tiles = attn_tiles()
    for n in range(10, 18):
        for o in cfg["_sched"].get(n, []): o(a)
    a("s_waitcnt vmcnt(0)"); a("s_nop 15"); a.vm = []
    for b in range(2):
        a("v_mov_b32 v10, 0xff800000")
        for n, (bb, j) in enumerate(tiles):
            if bb != b: continue
            skip = a.label("skip")
            a(f"s_add_i32 s{sTmp}, s{sTTa}, {j-8}"); a(f"s_cmp_lt_i32 s{sTmp}, 0"); a(f"s_cbranch_scc1 {skip}")
            s_mfma(a, n, tiles)
            S = SB + 16 * (n & 1)
            for q in range(8): a(f"v_max3_f32 v10, v10, v{S+2*q}, v{S+2*q+1}")
            a(f"{skip}:")
            a("s_nop 7"); a("s_nop 7")
        a("v_mov_b32 v11, v10"); a("v_permlane32_swap_b32 v10, v11"); a("v_max_f32 v10, v10, v11")
        for n, (bb, j) in enumerate(tiles):
            if bb != b: continue
            s_mfma(a, n, tiles)
            S = SB + 16 * (n & 1); P = PB + 8 * (n & 1)
            for q in range(16):
                a(f"v_sub_f32 v{S+q}, v{S+q}, v10"); a(f"v_min_f32 v{S+q}, 0, v{S+q}"); a(f"v_exp_f32 v{S+q}, v{S+q}")
            for q in range(8): a(f"v_cvt_pk_bf16_f32 v{P+q}, v{S+2*q}, v{S+2*q+1}")
            pv_mfma(a, n, 0, tiles); pv_mfma(a, n, 1, tiles)
        attn_epilogue(a, b)
def wave_max32(a, v):
    for m in ("quad_perm:[1,0,3,2] row_mask:0xf bank_mask:0xf", "quad_perm:[2,3,0,1] row_mask:0xf bank_mask:0xf",
              "row_half_mirror row_mask:0xf bank_mask:0xf", "row_mirror row_mask:0xf bank_mask:0xf", "row_bcast:15 row_mask:0xa bank_mask:0xf"):
        a(f"v_max_f32_dpp v{v}, v{v}, v{v} {m}")
def tr_addr2(a, dst, base_s):
    a(f"v_lshrrev_b32 v5, 5, v0"); a(f"v_lshlrev_b32 v{dst}, 9, v5")
    a(f"v_bfe_u32 v5, v0, 2, 2"); a(f"v_lshl_add_u32 v{dst}, v5, 7, v{dst}")
    a(f"v_bfe_u32 v5, v0, 3, 1"); a(f"v_lshl_add_u32 v{dst}, v5, 6, v{dst}")
    a(f"v_bfe_u32 v5, v0, 4, 1"); a(f"v_lshl_add_u32 v{dst}, v5, 5, v{dst}")
    a(f"v_and_b32 v5, 3, v0"); a(f"v_lshl_add_u32 v{dst}, v5, 3, v{dst}")
    a(f"v_add_u32 v{dst}, {base_s}, v{dst}"); a(f"v_xor_b32 v{dst+1}, 64, v{dst}")

def attn_setup(a, cfg):
    sQ, sK, sV = R0, R2, R3
    mapping_attn(a, cfg)
    a(f"s_lshl_b32 s{sHD}, s{sCBa}, 2"); a(f"s_add_u32 s{sHD}, s{sHD}, s{sw4}")
    a(f"s_lshl_b32 s{sTmp}, s{sHD}, 16")
    a(f"s_add_u32 s{sTmp2}, s{sTmp}, {WS_QK}"); sub_srd(a, sQ, f"s{sTmp2}", 65536)
    a(f"s_add_u32 s{sTmp2}, s{sTmp}, {WS_QK + 32*65536}"); sub_srd(a, sK, f"s{sTmp2}", 65536)
    a(f"s_add_u32 s{sTmp2}, s{sTmp}, {WS_V}"); sub_srd(a, sV, f"s{sTmp2}", 65536)
    a(f"s_lshl_b32 s{sM}, s{sTTa}, 10")
    a("v_and_b32 v4, 31, v0"); a("v_min_u32 v4, 21, v4"); a("v_cmp_gt_u32 vcc, 10, v4"); a("v_cmp_gt_u32_e64 s[66:67], 20, v4")
    a("v_add_u32 v5, -8, v4"); a("v_add_u32 v6, -18, v4"); a("v_add_u32 v7, -20, v4")
    a("v_cndmask_b32_e64 v6, v7, v6, s[66:67]"); a("v_cndmask_b32 v5, v6, v5, vcc")
    a(f"v_add_u32 v5, s{sTTa}, v5"); a("v_max_i32 v5, 0, v5")
    a("v_cndmask_b32_e64 v6, 0, 32, s[66:67]"); a("v_cndmask_b32_e64 v6, v6, 16, vcc")
    if cfg.get("poll1", True): a("v_lshrrev_b32 v7, 5, v0"); a(f"s_lshl_b32 s{sTmp}, s{sCBa}, 1"); a("v_add_u32 v6, v6, v7")
    else: a(f"s_lshr_b32 s{sTmp}, s{sHD}, 1")
    a(f"v_add_u32 v6, s{sTmp}, v6"); a("v_mul_u32_u24 v6, 43, v6"); a("v_lshrrev_b32 v6, 7, v6")
    a("v_lshrrev_b32 v7, 2, v5"); a("v_lshl_add_u32 v6, v7, 4, v6"); a("v_lshlrev_b32 v6, 8, v6")
    a("v_and_b32 v5, 3, v5"); a("v_lshl_add_u32 v6, v5, 2, v6"); a(f"v_add_u32 v12, {WS_F1}, v6")
    a("v_and_b32 v3, 27, v0"); a("v_cmp_eq_u32 vcc, 16, v3")
    a("v_mov_b32 v4, 0x3f803f80"); a("v_cndmask_b32 v4, 0, v4, vcc")
    a("v_lshrrev_b32 v3, 5, v0"); a("v_lshlrev_b32 v3, 8, v3"); a("v_and_b32 v5, 15, v0"); a("v_lshl_add_u32 v3, v5, 4, v3")
    for j in range(10):
        if j < 8:
            if j % 2 == 0:
                a(f"s_add_i32 s{sTmp}, s{sTTa}, {j-8}"); a(f"s_cmp_ge_i32 s{sTmp}, 0"); a(f"s_cselect_b32 s{sTmp}, -1, 0")
                a(f"v_and_b32 v6, s{sTmp}, v4"); a("v_mov_b32 v7, v6")
        elif j == 8: a("v_mov_b32 v6, v4"); a("v_mov_b32 v7, v4")
        for q in range(4): a(f"v_mov_b64 {vr(VF+8*j+2*q,2)}, v[6:7]")
    a("v_and_b32 v5, 31, v0"); a("v_lshrrev_b32 v6, 5, v0"); a("v_lshlrev_b32 v6, 2, v6"); a("v_sub_u32 v5, v5, v6")
    a(f"v_mov_b32 v6, {f32(NEG)}")
    for r in range(16):
        a(f"v_cmp_le_i32 vcc, {8*(r>>2) + (r&3)}, v5")
        a(f"v_cndmask_b32_e64 v{CD+r}, v6, 0, vcc"); a(f"v_cndmask_b32_e64 v{CF+r}, 0, v6, vcc")

def p2_A(a, cfg):
    ax = "sc1"
    sQ, sK, sV = R0, R2, R3
    a.vm = []; a.lg = []
    stamp(a, cfg, 0)
    a(f"v_mov_b32 v10, {L_CNT}"); a("v_mov_b32 v11, 1")
    group_poll(a, cfg, 12, 13, 10, 11, C_P1, int(cfg.get("sleep1", 6)))
    a(f"v_mov_b32 v14, {L_CNT}"); a("v_mov_b32 v15, 1")
    if "prioA2" in cfg: a(f"s_setprio {cfg['prioA2']}")
    stamp(a, cfg, 2)
    for b in range(2):
        a.vmem(f"buffer_load_dwordx4 {vr(QF+4*b,4)}, v2, s[{sQ}:{sQ+3}], s{sM} offen offset:{b*1024} {ax}", "q")
    def kload(x, j):
        x(f"s_add_u32 s{sO}, s{sM}, {(j-8)*1024 & 0xffffffff}")
        x.vmem(f"buffer_load_dwordx4 {vr(KF+4*j,4)}, v2, s[{sK}:{sK+3}], s{sO} offen {ax}", ("k", j))
    def vload(x, j):
        x("s_mov_b32 exec_lo, 0xffff"); x("s_mov_b32 exec_hi, 0xffff")
        x(f"s_add_u32 s{sO}, s{sM}, {(j-8)*1024 & 0xffffffff}")
        for s in range(2):
            x.vmem(f"buffer_load_dwordx4 {vr(VF+8*j+4*s,4)}, v3, s[{sV}:{sV+3}], s{sO} offen offset:{s*512} {ax}", ("v", j))
        x("s_mov_b64 exec, -1")
    LA = int(cfg.get("attn_la", 4))
    kload(a, 0)
    for j in range(LA):
        if j < 9: kload(a, j + 1)
        vload(a, j)
    if cfg.get("hold") and LA >= 10: lds_count(a, 14, 15, C_HOLD)
    sched = {}
    for n in range(18):
        j = n + LA
        if j <= 9: sched[n] = ([lambda x, j=j: kload(x, j + 1)] if j < 9 else []) + [lambda x, j=j: vload(x, j)]
        if j == 9 and cfg.get("hold"): sched[n].append(lambda x: lds_count(x, 14, 15, C_HOLD))
    cfg["_sched"] = sched
    stamp(a, cfg, 3)
    saved = list(a.vm)
    attn_fast(a, cfg)
    a("L_attn_done:")
    stamp(a, cfg, 5)
    a.vm = ["x"]
    a(f"s_lshl_b32 s{sO}, s{sRBa}, 5"); a(f"s_add_u32 s{sO}, s{sO}, s{sHD}"); a(f"s_lshl_b32 s{sO}, s{sO}, 7"); a(f"s_add_u32 s{sO}, s{sO}, {WS_F2}")
    publish(a, f"s{sO}", 4)
    a(f"v_mov_b32 v6, {L_CNT}")
    nl = a.label("noepoch"); lp = a.label("epoch")
    a(f"s_or_b32 s{sTmp}, s2, s{sW}"); a(f"s_cmp_lg_u32 s{sTmp}, 0"); a(f"s_cbranch_scc1 {nl}")
    srd(a, R6, pDBG, 256); a("v_lshlrev_b32 v7, 7, v0"); a("v_and_b32 v7, 128, v7"); a(f"s_mov_b32 s{sA}, 0")
    a(f"{lp}:")
    a(f"buffer_load_dword v8, v7, s[{R6}:{R6+3}], 0 offen sc1")
    a(f"s_add_u32 s{sA}, s{sA}, 1"); a(f"s_cmp_gt_u32 s{sA}, {SPIN_MAX}"); a(f"s_cbranch_scc1 {nl}")
    a("s_waitcnt vmcnt(0)"); a("v_cmp_ne_u32 vcc, 0x80, v8"); a("s_nop 4"); a("s_cmp_lg_u64 vcc, 0"); a(f"s_cbranch_scc1 {lp}")
    a(f"s_mov_b32 s{sTmp}, {WS_EPOCH}"); a("s_mov_b64 exec, 1")
    a(f"buffer_store_dword v4, v5, s[{sWS}:{sWS+3}], s{sTmp} offen sc1"); a("s_mov_b64 exec, -1")
    a(f"{nl}:")
    stamp(a, cfg, 6)
    OF, ACC, XR, WF = 16, 96, 128, 144
    a(f"s_lshr_b32 s{sKH}, s{sw4}, 1"); a(f"s_and_b32 s{sT1}, s{sw4}, 1"); a(f"s_add_u32 s{sT1}, s{sT1}, s{sTT}")
    a(f"s_lshl_b32 s{sTmp}, s{sCB2}, 7"); a(f"s_lshl_b32 s{sTmp2}, s{sKH}, 6"); a(f"s_add_u32 s{sTmp}, s{sTmp}, s{sTmp2}")
    a("v_lshrrev_b32 v7, 5, v0"); a("v_lshlrev_b32 v8, 4, v7"); a(f"v_add_u32 v8, s{sTmp}, v8")
    a("v_and_b32 v9, 31, v0"); a(f"s_lshl_b32 s{sTmp2}, s{sT1}, 5"); a(f"v_add_u32 v9, s{sTmp2}, v9")
    a("v_lshl_add_u32 v11, v9, 10, v8")
    if cfg.get("poll1", True):
        a(f"s_lshl_b32 s{sO}, s{sRB2}, 12"); a(f"s_add_u32 s{sO}, s{sO}, {WS_F2}"); a("v_and_b32 v12, 31, v0")
    else:
        a(f"s_lshl_b32 s{sO}, s{sRB2}, 5"); a(f"s_lshl_b32 s{sTmp}, s{sKH}, 4"); a(f"s_add_u32 s{sO}, s{sO}, s{sTmp}"); a(f"s_lshl_b32 s{sO}, s{sO}, 7"); a(f"s_add_u32 s{sO}, s{sO}, {WS_F2}")
        a("v_and_b32 v12, 15, v0")
    a("v_lshlrev_b32 v12, 7, v12"); a(f"v_add_u32 v12, s{sO}, v12"); a("v_mov_b32 v10, 1")
    a(f"s_mul_i32 s{sTmp}, s{sKH}, {WO_BASE[1] - WO_BASE[0]}"); a(f"s_add_u32 s{sTmp}, s{sTmp}, {WO_BASE[0]}")
    tr_addr2(a, 14, f"s{sTmp}")
    a(f"s_lshl_b32 s{sTmp}, s{sKH}, 6"); a(f"v_xor_b32 v14, s{sTmp}, v14"); a(f"v_xor_b32 v15, s{sTmp}, v15")
    lds_spin(a, 6, 7, C_POLL, 4, sleep=2)
    stamp(a, cfg, 7)
    group_poll(a, cfg, 12, 13, 6, 10, C_P2, int(cfg.get("sleep2", 6)))
    a(f"s_lshl_b32 s{sO}, s{sT1}, 5"); a(f"s_lshl_b32 s{sTmp}, s{sKH}, 4"); a(f"s_add_u32 s{sO}, s{sO}, s{sTmp}"); a(f"s_lshl_b32 s{sO}, s{sO}, 10"); a(f"s_add_u32 s{sO}, s{sO}, {WS_O}")
    for n in range(16):
        if n and n % 4 == 0: a(f"s_add_u32 s{sO}, s{sO}, 4096")
        a.vmem(f"buffer_load_dwordx4 {vr(OF+4*n,4)}, v2, s[{sWS}:{sWS+3}], s{sO} offen offset:{(n%4)*1024} sc1", ("o", n))
    stamp(a, cfg, 8)
    lds_spin(a, 6, 7, C_WO, 4)
    def reads(n):
        return [f"ds_read_b64_tr_b16 {vr(WF+8*(n%4)+4*t+2*sec,2)}, v{14+t} offset:{n*2048 + sec*1024}" for t in range(2) for sec in range(2)]
    for n in range(3):
        for r in reads(n): a.lds(r, ("f", n))
    for n in range(16):
        nxt = reads(n + 3) if n < 13 else []
        a.wait(vm=("o", n), lg=("f", n))
        for t in range(2):
            acc = vr(ACC + 16*t, 16)
            a(f"v_mfma_f32_32x32x16_bf16 {acc}, {vr(WF+8*(n%4)+4*t,4)}, {vr(OF+4*n,4)}, {'0' if n == 0 else acc}")
            for r in nxt[2*t:2*t+2]: a.lds(r, ("f", n + 3))
    stamp(a, cfg, 9)
    a(f"s_lshl_b32 s{sTmp}, s{sw4}, 12"); a(f"s_add_u32 s{sTmp}, s{sTmp}, {L_EX}"); a(f"v_add_u32 v12, s{sTmp}, v2"); a("v_xor_b32 v13, 0x2000, v12")
    for q in range(4): a.lds(f"ds_write_b128 v12, {vr(ACC+16+4*q,4)} offset:{q*1024}", "ex")
    a(f"s_and_b32 s{sTmp}, s{sw4}, 1"); a(f"s_lshl_b32 s{sTmp}, s{sTmp}, 1"); a(f"s_add_u32 s{sTmp}, s{sTmp}, s{sKH}"); a(f"s_lshl_b32 s{sTmp}, s{sTmp}, 12")
    a(f"v_add_u32 v12, s{sTmp}, v2")
    srd(a, R0, pOUT, 0x200000)
    a.wait(lg="all"); a("s_barrier")
    PT = 16
    for p in range(5):
        for q in range(4):
            if p < 4: a.lds(f"ds_read_b128 {vr(PT+16*p+4*q,4)}, v12 offset:{p*16384 + q*1024}", ("p", p))
            else: a.lds(f"ds_read_b128 {vr(PT+16*p+4*q,4)}, v13 offset:{q*1024}", ("p", p))
    for p in range(5):
        a.wait(lg=("p", p))
        for q in range(8): a(f"v_pk_add_f32 {vr(ACC+2*q,2)}, {vr(ACC+2*q,2)}, {vr(PT+16*p+2*q,2)}")
    for q in range(8): a(f"v_cvt_pk_bf16_f32 v{XR+q}, v{ACC+2*q}, v{ACC+2*q+1}")
    for jp in range(2):
        a(f"v_permlane32_swap_b32 v{XR+4*jp}, v{XR+4*jp+2}"); a(f"v_permlane32_swap_b32 v{XR+4*jp+1}, v{XR+4*jp+3}")
        a.vmem(f"buffer_store_dwordx4 {vr(XR+4*jp,4)}, v11, s[{R0}:{R0+3}], 0 offen offset:{jp*32} {cfg.get('aux_out', '')}", "out")
    return saved

def p2_B(a, cfg):
    ACC, HR, WF, XR = 16, 176, 160, 136
    D = 8
    sH0, sH1 = R5, R3
    if int(cfg.get("xb_n", 99)) > 31: xb_load(a, XR)
    a(f"s_mul_i32 s{sKHh}, s{sw4}, {22*1024}")
    def w_ops(n): return [lambda: w2_op(a, cfg, n, 0), lambda: w2_op(a, cfg, n, 1)]
    def h_ops(n):
        def h(t):
            if t == 0: a(f"s_add_u32 s{sM}, s{sKHh}, {n*1024}")
            a.vmem(f"buffer_load_dwordx4 {vr(HR+8*(n%D)+4*t,4)}, v2, s[{(sH0,sH1)[t]}:{(sH0,sH1)[t]+3}], s{sM} offen sc1", ("h", n))
        return [lambda: h(0), lambda: h(1)]
    WD = int(cfg.get("w2_pre", 7)); WP = int(cfg.get("w2_prefill", WD))
    a(f"s_mul_i32 s{sTmp}, s{sT1}, {86*1024}"); a(f"s_add_u32 s{sTmp}, s{sTmp}, {WS_H}")
    sub_srd(a, sH0, f"s{sTmp}", 86 * 1024)
    a(f"s_xor_b32 s{sTmp2}, s{sT1}, 1"); a(f"s_mul_i32 s{sTmp}, s{sTmp2}, {86*1024}"); a(f"s_add_u32 s{sTmp}, s{sTmp}, {WS_H}")
    sub_srd(a, sH1, f"s{sTmp}", 86 * 1024)
    tr_addr2(a, 10, f"s{sL2}")
    a(f"v_xor_b32 v10, s{sKH}, v10"); a(f"v_xor_b32 v11, s{sKH}, v11")
    if cfg.get("poll1", True):
        a("v_min_u32 v4, 29, v0"); a("v_lshrrev_b32 v5, 1, v4")
    else:
        a("v_min_u32 v4, 9, v0"); a("v_lshrrev_b32 v5, 1, v4"); a("v_mul_u32_u24 v5, 3, v5"); a("v_min_u32 v5, 10, v5")
        a(f"s_mul_i32 s{sTmp}, s{sw4}, 11"); a(f"v_add_u32 v5, s{sTmp}, v5"); a("v_mul_u32_u24 v5, 43, v5"); a("v_lshrrev_b32 v5, 7, v5")
    a("v_and_b32 v4, 1, v4"); a(f"v_add_u32 v4, s{sTT}, v4"); a("v_lshrrev_b32 v7, 2, v4"); a("v_lshl_add_u32 v5, v7, 4, v5"); a("v_lshlrev_b32 v5, 8, v5")
    a("v_and_b32 v4, 3, v4"); a("v_lshl_add_u32 v5, v4, 2, v5"); a(f"v_add_u32 v3, {WS_F1 + 128}, v5")
    f1_addr(a, 1); publish(a, f"s{sO}", 6, "out")
    stamp(a, cfg, 9)
    stamp_dump(a, cfg, 0, 96)
    a.mute = False
    stamp(a, cfg, 0)
    lds_spin(a, 12, 7, C_RING, 4)
    for n in range(WP):
        for o in w_ops(n): o()
    wo_list = [(h, g) for h in range(2) for g in range(8)]
    WOP = int(cfg.get("wo_pre", 16))
    for k in range(WOP): wo_op(a, cfg, *wo_list.pop(0))
    a.wait(vm="xb")
    for j in range(4):
        for d in range(2):
            x, bb, o = XR + 2*j + d, XR + 8 + 2*j + d, ACC + 4*j + 2*d
            a(f"v_lshlrev_b32 v14, 16, v{x}"); a(f"v_lshlrev_b32 v15, 16, v{bb}"); a(f"v_add_f32 v{o}, v14, v15")
            a(f"v_and_b32 v14, 0xffff0000, v{x}"); a(f"v_and_b32 v15, 0xffff0000, v{bb}"); a(f"v_add_f32 v{o+1}, v14, v15")
    if cfg.get("hold"): lds_spin(a, 12, 7, C_HOLD, 4, sleep=1)
    stamp(a, cfg, 1)
    group_poll(a, cfg, 3, 4, 12, 13, C_P3, int(cfg.get("sleep3", 6)))
    if not wo_list: lds_count(a, 12, 13, C_WO)
    stamp(a, cfg, 2)
    if cfg.get("prio", True): a(f"s_setprio {cfg.get('prioB2', 0)}")
    DI = int(cfg.get("p2_depth", 5))
    for n in range(max(DI, WD)):
        if n < DI:
            for o in h_ops(n): o()
        if WP <= n < WD:
            for o in w_ops(n): o()
    def reads(n):
        return [f"ds_read_b64_tr_b16 {vr(WF+8*(n&1)+4*t+2*sec,2)}, v{10+t} offset:{(n%D)*2048 + sec*1024}" for t in range(2) for sec in range(2)]
    late_wo = bool(wo_list)
    a.wait(vm=("w", 0))
    for r in reads(0): a.lds(r, ("f", 0))
    for n in range(22):
        ops = (h_ops(n + DI) if n + DI < 22 else [None, None]) + (w_ops(n + WD) if n + WD < 22 else [None, None])
        if n + WD >= 22 and wo_list:
            g4 = [wo_list.pop(0) for k in range(4)]
            ops[2] = lambda g4=g4: (wo_op(a, cfg, *g4[0]), wo_op(a, cfg, *g4[1])); ops[3] = lambda g4=g4: (wo_op(a, cfg, *g4[2]), wo_op(a, cfg, *g4[3]))
        if late_wo and n == 21: a.wait(vm="wo"); lds_count(a, 12, 13, C_WO)
        if n == int(cfg.get('poll_n', 12)): lds_count(a, 12, 13, C_POLL)
        if n < 21:
            a.wait(vm=("w", n + 1))
            for r in reads(n + 1): a.lds(r, ("f", n + 1))
        a.wait(lg=("f", n), vm=("h", n))
        for tt in range(2):
            for ft in range(2):
                acc = vr(ACC + 16*(2*tt+ft), 16)
                a(f"v_mfma_f32_32x32x16_bf16 {acc}, {vr(WF+8*(n&1)+4*ft,4)}, {vr(HR+8*(n%D)+4*tt,4)}, {'0' if (n == 0 and tt+ft) else acc}")
                if ops[2*tt+ft]: ops[2*tt+ft]()
        if n in (0, 5, 10, 15, 21): stamp(a, cfg, 3 + (0, 5, 10, 15, 21).index(n))
    a(f"v_add_u32 v14, s{sL2}, v2"); a(f"s_lshl_b32 s{sTmp}, s{sw4}, 12"); a(f"v_xor_b32 v14, s{sTmp}, v14")
    for t in range(4):
        if t: a(f"v_xor_b32 v15, {t*4096}, v14")
        for q in range(4): a.lds(f"ds_write_b128 v{15 if t else 14}, {vr(ACC+16*t+4*q,4)} offset:{q*1024}", "d")
    a.wait(lg="all"); stamp(a, cfg, 8); a("s_barrier")

def build(cfg):
    cfg = dict(cfg)
    a = Asm()
    a("s_cmp_ge_u32 s2, 256"); a("s_cbranch_scc1 L_end")
    if cfg.get("stamp"):
        for i in range(NSTAMP): a(f"s_mov_b32 s{STAMP0+2*i}, 0")
    stamp(a, cfg, 0, True)
    prologue(a, cfg)
    a(f"s_cmp_lt_u32 s{sW}, 4"); a("s_cbranch_scc1 L_A")
    B = Asm(); B.uid = 1000
    p1_B(B, cfg); p2_B(B, cfg)
    if cfg.get("stamp"): B("s_waitcnt vmcnt(0)"); stamp(B, cfg, 10, True); stamp_dump(B, cfg, 0x20000, 16)
    B("s_endpgm")
    A = Asm(); A.uid = 2000
    A("L_A:"); p1_A(A, cfg); stamp_dump(A, cfg, 0, 16); saved = p2_A(A, cfg)
    if cfg.get("stamp"): A("s_waitcnt vmcnt(0)"); stamp(A, cfg, 10, True); stamp_dump(A, cfg, 0x20000, 16)
    A("s_endpgm")
    S = Asm(); S.uid = 5000; S.vm = saved
    S("L_attn_slow:"); attn_slow(S, cfg); S("s_branch L_attn_done")
    E = Asm(); E("L_end:"); E("s_endpgm")
    body = a.text() + B.text() + A.text() + S.text() + E.text()
    name = KN + "_kernel"
    return file_text([(name, body, 256, 102, 0)], [(name, 256, 512, LDS_BYTES)])

if __name__ == "__main__":
    import sys
    cfg = dict(map1="8x4", map2="8x4", aux_x="", aux_w="", aux_w2="", prio=True)
    for kv in sys.argv[2:]:
        k, v = kv.split("=", 1)
        cfg[k] = {"True": True, "False": False}.get(v, v)
    if "bound2" in cfg: cfg["bound2"] = float(cfg["bound2"])
    open(sys.argv[1], "w").write(build(cfg))
```

```python
from asmlib import *
from layout import *

L_X = 0x0; L_W = 0x10000
L_CS = 0x24000; L_CNT = 0x24c00; L_VS = 0x25000
L_EX = 0x18000
WO_BASE = (0x10000, 0x1c000)
LDS_BYTES = 0x27400
C_CS, C_S1, C_S2, C_S3, C_RING, C_WO, C_POLL, C_HOLD, C_P1, C_P2, C_X, C_PRE, C_D = 0, 4, 8, 12, 16, 20, 24, 28, 32, 48, 64, 68, 72
SPIN_MAX = 400000
BOUND2 = 64.0 * 64.0
NEG = float("-inf")
WS_ST = 0x60000
WS_EPOCH = 0x70000
WS_F1 = 0x80000
WS_F2 = 0xA0000

pX, pQKV, pWO, pW1, pB1, pW2, pB2, pOUT, pDBG, pWS = 4, 6, 8, 12, 14, 16, 18, 20, 22, 24
R0, sWS, R2, R3, R4, R5, R6 = 28, 32, 36, 40, 44, 48, 52
sW, sw4, sRB, sCB, sROT, sN = 56, 57, 58, 59, 60, 61
sO, sKC, sTmp, sTmp2, sA, sB = 62, 63, 64, 65, 66, 67
sCol, sT0, sLdsW, sLdsX, sTok = 68, 69, 70, 71, 72
sRB2, sCB2, sTT = 76, 77, 78
sHD, sM, sKH, sT1, sKHh = 68, 69, 70, 71, 73
sKW2, sL2, sWoG, sD = 26, 27, 79, 74
sRBa, sCBa, sTTa = 10, 11, 75
STAMP0 = 80; NSTAMP = 11
sFQ, sFK, sFV = 72, 73, 74

def stamp(a, cfg, i, force=False):
    if cfg.get("stamp") == "light" and not force: return
    if getattr(a, "mute", False) and not force: return
    if cfg.get("stamp"):
        a(f"{'s_memtime' if cfg.get('stamp') == 'cyc' else 's_memrealtime'} s[{STAMP0+2*i}:{STAMP0+2*i+1}]")
def stamp_dump(a, cfg, base, v):
    if not cfg.get("stamp") or (cfg.get("stamp") == "light" and base == 0): return
    a("s_waitcnt lgkmcnt(0)"); a.lg = []
    a(f"s_lshl_b32 s{sA}, s2, 3"); a(f"s_add_u32 s{sA}, s{sA}, s{sW}"); a(f"s_lshl_b32 s{sA}, s{sA}, 6"); a(f"s_add_u32 s{sA}, s{sA}, {base}")
    for i in range(12): a(f"v_mov_b32 v{v+i}, {'s%d' % (STAMP0+2*i) if i < NSTAMP else 0}")
    a(f"v_mov_b32 v{v+12}, 0"); a("s_mov_b64 exec, 1")
    for q in range(3): a.vmem(f"buffer_store_dwordx4 {vr(v+4*q,4)}, v{v+12}, s[{sWS}:{sWS+3}], s{sA} offen offset:{16*q}", "stamp")
    a("s_mov_b64 exec, -1")
    for i in range(NSTAMP): a(f"s_mov_b32 s{STAMP0+2*i}, 0")

def srd(a, d, p, size):
    a(f"s_mov_b32 s{d}, s{p}"); a(f"s_mov_b32 s{d+1}, s{p+1}"); a(f"s_mov_b32 s{d+2}, {size}"); a(f"s_mov_b32 s{d+3}, 0x20000")
def sub_srd(a, d, off_s, size):
    a(f"s_add_u32 s{d}, s{pWS}, {off_s}"); a(f"s_addc_u32 s{d+1}, s{pWS+1}, 0"); a(f"s_mov_b32 s{d+2}, {size}"); a(f"s_mov_b32 s{d+3}, 0x20000")
def lds_spin(a, vaddr, vtmp, off, target, sleep=0):
    lp = a.label("spin"); lq = a.label("spinx")
    a(f"s_mov_b32 s{sA}, 0")
    a(f"{lp}:")
    a(f"ds_read_b32 v{vtmp}, v{vaddr} offset:{off}")
    a(f"s_add_u32 s{sA}, s{sA}, 1"); a(f"s_cmp_gt_u32 s{sA}, {SPIN_MAX}"); a(f"s_cbranch_scc1 {lq}")
    a("s_waitcnt lgkmcnt(0)"); a(f"v_readfirstlane_b32 s{sB}, v{vtmp}"); a(f"s_cmp_ge_u32 s{sB}, {target}"); a(f"s_cbranch_scc1 {lq}")
    if sleep: a(f"s_sleep {sleep}")
    a(f"s_branch {lp}")
    a(f"{lq}:")
    a("s_waitcnt lgkmcnt(0)"); a.lg = []
def sync_read(a, vaddr, vtmp, off):
    a.lds(f"ds_read_b32 v{vtmp}, v{vaddr} offset:{off}", ("sy", off))
def sync_check(a, vaddr, vtmp, off, target):
    ok = a.label("syok")
    a.wait(lg=("sy", off))
    a(f"v_readfirstlane_b32 s{sB}, v{vtmp}"); a(f"s_cmp_ge_u32 s{sB}, {target}"); a(f"s_cbranch_scc1 {ok}")
    keep = list(a.lg); lds_spin(a, vaddr, vtmp, off, target); a.lg = keep
    a(f"{ok}:")
def lds_count(a, vaddr, vone, off):
    a("s_mov_b64 exec, 1"); a.lds(f"ds_add_u32 v{vaddr}, v{vone} offset:{off}", "cnt"); a("s_mov_b64 exec, -1")
def flag_poll(a, vaddr, vdat, sleep=2):
    lp = a.label("poll"); lq = a.label("pollx")
    a(f"s_mov_b32 s{sA}, 0")
    a(f"{lp}:")
    a(f"buffer_load_dword v{vdat}, v{vaddr}, s[{sWS}:{sWS+3}], 0 offen sc1")
    a(f"s_add_u32 s{sA}, s{sA}, 1"); a(f"s_cmp_gt_u32 s{sA}, {SPIN_MAX}"); a(f"s_cbranch_scc1 {lq}")
    a("s_waitcnt vmcnt(0)")
    a(f"v_cmp_ne_u32 vcc, s{sN}, v{vdat}")
    a("s_nop 4"); a("s_cmp_eq_u64 vcc, 0"); a(f"s_cbranch_scc1 {lq}")
    a(f"s_sleep {sleep}"); a(f"s_branch {lp}")
    a(f"{lq}:")
    a("s_waitcnt vmcnt(0)"); a.vm = []
def scalar_poll(a, loads, sleep=0):
    lp = a.label("spoll"); lq = a.label("spollx"); lr = a.label("spollr")
    a(f"s_mov_b32 s{sA}, 0"); a(f"s_mov_b32 s{sTmp}, s{sN}"); a(f"s_mov_b32 s{sTmp2}, s{sN}")
    a(f"{lp}:")
    for d, w, o, imm in loads: a(f"s_load_dwordx{w} s[{d}:{d+w-1}], s[{pWS}:{pWS+1}], s{o} offset:{imm} glc")
    a(f"s_add_u32 s{sA}, s{sA}, 1"); a(f"s_cmp_gt_u32 s{sA}, {SPIN_MAX}"); a(f"s_cbranch_scc1 {lq}")
    a("s_waitcnt lgkmcnt(0)")
    prs = [d + k for d, w, o, imm in loads for k in range(0, w, 2)]
    for p in prs[:-1]:
        a(f"s_cmp_eq_u64 s[{p}:{p+1}], s[{sTmp}:{sTmp2}]"); a(f"s_cbranch_scc0 {lr}")
    a(f"s_cmp_eq_u64 s[{prs[-1]}:{prs[-1]+1}], s[{sTmp}:{sTmp2}]"); a(f"s_cbranch_scc1 {lq}")
    a(f"{lr}:")
    if sleep: a(f"s_sleep {sleep}")
    a(f"s_branch {lp}")
    a(f"{lq}:")
    a("s_waitcnt lgkmcnt(0)"); a.lg = []
def pair_poll(a, loads, sleep, delay, vcnt, vone, vtmp, coff, mask):
    lo = a.label("pp_o"); le = a.label("pp_e")
    a(f"s_andn2_b32 s{sO}, s{sw4}, {mask}"); a(f"s_lshl_b32 s{sO}, s{sO}, 2"); a(f"v_add_u32 v{vtmp+1}, s{sO}, v{vcnt}")
    a(f"s_and_b32 s{sO}, s{sw4}, {mask}"); a(f"s_cbranch_scc1 {lo}")
    if delay: a(f"s_sleep {delay}")
    scalar_poll(a, loads, sleep)
    a("s_mov_b64 exec, 1"); a(f"ds_add_u32 v{vtmp+1}, v{vone} offset:{coff}"); a("s_mov_b64 exec, -1")
    a(f"s_branch {le}")
    a(f"{lo}:")
    lds_spin(a, vtmp + 1, vtmp, coff, 1, sleep=1)
    a(f"{le}:")
def group_poll(a, cfg, vaddr, vdat, vcnt, vone, coff, sleep):
    if str(coff) in cfg.get("x_nopoll", "").split(","):
        a("s_waitcnt vmcnt(0)"); a.vm = []; return
    if not cfg.get("poll1", True):
        flag_poll(a, vaddr, vdat, sleep); return
    lo = a.label("gp_o"); le = a.label("gp_e")
    a(f"s_cmp_lg_u32 s{sw4}, 0"); a(f"s_cbranch_scc1 {lo}")
    flag_poll(a, vaddr, vdat, sleep)
    a("s_mov_b64 exec, 1"); a(f"ds_add_u32 v{vcnt}, v{vone} offset:{coff}"); a("s_mov_b64 exec, -1")
    a(f"s_branch {le}")
    a(f"{lo}:")
    lds_spin(a, vcnt, vdat, coff, 1, sleep=1)
    a("s_waitcnt vmcnt(0)")
    a(f"{le}:")
    a.vm = []
def publish(a, off_s, v, tag="all"):
    a.wait(vm=tag)
    a(f"v_mov_b32 v{v}, s{sN}"); a(f"v_mov_b32 v{v+1}, 0"); a("s_mov_b64 exec, 1")
    a.vmem(f"buffer_store_dword v{v}, v{v+1}, s[{sWS}:{sWS+3}], {off_s} offen sc1", "flag")
    a("s_mov_b64 exec, -1")
def f1_addr(a, cls):
    a(f"s_lshl_b32 s{sO}, s{sRB}, 4"); a(f"s_add_u32 s{sO}, s{sO}, s{sCB}"); a(f"s_lshl_b32 s{sO}, s{sO}, 8")
    a(f"s_lshl_b32 s{sTmp}, s{sw4}, 2"); a(f"s_add_u32 s{sO}, s{sO}, s{sTmp}"); a(f"s_add_u32 s{sO}, s{sO}, {WS_F1 + cls*128}")
def tag_load(a):
    a(f"s_add_u32 s{sA}, s{pWS}, {WS_EPOCH}"); a(f"s_addc_u32 s{sB}, s{pWS+1}, 0"); a(f"s_load_dword s{sN}, s[{sA}:{sB}], 0")
def tag_make(a):
    a(f"s_mul_i32 s{sN}, s{sN}, 0x9e3779b1"); a(f"s_add_u32 s{sN}, s{sN}, 0x7f4a7c15")
def stats_issue(a, v, vaddr):
    a(f"v_and_b32 v{vaddr}, 31, v0"); a(f"s_lshl_b32 s{sTmp}, s{sTok}, 5"); a(f"v_add_u32 v{vaddr}, s{sTmp}, v{vaddr}"); a(f"v_lshlrev_b32 v{vaddr}, 4, v{vaddr}")
    a(f"v_add_u32 v{vaddr}, {WS_ST}, v{vaddr}")
    a.vmem(f"buffer_load_dwordx4 {vr(v,4)}, v{vaddr}, s[{sWS}:{sWS+3}], 0 offen sc1", "stats")
def stats_check(a, v, vaddr):
    a.wait(vm="stats")
    lp = a.label("stat"); lq = a.label("statx")
    a(f"s_mov_b32 s{sA}, 0")
    a(f"{lp}:")
    a(f"v_cmp_ne_u32 vcc, s{sN}, v{v+1}"); a(f"v_cmp_ne_u32_e64 s[{sTmp}:{sTmp2}], s{sN}, v{v+3}")
    a("s_nop 4"); a(f"s_or_b64 vcc, vcc, s[{sTmp}:{sTmp2}]"); a(f"s_cbranch_scc0 {lq}")
    a(f"s_add_u32 s{sA}, s{sA}, 1"); a(f"s_cmp_gt_u32 s{sA}, {SPIN_MAX}"); a(f"s_cbranch_scc1 {lq}")
    a(f"buffer_load_dwordx4 {vr(v,4)}, v{vaddr}, s[{sWS}:{sWS+3}], 0 offen sc1"); a("s_waitcnt vmcnt(0)")
    a(f"s_branch {lp}")
    a(f"{lq}:")

class Fill:
    def __init__(self, fn=None):
        self.q = []
        if fn: self.add(fn)
    def add(self, fn):
        t = Asm(); t.uid = 9000 + len(self.q); fn(t); self.q += t.lines
    def emit(self, a, k):
        for l in self.q[:k]: a(l)
        self.q = self.q[k:]
    def flush(self, a): self.emit(a, len(self.q))

def mapping(a, cfg):
    m1, m2 = cfg["map1"], cfg["map2"]
    a(f"s_and_b32 s{sA}, s2, 7"); a(f"s_lshr_b32 s{sB}, s2, 3")
    t, u = sTmp, sTmp2
    if m1 == "8x4":
        a(f"s_lshr_b32 s{t}, s{sA}, 2"); a(f"s_lshl_b32 s{t}, s{t}, 3"); a(f"s_lshr_b32 s{u}, s{sB}, 2"); a(f"s_add_u32 s{sRB}, s{t}, s{u}")
        a(f"s_and_b32 s{t}, s{sB}, 3"); a(f"s_lshl_b32 s{sROT}, s{t}, 1"); a(f"s_add_u32 s{sROT}, s{sROT}, s{u}")
        a(f"s_and_b32 s{u}, s{sA}, 3"); a(f"s_lshl_b32 s{u}, s{u}, 2"); a(f"s_add_u32 s{sCB}, s{t}, s{u}")
    elif m1 == "4x8":
        a(f"s_lshr_b32 s{t}, s{sA}, 1"); a(f"s_lshl_b32 s{t}, s{t}, 2"); a(f"s_lshr_b32 s{u}, s{sB}, 3"); a(f"s_add_u32 s{sRB}, s{t}, s{u}")
        a(f"s_and_b32 s{t}, s{sB}, 7"); a(f"s_lshl_b32 s{sROT}, s{u}, 1"); a(f"s_add_u32 s{sROT}, s{sROT}, s{t}")
        a(f"s_and_b32 s{u}, s{sA}, 1"); a(f"s_lshl_b32 s{u}, s{u}, 3"); a(f"s_add_u32 s{sCB}, s{t}, s{u}")
    elif m1 == "2x16":
        a(f"s_lshl_b32 s{t}, s{sA}, 1"); a(f"s_lshr_b32 s{u}, s{sB}, 4"); a(f"s_add_u32 s{sRB}, s{t}, s{u}")
        a(f"s_and_b32 s{sCB}, s{sB}, 15"); a(f"s_lshl_b32 s{sROT}, s{u}, 2"); a(f"s_add_u32 s{sROT}, s{sROT}, s{sCB}")
    a(f"s_and_b32 s{sROT}, s{sROT}, {int(cfg.get('rotmask', 7))}")
    if m2 == "4x8":
        a(f"s_lshl_b32 s{t}, s{sA}, 2"); a(f"s_lshr_b32 s{u}, s{sB}, 3"); a(f"s_add_u32 s{sRB2}, s{t}, s{u}"); a(f"s_and_b32 s{sCB2}, s{sB}, 7")
    elif m2 == "8x4":
        a(f"s_lshr_b32 s{t}, s{sA}, 1"); a(f"s_lshl_b32 s{t}, s{t}, 3"); a(f"s_lshr_b32 s{u}, s{sB}, 2"); a(f"s_add_u32 s{sRB2}, s{t}, s{u}")
        a(f"s_and_b32 s{t}, s{sA}, 1"); a(f"s_lshl_b32 s{t}, s{t}, 2"); a(f"s_and_b32 s{u}, s{sB}, 3"); a(f"s_add_u32 s{sCB2}, s{t}, s{u}")
    elif m2 == "16x2":
        a(f"s_lshr_b32 s{t}, s{sA}, 2"); a(f"s_lshl_b32 s{t}, s{t}, 4"); a(f"s_lshr_b32 s{u}, s{sB}, 1"); a(f"s_add_u32 s{sRB2}, s{t}, s{u}")
        a(f"s_and_b32 s{t}, s{sA}, 3"); a(f"s_lshl_b32 s{t}, s{t}, 1"); a(f"s_and_b32 s{u}, s{sB}, 1"); a(f"s_add_u32 s{sCB2}, s{t}, s{u}")
    a(f"s_lshl_b32 s{sTT}, s{sRB2}, 1")

def mapping_attn(a, cfg):
    m = cfg.get("mapa", "32x1")
    if m == "same":
        a(f"s_mov_b32 s{sRBa}, s{sRB2}"); a(f"s_mov_b32 s{sCBa}, s{sCB2}")
    elif m == "32x1":
        a(f"s_lshr_b32 s{sRBa}, s2, 3"); a(f"s_and_b32 s{sCBa}, s2, 7")
    elif m == "16x2":
        a(f"s_and_b32 s{sTmp}, s2, 7"); a(f"s_lshr_b32 s{sTmp2}, s2, 3")
        a(f"s_lshr_b32 s{sRBa}, s{sTmp}, 2"); a(f"s_lshl_b32 s{sRBa}, s{sRBa}, 4"); a(f"s_lshr_b32 s{sCBa}, s{sTmp2}, 1"); a(f"s_add_u32 s{sRBa}, s{sRBa}, s{sCBa}")
        a(f"s_and_b32 s{sCBa}, s{sTmp}, 3"); a(f"s_lshl_b32 s{sCBa}, s{sCBa}, 1"); a(f"s_and_b32 s{sTmp2}, s{sTmp2}, 1"); a(f"s_add_u32 s{sCBa}, s{sCBa}, s{sTmp2}")
    a(f"s_lshl_b32 s{sTTa}, s{sRBa}, 1")

def prologue(a, cfg):
    a("s_load_dwordx16 s[4:19], s[0:1], 0")
    a("s_load_dwordx4 s[20:23], s[0:1], 64")
    a("s_load_dwordx2 s[24:25], s[0:1], 80")
    a("v_lshrrev_b32 v1, 6, v0"); a("v_and_b32 v0, 63, v0"); a(f"v_readfirstlane_b32 s{sW}, v1")
    mapping(a, cfg)
    a(f"s_and_b32 s{sw4}, s{sW}, 3")
    a(f"s_mul_i32 s{sCol}, s{sCB}, 192"); a(f"s_mul_i32 s{sT0}, s{sCB}, 3")
    a(f"s_lshl_b32 s{sTok}, s{sRB}, 2"); a(f"s_add_u32 s{sTok}, s{sTok}, s{sw4}")

def read_addrs(a, vXA, vWA, base, tmp):
    a(f"v_lshrrev_b32 v{tmp}, 5, v0"); a(f"v_lshlrev_b32 v{tmp}, 3, v{tmp}"); a(f"v_bfe_u32 v{tmp+1}, v0, 2, 2"); a(f"v_add_u32 v{tmp}, v{tmp}, v{tmp+1}")
    a(f"v_mul_u32_u24 v{tmp+1}, 192, v{tmp}")
    a(f"v_bfe_u32 v{tmp}, v0, 4, 1"); a(f"v_lshl_add_u32 v{tmp+1}, v{tmp}, 5, v{tmp+1}")
    a(f"v_and_b32 v{tmp}, 3, v0"); a(f"v_lshl_add_u32 v{tmp+1}, v{tmp}, 3, v{tmp+1}")
    a(f"v_and_b32 v{tmp+2}, 31, v0"); a(f"v_lshlrev_b32 v{tmp+2}, 7, v{tmp+2}"); a(f"s_lshl_b32 s{sTmp}, s{sw4}, 12"); a(f"v_add_u32 v{tmp+2}, s{sTmp}, v{tmp+2}")
    a(f"v_lshrrev_b32 v{tmp}, 5, v0"); a(f"v_bfe_u32 v{tmp+3}, v0, 1, 3"); a(f"v_xor_b32 v{tmp+3}, v{tmp+3}, v{tmp}")
    for i in range(4):
        a(f"s_xor_b32 s{sTmp2}, s{sw4}, {i}")
        a(f"s_lshl_b32 s{sTmp}, s{sTmp2}, 1"); a(f"v_xor_b32 v{tmp}, s{sTmp}, v{tmp+3}"); a(f"v_lshl_add_u32 v{vXA+i}, v{tmp}, 4, v{tmp+2}")
        a(f"s_mul_i32 s{sTmp}, s{sTmp2}, 3072"); a(f"s_add_u32 s{sTmp}, s{sTmp}, {base}"); a(f"v_add_u32 v{vWA+i}, s{sTmp}, v{tmp+1}")
def split_hi_lo(a, v, hi, lo, t):
    a(f"v_cvt_pk_bf16_f32 v{hi}, v{v}, v{v}"); a(f"v_and_b32 v{t}, 0xffff0000, v{hi}"); a(f"v_sub_f32 v{t}, v{v}, v{t}"); a(f"v_cvt_pk_bf16_f32 v{lo}, v{t}, v{t}")
def w_aug(a, dst, cs, bias, t0, t1, t2, vM):
    split_hi_lo(a, cs, t0, t1, t2)
    a(f"v_bfi_b32 v{dst}, v{vM}, v{t0}, v{t1}")
    if bias is None: a(f"v_and_b32 v{dst+1}, 0xffff, v{t0}")
    else: a(f"v_bfi_b32 v{dst+1}, v{vM}, v{t0}, v{bias}")
def x_aug(a, dst, mean, inv, t0, t1, t2, t3, vM):
    a(f"v_mov_b32 v{vM}, 0xffff")
    a(f"v_sub_f32 v{t3}, 0, v{mean}")
    split_hi_lo(a, t3, dst, t1, t2)
    if inv is None:
        a(f"v_and_b32 v{dst+1}, 0xffff, v{t1}"); a(f"v_mov_b32 v{dst+2}, 0")
    else:
        split_hi_lo(a, inv, t0, t3, t2)
        a(f"v_bfi_b32 v{dst+1}, v{vM}, v{t1}, v{t0}"); a(f"v_and_b32 v{dst+2}, 0xffff, v{t3}")
    a(f"v_mov_b32 v{dst+3}, 0")
    a("v_cmp_gt_u32 vcc, 32, v0")
    for i in range(3): a(f"v_cndmask_b32 v{dst+i}, 0, v{dst+i}, vcc")
def selector(a, dst):
    a("v_bfe_u32 v5, v0, 4, 1"); a("v_and_b32 v7, 15, v0"); a("v_cmp_eq_u32 vcc, v5, v7")
    a("v_mov_b32 v5, 0x3f803f80"); a(f"v_cndmask_b32 v{dst}, 0, v5, vcc")
    for q in range(1, 4): a(f"v_mov_b32 v{dst+q}, v{dst}")
def cs_addr(a, vw, vrd, t0):
    a(f"s_mul_i32 s{sTmp}, s{sw4}, 768"); a(f"s_add_u32 s{sTmp}, s{sTmp}, {L_CS + t0*128}")
    a(f"v_lshlrev_b32 v{vw}, 2, v0"); a(f"v_and_b32 v{vrd}, 124, v{vw}"); a(f"v_add_u32 v{vw}, s{sTmp}, v{vw}"); a(f"v_add_u32 v{vrd}, {L_CS + t0*128}, v{vrd}")
def cs_publish(a, vCS, vw):
    a("s_mov_b64 exec, 0xffff")
    for t in range(3): a.lds(f"ds_write2_b32 v{vw}, v{vCS+4*t}, v{vCS+4*t+1} offset0:{t*32} offset1:{t*32+16}", "cs")
    a("s_mov_b64 exec, -1")
def cs_read(a, dst, vrd):
    for t in range(3):
        for w in range(4): a.lds(f"ds_read_b32 v{dst+4*t+w}, v{vrd} offset:{w*768 + t*128}", ("cs", t))
def cs_sum(a, d):
    a(f"v_add_f32 v{d}, v{d}, v{d+1}"); a(f"v_add_f32 v{d+2}, v{d+2}, v{d+3}"); a(f"v_add_f32 v{d}, v{d}, v{d+2}")
def mlp_scale(a, vRstd, vS, vInv, vA1, vB1):
    a(f"v_mul_f32 v{vS}, v{vRstd}, v{vRstd}"); a(f"v_mov_b32 v{vInv}, {f32(1.0+EPS)}")
    a(f"v_fmamk_f32 v{vS}, v{vS}, {f32(-EPS)}, v{vInv}"); a(f"v_rsq_f32 v{vS}, v{vS}")
    a(f"v_mul_f32 v{vS}, v{vS}, v{vRstd}"); a(f"v_rcp_f32 v{vInv}, v{vS}")
    a(f"v_mul_f32 v{vA1}, {f32(GELU_A)}, v{vS}")
    a(f"v_mul_f32 v{vB1}, v{vS}, v{vS}"); a(f"v_mul_f32 v{vB1}, v{vB1}, v{vS}"); a(f"v_mul_f32 v{vB1}, {f32(GELU_B)}, v{vB1}")
from fused_v2 import gelu_pk, gelu_sc
def h_store(a, pk, dt, vL16):
    a(f"s_add_u32 s{sTmp}, s{sT0}, {dt}"); a(f"s_cmp_lt_u32 s{sTmp}, 43")
    a(f"s_mov_b32 s{R5}, s{sWS}"); a(f"s_mov_b32 s{R5+1}, s{sWS+1}"); a(f"s_cselect_b32 s{R5+2}, s{sWS+2}, 0"); a(f"s_mov_b32 s{R5+3}, 0x20000")
    a(f"s_mul_i32 s{sO}, s{sTok}, 86"); a(f"s_lshl_b32 s{sTmp}, s{sTmp}, 1"); a(f"s_add_u32 s{sO}, s{sO}, s{sTmp}"); a(f"s_lshl_b32 s{sO}, s{sO}, 10"); a(f"s_add_u32 s{sO}, s{sO}, {WS_H}")
    for s in range(2):
        a.vmem(f"buffer_store_dwordx4 {vr(pk+4*s,4)}, v{vL16}, s[{R5}:{R5+3}], s{sO} offen offset:{s*1024} sc1", "out")
def l2_prefetch(a, cfg, v, RW, R2_):
    nsh = int(cfg["map2"].split("x")[0]); per = 1888 // nsh; nins = -(-per // 256); pw = -(-per // (4 * nins))
    a(f"s_and_b32 s{sTmp}, s{sRB2}, {nsh-1}"); a(f"s_mul_i32 s{sTmp}, s{sTmp}, {per}"); a(f"s_mul_i32 s{sTmp2}, s{sw4}, {pw}"); a(f"s_add_u32 s{sTmp}, s{sTmp}, s{sTmp2}")
    a(f"v_min_u32 v{v}, {pw-1}, v0"); a(f"v_add_u32 v{v}, s{sTmp}, v{v}"); a(f"v_lshlrev_b32 v{v}, 10, v{v}")
    a(f"s_lshl_b32 s{sTmp}, s{sCB2}, 7"); a(f"v_add_u32 v{v}, s{sTmp}, v{v}")
    for i in range(nins):
        if i: a(f"v_add_u32 v{v}, {4*pw*1024}, v{v}")
        a(f"v_add_u32 v{v+1}, {(-512*1024) & 0xffffffff}, v{v}")
        a.vmem(f"buffer_load_dword v1, v{v}, s[{RW}:{RW+3}], 0 offen {cfg.get('aux_pf', '')}", "pf")
        a.vmem(f"buffer_load_dword v1, v{v+1}, s[{R2_}:{R2_+3}], 0 offen {cfg.get('aux_pf', '')}", "pf")
def dpp_sum64(a, regs):
    for m in ("row_shr:1 row_mask:0xf bank_mask:0xf", "row_shr:2 row_mask:0xf bank_mask:0xf", "row_shr:4 row_mask:0xf bank_mask:0xf", "row_shr:8 row_mask:0xf bank_mask:0xf",
              "row_bcast:15 row_mask:0xa bank_mask:0xf", "row_bcast:31 row_mask:0xc bank_mask:0xf"):
        for v in regs: a(f"v_add_f32_dpp v{v}, v{v}, v{v} {m} bound_ctrl:0" if "shr" in m else f"v_add_f32_dpp v{v}, v{v}, v{v} {m}")

def p1_A(a, cfg):
    ACC, XF, WF, NB = 176, 224, 16, 3
    vXA, vWA, vCS, vSel, vSt, XA, WA, vM, T = 136, 140, 236, 248, 252, 52, 224, 11, 12
    PK, VT, RW = 16, 40, 16
    stamp(a, cfg, 1)
    a("s_waitcnt lgkmcnt(0)")
    tag_load(a)
    srd(a, R0, pX, 0x200000); srd(a, sWS, pWS, 0x10000000)
    a(f"s_lshl_b32 s{sTmp}, s{sRB}, 4"); a(f"s_add_u32 s{sTmp}, s{sTmp}, s{sCB}"); a(f"s_lshl_b32 s{sTmp}, s{sTmp}, 2"); a(f"s_add_u32 s{sTmp}, s{sTmp}, s{sw4}"); a(f"s_lshl_b32 s{sD}, s{sTmp}, 1")
    a(f"s_lshl_b32 s{sO}, s{sD}, 10"); a("v_lshlrev_b32 v2, 4, v0")
    for r in range(2): a.vmem(f"buffer_load_dwordx4 {vr(RW+4*r,4)}, v2, s[{R0}:{R0+3}], s{sO} offen offset:{r*1024}", "row")
    if cfg.get("codepf", True):
        nopf = a.label("nopf"); here = a.label("here")
        a(f"s_lshr_b32 s{sTmp}, s2, 3"); a(f"s_cmp_ge_u32 s{sTmp}, 4"); a(f"s_cbranch_scc1 {nopf}")
        a(f"s_cmp_lg_u32 s{sW}, 1"); a(f"s_cbranch_scc1 {nopf}")
        a(f"s_getpc_b64 s[{R6}:{R6+1}]"); a(f"{here}:")
        a(f"s_sub_u32 s{R6}, s{R6}, {here}-{KN}_kernel"); a(f"s_subb_u32 s{R6+1}, s{R6+1}, 0")
        a(f"s_lshl_b32 s{sTmp}, s{sTmp}, 13"); a("v_lshlrev_b32 v3, 7, v0"); a(f"v_add_u32 v3, s{sTmp}, v3")
        a(f"v_min_u32 v3, L_attn_slow-{KN}_kernel, v3")
        a(f"global_load_dword v1, v3, s[{R6}:{R6+1}]")
        a(f"{nopf}:")
    read_addrs(a, vXA, vWA, L_W, 4)
    selector(a, vSel)
    cs_addr(a, 8, 9, 0)
    attn_setup_v(a, cfg)
    a("s_waitcnt lgkmcnt(0)"); tag_make(a)
    a("s_waitcnt vmcnt(0)"); a.vm = []
    a("s_mov_b32 s62, 0x3f803f80")
    for r in range(2):
        a(f"v_dot2_f32_bf16 v{4+2*r}, v{RW+4*r}, s62, 0"); a(f"v_dot2_f32_bf16 v{5+2*r}, v{RW+4*r}, v{RW+4*r}, 0")
        for q in range(1, 4):
            a(f"v_dot2_f32_bf16 v{4+2*r}, v{RW+4*r+q}, s62, v{4+2*r}"); a(f"v_dot2_f32_bf16 v{5+2*r}, v{RW+4*r+q}, v{RW+4*r+q}, v{5+2*r}")
    dpp_sum64(a, [4, 5, 6, 7])
    for r in range(2):
        m, q = 4 + 2*r, 5 + 2*r; d = RW + 4*r
        a(f"v_mul_f32 v{d}, {f32(1/512)}, v{m}"); a(f"v_mul_f32 v{m}, v{d}, v{d}"); a(f"v_mul_f32 v{q}, {f32(1/512)}, v{q}"); a(f"v_sub_f32 v{q}, v{q}, v{m}")
        a(f"v_max_f32 v{q}, 0, v{q}"); a(f"v_add_f32 v{q}, {f32(EPS)}, v{q}"); a(f"v_rsq_f32 v{d+2}, v{q}")
        a(f"v_mov_b32 v{d+1}, s{sN}"); a(f"v_mov_b32 v{d+3}, s{sN}")
    a(f"s_lshl_b32 s{sO}, s{sD}, 4"); a(f"s_add_u32 s{sO}, s{sO}, {WS_ST}"); a("v_mov_b32 v4, 0")
    a("s_mov_b32 exec_lo, 0"); a("s_mov_b32 exec_hi, 0x80000000")
    for r in range(2): a.vmem(f"buffer_store_dwordx4 {vr(RW+4*r,4)}, v4, s[{sWS}:{sWS+3}], s{sO} offen offset:{r*16} sc1", "stst")
    noc = a.label("nocnt")
    a(f"s_cmp_lg_u32 s{sW}, 2"); a(f"s_cbranch_scc1 {noc}")
    srd(a, R6, pDBG, 256); a("v_mov_b32 v5, 1"); a(f"s_and_b32 s{sTmp}, s2, 1"); a(f"s_lshl_b32 s{sTmp}, s{sTmp}, 7")
    a(f"buffer_atomic_add v5, v4, s[{R6}:{R6+3}], s{sTmp} offen")
    a(f"{noc}:")
    a("s_mov_b64 exec, -1")
    def reads(n):
        c, i = n >> 2, n & 3; b = n % NB
        r = [f"ds_read_b128 {vr(XF+4*b,4)}, v{vXA+i} offset:{(c & 3)*16384}"]
        for t in range(3):
            for sec in range(2):
                r.append(f"ds_read_b64_tr_b16 {vr(WF+12*b+4*t+2*sec,2)}, v{vWA+i} offset:{(c & 3)*12288 + t*64 + sec*768}")
        return r
    a(f"s_mul_i32 s{sTmp}, s{sw4}, 2304"); a(f"s_add_u32 s{sTmp}, s{sTmp}, {L_VS}")
    a("v_and_b32 v4, 31, v0"); a("v_mul_u32_u24 v4, 72, v4"); a("v_lshrrev_b32 v5, 5, v0"); a("v_lshl_add_u32 v4, v5, 3, v4"); a(f"v_add_u32 v4, s{sTmp}, v4")
    a("v_lshlrev_b32 v6, 2, v5"); a("v_bfe_u32 v7, v0, 2, 2"); a("v_add_u32 v6, v6, v7"); a("v_mul_u32_u24 v6, 72, v6")
    a("v_bfe_u32 v7, v0, 4, 1"); a("v_lshl_add_u32 v6, v7, 5, v6"); a("v_and_b32 v13, 3, v0"); a("v_lshl_add_u32 v6, v13, 3, v6"); a(f"v_add_u32 v6, s{sTmp}, v6")
    a("v_lshlrev_b32 v7, 16, v7"); a("v_lshl_add_u32 v7, v5, 8, v7"); a("v_and_b32 v13, 15, v0"); a("v_lshl_add_u32 v7, v13, 4, v7")
    a("s_barrier")
    stamp(a, cfg, 2)
    for n in range(2):
        for r in reads(n): a.lds(r, ("f", n))
    fill = Fill()
    SN = int(cfg.get("st_n", 18))
    for n in range(32):
        c, i = n >> 2, n & 3; b = n % NB
        if i == 2 and c < 7:
            a("s_barrier")
            if c in (0, 3): stamp(a, cfg, 3 + c // 3)
        if n == SN: stats_issue(a, vSt, 10)
        if n == SN + 6:
            stats_check(a, vSt, 10)
            fill.add(lambda f: x_aug(f, XA, vSt, None, T, T + 1, T + 2, T + 3, vM))
        if n == 30: cs_publish(a, vCS, 8)
        a.wait(lg=("f", n))
        nxt = reads(n + 2) if n < 30 else []
        k = 0
        for t in range(3):
            wf = vr(WF + 12*b + 4*t, 4); xf = vr(XF + 4*b, 4); acc = vr(ACC + 16*t, 16)
            a(f"v_mfma_f32_32x32x16_bf16 {acc}, {wf}, {xf}, {'0' if n == 0 else acc}")
            take = 3 if t == 0 else 2
            for r in nxt[k:k+take]: a.lds(r, ("f", n + 2))
            k += take
            if i == 0: a(f"v_mfma_f32_16x16x32_bf16 {vr(vCS+4*t,4)}, {vr(vSel,4)}, {wf}, {'0' if n == 0 else vr(vCS+4*t,4)}")
            fill.emit(a, 2)
        if n == 30:
            a.wait(lg="all"); a("s_barrier")
            stamp(a, cfg, 5)
            cs_read(a, vCS, 9)
    fill.flush(a)
    for t in range(3):
        a(f"v_mov_b32 v{WA+4*t+2}, 0"); a(f"v_mov_b32 v{WA+4*t+3}, 0")
        a.wait(lg=("cs", t)); cs_sum(a, vCS + 4*t)
        w_aug(a, WA + 4*t, vCS + 4*t, None, T, T + 1, T + 2, vM)
        acc = vr(ACC + 16*t, 16)
        a(f"v_mfma_f32_32x32x16_bf16 {acc}, {vr(WA+4*t,4)}, {vr(XA,4)}, {acc}")
    stamp(a, cfg, 6)
    if cfg.get("prioA"): a(f"s_setprio {cfg['prioA']}")
    a(f"s_lshl_b32 s{sKC}, s{sTok}, 10"); a(f"s_add_u32 s{sKC}, s{sKC}, {WS_QK}")
    for t in range(3):
        z = ACC + 16*t; pk = PK + 8*t
        a(f"s_add_u32 s{sTmp}, s{sT0}, {t}"); a(f"s_cmp_lt_u32 s{sTmp}, 16"); a(f"s_cselect_b32 s{sTmp2}, {f32(QSCALE)}, 1.0")
        a(f"v_mul_f32 v9, s{sTmp2}, v{vSt+2}")
        a(f"s_lshl_b32 s{sO}, s{sTmp}, 17"); a(f"s_add_u32 s{sO}, s{sO}, s{sKC}")
        for q in range(16): a(f"v_mul_f32 v{z+q}, v{z+q}, v9")
        for q in range(8): a(f"v_cvt_pk_bf16_f32 v{pk+q}, v{z+2*q}, v{z+2*q+1}")
        lv = a.label("vt"); le = a.label("vte")
        a(f"s_cmp_ge_u32 s{sTmp}, 32"); a(f"s_cbranch_scc1 {lv}")
        a(f"buffer_store_dwordx4 {vr(pk,4)}, v2, s[{sWS}:{sWS+3}], s{sO} offen sc1")
        a(f"s_add_u32 s{sO}, s{sO}, 65536")
        a(f"buffer_store_dwordx4 {vr(pk+4,4)}, v2, s[{sWS}:{sWS+3}], s{sO} offen sc1")
        a(f"s_branch {le}")
        a(f"{lv}:")
        for j in range(4): a(f"ds_write_b64 v4, {vr(pk+2*j,2)} offset:{j*16}")
        for s in range(2):
            for sec in range(2): a(f"ds_read_b64_tr_b16 {vr(VT+8*(t&1)+4*s+2*sec,2)}, v6 offset:{(16*s + 8*sec)*72}")
        a("s_waitcnt lgkmcnt(0)")
        for s in range(2): a(f"buffer_store_dwordx4 {vr(VT+8*(t&1)+4*s,4)}, v7, s[{sWS}:{sWS+3}], s{sO} offen offset:{s*512} sc1")
        a(f"{le}:")
        a.vm += ["out", "out"]
    stamp(a, cfg, 7)
    attn_setup(a, cfg)
    stamp(a, cfg, 8)
    f1_addr(a, 0); publish(a, f"s{sO}", 14)
    if cfg.get("l2pf", "B8") == "A":
        srd(a, R4, pWO, 524288); srd(a, R5, pW2, 1409024); l2_prefetch(a, cfg, 14, R4, R5)
    if cfg.get("early", True):
        a("v_lshrrev_b32 v18, 3, v0"); a("v_bfe_u32 v19, v0, 4, 1"); a("v_lshlrev_b32 v19, 2, v19"); a("v_and_b32 v20, 7, v0"); a("v_xor_b32 v20, v20, v19"); a("v_lshlrev_b32 v20, 4, v20")
        a("v_lshl_add_u32 v16, v18, 10, v20"); a(f"s_lshl_b32 s{sTmp}, s{sCB2}, 7"); a(f"v_add_u32 v16, s{sTmp}, v16"); a("v_add_u32 v17, 7168, v16")
        a(f"s_mul_i32 s{sKW2}, s{sw4}, {22*16*1024}"); a(f"s_lshl_b32 s{sL2}, s{sw4}, 11")
        srd(a, R4, pWO, 524288); srd(a, R5, pW2, 1409024)
        for g in range(4): wo_op(a, cfg, 1, g, 16, R4, sKC)
        a(f"v_mov_b32 v10, {L_CNT}")
        lds_spin(a, 10, 11, C_X, 4, sleep=1)
        for n in range(4):
            for kb in range(2): w2_op(a, cfg, n, kb, 16, R5, sKC)
        for g in range(3): wo_op(a, cfg, 0, g, 16, R4, sKC)
    stamp(a, cfg, 9)

vW = 128
def p2w_setup(a):
    a("v_lshrrev_b32 v132, 3, v0"); a("v_bfe_u32 v133, v0, 4, 1"); a("v_lshlrev_b32 v133, 2, v133"); a("v_and_b32 v134, 7, v0"); a("v_xor_b32 v134, v134, v133"); a("v_lshlrev_b32 v134, 4, v134")
    a(f"v_lshl_add_u32 v{vW}, v132, 10, v134"); a(f"s_lshl_b32 s{sWoG}, s{sCB2}, 7"); a(f"v_add_u32 v{vW}, s{sWoG}, v{vW}")
    a(f"v_add_u32 v{vW+1}, 7168, v{vW}")
    a(f"s_mul_i32 s{sKW2}, s{sw4}, {22*16*1024}"); a(f"s_lshl_b32 s{sL2}, s{sw4}, 11")
    srd(a, R0, pW2, 1409024); srd(a, R2, pWO, 524288)
def wo_op(a, cfg, half, g, v=vW, R=R2, sD=sD):
    a(f"s_add_u32 m0, s{sL2}, {WO_BASE[half] + g*8192}"); a(f"s_lshl_b32 s{sD}, s{sw4}, 14"); a(f"s_add_u32 s{sD}, s{sD}, {half*262144 + g*65536}")
    for kb in range(2): a.vmem(f"buffer_load_dwordx4 v{v+kb}, s[{R}:{R+3}], s{sD} offen offset:{kb*1024} {cfg['aux_w2']} lds", "wo")
def w2_op(a, cfg, n, kb, v=vW, R=R0, sD=sD):
    if kb == 0: a(f"s_add_u32 m0, s{sL2}, {(n % 8)*8192}"); a(f"s_add_u32 s{sD}, s{sKW2}, {n*16384}")
    a.vmem(f"buffer_load_dwordx4 v{v+kb}, s[{R}:{R+3}], s{sD} offen offset:{kb*1024} {cfg['aux_w2']} lds", ("w", n))
def xb_load(a, XR):
    sXO, sB2 = R3, R5
    srd(a, sXO, pX, 0x200000); srd(a, sB2, pB2, 1024)
    a(f"s_lshr_b32 s{sTmp2}, s{sw4}, 1"); a(f"s_add_u32 s{sT1}, s{sTT}, s{sTmp2}")
    a(f"s_and_b32 s{sKH}, s{sw4}, 1"); a(f"s_lshl_b32 s{sKH}, s{sKH}, 6"); a(f"s_lshl_b32 s{sTmp}, s{sCB2}, 7"); a(f"s_add_u32 s{sTmp}, s{sTmp}, s{sKH}")
    a("v_lshrrev_b32 v154, 5, v0"); a("v_lshlrev_b32 v152, 3, v154"); a(f"v_add_u32 v152, s{sTmp}, v152")
    a("v_and_b32 v155, 31, v0"); a(f"s_lshl_b32 s{sTmp}, s{sT1}, 5"); a(f"v_add_u32 v155, s{sTmp}, v155"); a("v_lshl_add_u32 v153, v155, 10, v152")
    for j in range(4):
        a.vmem(f"buffer_load_dwordx2 {vr(XR+2*j,2)}, v153, s[{sXO}:{sXO+3}], 0 offen offset:{j*16}", "xb")
        a.vmem(f"buffer_load_dwordx2 {vr(XR+8+2*j,2)}, v152, s[{sB2}:{sB2+3}], 0 offen offset:{j*16}", "xb")

def p1_B(a, cfg):
    XR, ACC, WF, NB = 128, 16, 64, 3
    vXs, vU, vWB = 16, 20, 124
    vXA, vWX, vWA, vCS, vSel = 24, 100, 104, 108, 120
    vSt, vBias = 4, 8
    sX, sU0, sUB = R0, R2, R4
    a("v_lshrrev_b32 v5, 3, v0"); a("v_lshrrev_b32 v6, 4, v0")
    a("v_and_b32 v7, 7, v0"); a("v_xor_b32 v7, v7, v6"); a("v_lshlrev_b32 v7, 4, v7")
    a(f"s_lshl_b32 s{sTmp}, s{sTok}, 5"); a(f"v_add_u32 v4, s{sTmp}, v5"); a(f"v_lshl_add_u32 v{vXs}, v4, 10, v7")
    a(f"v_xor_b32 v{vXs+1}, 64, v{vXs}"); a(f"v_add_u32 v{vXs+2}, {2*7168}, v{vXs}"); a(f"v_add_u32 v{vXs+3}, {3*7168}, v{vXs+1}"); a(f"v_add_u32 v{vXs+1}, 7168, v{vXs+1}")
    a(f"s_lshl_b32 s{sLdsX}, s{sw4}, 12"); a(f"s_mul_i32 s{sLdsW}, s{sw4}, 3072"); a(f"s_lshl_b32 s{sTmp}, s{sw4}, 4")
    for i in range(3):
        a(f"v_add_u32 v4, {64*i}, v0"); a("v_mul_u32_u24 v5, 43691, v4"); a("v_lshrrev_b32 v5, 19, v5"); a("v_mul_u32_u24 v6, 12, v5"); a("v_sub_u32 v4, v4, v6")
        a(f"v_add_u32 v5, s{sTmp}, v5"); a(f"v_lshlrev_b32 v4, 4, v4"); a(f"v_add_u32 v4, s{sCol}, v4")
        if i: a(f"v_add_u32 v4, {(-1024*i) & 0xffffffff}, v4")
        a(f"v_mul_u32_u24 v6, 3072, v5"); a(f"v_add_u32 v{vU+i}, v6, v4"); a(f"v_mul_u32_u24 v6, 2752, v5"); a(f"v_add_u32 v{vWB+i}, v6, v4")
    a("s_waitcnt lgkmcnt(0)")
    srd(a, sX, pX, 0x200000); srd(a, sU0, pQKV, 1572864)
    def dma_i(vaddr, srdreg, off, tag, aux):
        a.vmem(f"buffer_load_dwordx4 v{vaddr}, s[{srdreg}:{srdreg+3}], s{sO} offen offset:{off} {aux} lds".replace("  ", " "), tag)
    def stage(c):
        a(f"s_add_u32 s{sKC}, s{sROT}, {c}"); a(f"s_and_b32 s{sKC}, s{sKC}, 7")
        a(f"s_add_u32 m0, s{sLdsX}, {L_X + (c & 3)*16384}"); a(f"s_lshl_b32 s{sO}, s{sKC}, 7")
        for g in range(4): dma_i(vXs + g, sX, g * 1024, ("st", c), cfg["aux_x"])
        a(f"s_add_u32 m0, s{sLdsW}, {L_W + (c & 3)*12288}"); a(f"s_mul_i32 s{sO}, s{sKC}, {64*3072}")
        for g in range(3): dma_i(vU + g, sU0, g * 1024, ("st", c), cfg["aux_w"])
    def wb_base(cb): return (L_X + (cb >> 1)*16384) if cb & 1 else (L_W + (cb >> 1)*12288)
    def wb_op(cb, g):
        if g == 0:
            a(f"s_add_u32 s{sKC}, s{sROT}, {cb}"); a(f"s_and_b32 s{sKC}, s{sKC}, 7")
            a(f"s_add_u32 m0, s{sLdsW}, {wb_base(cb)}"); a(f"s_mul_i32 s{sO}, s{sKC}, {64*2752}")
        dma_i(vWB + g, sUB, g * 1024, ("wb", cb), cfg["aux_w"])
    stamp(a, cfg, 1)
    stage(0)
    tag_load(a)
    srd(a, sWS, pWS, 0x10000000); srd(a, sUB, pW1, 1409024)
    a(f"s_cmp_lt_u32 s{sT0}, 43"); a(f"s_cselect_b32 s{sUB+2}, s{sUB+2}, 0")
    a("v_mov_b32 v6, 0"); a("v_lshlrev_b32 v7, 2, v0"); a("v_and_b32 v7, 127, v7"); a(f"v_add_u32 v7, {L_CNT}, v7"); a("ds_write_b32 v7, v6")
    read_addrs(a, vXA, vWX, 0, 4)
    for i in range(4): a(f"v_add_u32 v{vWA+i}, {L_W}, v{vWX+i}")
    selector(a, vSel)
    cs_addr(a, 14, 15, 3)
    a(f"v_mov_b32 v12, {L_CNT}"); a("v_mov_b32 v13, 1")
    srd(a, R5, pB1, 2752)
    a("v_and_b32 v4, 31, v0"); a("v_lshlrev_b32 v4, 1, v4"); a(f"s_lshl_b32 s{sTmp}, s{sT0}, 6"); a(f"v_add_u32 v4, s{sTmp}, v4")
    for t in range(3): a(f"v_mov_b32 v{vBias+t}, 0")
    for t in range(3): a.vmem(f"buffer_load_short_d16_hi v{vBias+t}, v4, s[{R5}:{R5+3}], 0 offen offset:{t*64}", "bias")
    stage(1)
    a("s_waitcnt lgkmcnt(0)"); tag_make(a)
    a.wait(vm=("st", 0)); a("s_barrier")
    stamp(a, cfg, 2)
    SC = int(cfg.get("st_c", 4))
    for c in range(8):
        for i in range(4):
            a.lds(f"ds_read_b128 {vr(XR+16*c+4*i,4)}, v{vXA+i} offset:{(c&3)*16384}", ("x", c))
        if c < 6: stage(c + 2)
        else:
            for cb in (2*(c-6), 2*(c-6) + 1):
                for g in range(3): wb_op(cb, g)
        if c == SC: stats_issue(a, vSt, 11)
        if cfg.get("l2pf") == "C" and c == int(cfg.get("pf_c", 4)):
            srd(a, R3, pWO, 524288); srd(a, R6, pW2, 1409024); l2_prefetch(a, cfg, 2, R3, R6)
        a.wait(lg=("x", c))
        if c == 7: a.wait(vm=("wb", 1))
        else: a.wait(vm=("st", c + 1))
        a("s_barrier")
        if c in (0, 3): stamp(a, cfg, 3 + c // 3)
    stamp(a, cfg, 5)
    def reads(n):
        c, i = n >> 2, n & 3; b = n % NB
        base = (vWX if c & 1 else vWA); so = (c >> 1) * (16384 if c & 1 else 12288)
        return [f"ds_read_b64_tr_b16 {vr(WF+12*b+4*t+2*sec,2)}, v{base+i} offset:{so + t*64 + sec*768}" for t in range(3) for sec in range(2)]
    for n in range(2):
        for r in reads(n): a.lds(r, ("f", n))
    late = [(cb, g) for cb in range(4, 8) for g in range(3)]
    XA, vS, vInv, vA1, vB1, vM, T, WA = 156, 160, 162, 164, 166, 168, 170, 176
    fill = Fill()
    for n in range(32):
        c, i = n >> 2, n & 3; b = n % NB
        if n == int(cfg.get("prio_n", 2)) and cfg.get("prio", True): a(f"s_setprio {cfg.get('prioB1', 1)}")
        if n == 2: fill.add(p2w_setup)
        if n == 3: a.wait(vm=("wb", 3)); lds_count(a, 12, 13, C_S1)
        if n == 5: sync_read(a, 12, 3, C_S1)
        if n == 6: sync_check(a, 12, 3, C_S1, 4)
        if n == int(cfg.get("pf_n", 13)) and cfg.get("l2pf", "B8") == "B8":
            fill.flush(a); l2_prefetch(a, cfg, 2, R2, R0)
        if n == int(cfg.get("s2_n", 10)): a.wait(vm=("wb", 5)); lds_count(a, 12, 13, C_S2)
        if n == 13: sync_read(a, 12, 3, C_S2)
        if n == 14: sync_check(a, 12, 3, C_S2, 4)
        if n == 16: lds_count(a, 12, 13, C_X)
        if n == 15:
            stats_check(a, vSt, 11)
            fill.add(lambda f: (mlp_scale(f, vSt + 2, vS, vInv, vA1, vB1), x_aug(f, XA, vSt, vInv, T, T + 1, T + 2, T + 3, vM)))
            fill.add(lambda f: [(f(f"v_lshrrev_b32 v{WA+4*t+2}, 16, v{vBias+t}"), f(f"v_mov_b32 v{WA+4*t+3}, 0")) for t in range(3)])
        if n == int(cfg.get("s3_n", 18)): a.wait(vm=("wb", 7)); lds_count(a, 12, 13, C_S3)
        if n == 21: sync_read(a, 12, 3, C_S3)
        if n == 22: sync_check(a, 12, 3, C_S3, 4)
        if n == int(cfg.get("xb_n", 99)): xb_load(a, 136)
        if cfg.get("detB") and str(n) in cfg["detB"].split(","): stamp(a, cfg, (1, 2, 3, 4, 7, 8, 9)[cfg["detB"].split(",").index(str(n))], True)
        a.wait(lg=("f", n))
        nxt = reads(n + 2) if n < 30 else []
        for t in range(3):
            acc = vr(ACC + 16*t, 16); wf = vr(WF+12*b+4*t, 4)
            a(f"v_mfma_f32_32x32x16_bf16 {acc}, {wf}, {vr(XR+4*n,4)}, {'0' if n == 0 else acc}")
            for r in nxt[2*t:2*t+2]: a.lds(r, ("f", n + 2))
            if i == 0: a(f"v_mfma_f32_16x16x32_bf16 {vr(vCS+4*t,4)}, {vr(vSel,4)}, {wf}, {'0' if n == 0 else vr(vCS+4*t,4)}")
            if late and t < int(cfg.get("wb_rate", 1)): wb_op(*late.pop(0))
            fill.emit(a, 2)
        if n == 29: cs_publish(a, vCS, 14); lds_count(a, 12, 13, C_CS)
        if n == 31: sync_read(a, 12, 3, C_CS)
        if n == 31: lds_count(a, 12, 13, C_RING)
    fill.flush(a)
    stamp(a, cfg, 6)
    if cfg.get("detB"): a.mute = True
    if cfg.get("prio", True): a(f"s_setprio {cfg.get('prioB1b', 3)}")
    sync_check(a, 12, 3, C_CS, 4)
    cs_read(a, vCS, 15)
    for t in range(3):
        a.wait(lg=("cs", t)); cs_sum(a, vCS + 4*t)
        w_aug(a, WA + 4*t, vCS + 4*t, vBias + t, T, T + 1, T + 2, vM)
        acc = vr(ACC + 16*t, 16)
        a(f"v_mfma_f32_32x32x16_bf16 {acc}, {vr(WA+4*t,4)}, {vr(XA,4)}, {acc}")
    a("v_lshlrev_b32 v2, 4, v0")
    PK = 64
    stamp(a, cfg, 7)
    for t in range(3):
        if cfg.get("x_nogelu"):
            for q in range(8): a(f"v_cvt_pk_bf16_f32 v{PK+8*t+q}, v{ACC+16*t+2*q}, v{ACC+16*t+2*q+1}")
        else: (gelu_pk if cfg.get("geluB", "pk") == "pk" else gelu_sc)(a, ACC + 16*t, PK + 8*t, 100, vA1, vB1, vInv)
        h_store(a, PK + 8*t, t, 2)
    stamp(a, cfg, 8)

KF, VF, QF, CD, CF, SB, PB, OA = 16, 56, 136, 144, 160, 176, 208, 224
def attn_tiles(): return [(b, j) for b in range(2) for j in range(b, b + 9)]
def attn_epilogue(a, b):
    o = OA + 16 * b
    a(f"v_rcp_f32 v8, v{o+8}")
    for q in range(8): a(f"v_mul_f32 v{o+q}, v{o+q}, v8")
    for q in range(4): a(f"v_cvt_pk_bf16_f32 v{o+8+q}, v{o+2*q}, v{o+2*q+1}")
    a(f"s_add_u32 s{sO}, s{sTTa}, {b}"); a(f"s_lshl_b32 s{sO}, s{sO}, 5"); a(f"s_add_u32 s{sO}, s{sO}, s{sHD}"); a(f"s_lshl_b32 s{sO}, s{sO}, 10"); a(f"s_add_u32 s{sO}, s{sO}, {WS_O}")
    a.vmem(f"buffer_store_dwordx4 {vr(o+8,4)}, v2, s[{sWS}:{sWS+3}], s{sO} offen sc1", "ost")
def s_mfma(a, n, tiles):
    b, j = tiles[n]
    c = vr(CF, 16) if j == b else (vr(CD, 16) if j == b + 8 else "0")
    a(f"v_mfma_f32_32x32x16_bf16 {vr(SB+16*(n&1),16)}, {vr(KF+4*j,4)}, {vr(QF+4*b,4)}, {c}")
def pv_mfma(a, n, s, tiles):
    b, j = tiles[n]; o = vr(OA + 16 * b, 16)
    a(f"v_mfma_f32_32x32x16_bf16 {o}, {vr(VF+8*j+4*s,4)}, {vr(PB+8*(n&1)+4*s,4)}, {'0' if (j == b and s == 0) else o}")
def bound_check(a, cfg):
    a.wait(vm=("k", 9))
    a("v_mov_b32 v10, 0"); a("v_mov_b32 v11, 0")
    for j in range(12):
        base = (KF + 4*j) if j < 10 else (QF + 4*(j-10))
        t = 12 + (j & 1)
        a(f"v_dot2_f32_bf16 v{t}, v{base}, v{base}, 0")
        for q in range(1, 4): a(f"v_dot2_f32_bf16 v{t}, v{base+q}, v{base+q}, v{t}")
        if j > 0:
            pj = j - 1; d = 10 if pj < 10 else 11
            a(f"v_max_f32 v{d}, v{d}, v{12+(pj&1)}")
    a("v_max_f32 v11, v11, v13")
    wave_max32(a, 10); wave_max32(a, 11)
    a(f"v_readlane_b32 s{sA}, v10, 31"); a(f"v_readlane_b32 s{sB}, v10, 63"); a(f"v_readlane_b32 s{sTmp}, v11, 31"); a(f"v_readlane_b32 s{sTmp2}, v11, 63")
    a(f"v_mov_b32 v10, s{sA}"); a(f"v_mov_b32 v11, s{sTmp}"); a(f"v_add_f32 v10, s{sB}, v10"); a(f"v_add_f32 v11, s{sTmp2}, v11")
    a("v_mul_f32 v10, v10, v11")
    a(f"v_cmp_nge_f32 vcc, {f32(cfg.get('bound2', BOUND2))}, v10")
    a("s_nop 4"); a("s_cmp_lg_u64 vcc, 0"); a("s_nop 0" if cfg.get("x_nocheck") else "s_cbranch_scc1 L_attn_slow")

def attn_fast(a, cfg):
    tiles = attn_tiles()
    a.wait(vm=("k", 1))
    if cfg.get("early", True): lds_count(a, 14, 15, C_PRE)
    s_mfma(a, 0, tiles)
    for n in range(18):
        b, j = tiles[n]
        S = SB + 16 * (n & 1); P = PB + 8 * (n & 1)
        ex = lambda q: None if cfg.get("x_noexp") else a(f"v_exp_f32 v{S+q}, v{S+q}")
        cv = lambda q: a(f"v_cvt_pk_bf16_f32 v{P+q}, v{S+2*q}, v{S+2*q+1}")
        if n == 0: s_mfma(a, 1, tiles)
        ex(0); ex(1)
        if n > 0: pv_mfma(a, n - 1, 1, tiles)
        for q in range(2, 5): ex(q)
        ld = cfg["_sched"].get(n, [])
        for o in ld[:1]: o(a)
        for q in range(5, 8): ex(q)
        cv(0)
        if 0 < n < 17: a.wait(vm=("k", tiles[n+1][1])); s_mfma(a, n + 1, tiles)
        cv(1); cv(2); cv(3)
        for q in range(8, 12): ex(q)
        a.wait(vm=("v", j))
        pv_mfma(a, n, 0, tiles)
        for q in range(12, 14): ex(q)
        for o in ld[1:]: o(a)
        for q in range(14, 16): ex(q)
        for q in range(4, 8): cv(q)
        if n == 9: bound_check(a, cfg); attn_epilogue(a, 0)
    pv_mfma(a, 17, 1, tiles)
    attn_epilogue(a, 1)
def attn_slow(a, cfg):
    tiles = attn_tiles()
    for n in range(10, 18):
        for o in cfg["_sched"].get(n, []): o(a)
    a("s_waitcnt vmcnt(0)"); a("s_nop 15"); a.vm = []
    for b in range(2):
        a("v_mov_b32 v10, 0xff800000")
        for n, (bb, j) in enumerate(tiles):
            if bb != b: continue
            skip = a.label("skip")
            a(f"s_add_i32 s{sTmp}, s{sTTa}, {j-8}"); a(f"s_cmp_lt_i32 s{sTmp}, 0"); a(f"s_cbranch_scc1 {skip}")
            s_mfma(a, n, tiles)
            S = SB + 16 * (n & 1)
            for q in range(8): a(f"v_max3_f32 v10, v10, v{S+2*q}, v{S+2*q+1}")
            a(f"{skip}:")
            a("s_nop 7"); a("s_nop 7")
        a("v_mov_b32 v11, v10"); a("v_permlane32_swap_b32 v10, v11"); a("v_max_f32 v10, v10, v11")
        for n, (bb, j) in enumerate(tiles):
            if bb != b: continue
            s_mfma(a, n, tiles)
            S = SB + 16 * (n & 1); P = PB + 8 * (n & 1)
            for q in range(16):
                a(f"v_sub_f32 v{S+q}, v{S+q}, v10"); a(f"v_min_f32 v{S+q}, 0, v{S+q}"); a(f"v_exp_f32 v{S+q}, v{S+q}")
            for q in range(8): a(f"v_cvt_pk_bf16_f32 v{P+q}, v{S+2*q}, v{S+2*q+1}")
            pv_mfma(a, n, 0, tiles); pv_mfma(a, n, 1, tiles)
        attn_epilogue(a, b)
def wave_max32(a, v):
    for m in ("quad_perm:[1,0,3,2] row_mask:0xf bank_mask:0xf", "quad_perm:[2,3,0,1] row_mask:0xf bank_mask:0xf",
              "row_half_mirror row_mask:0xf bank_mask:0xf", "row_mirror row_mask:0xf bank_mask:0xf", "row_bcast:15 row_mask:0xa bank_mask:0xf"):
        a(f"v_max_f32_dpp v{v}, v{v}, v{v} {m}")
def tr_addr2(a, dst, base_s):
    a(f"v_lshrrev_b32 v5, 5, v0"); a(f"v_lshlrev_b32 v{dst}, 9, v5")
    a(f"v_bfe_u32 v5, v0, 2, 2"); a(f"v_lshl_add_u32 v{dst}, v5, 7, v{dst}")
    a(f"v_bfe_u32 v5, v0, 3, 1"); a(f"v_lshl_add_u32 v{dst}, v5, 6, v{dst}")
    a(f"v_bfe_u32 v5, v0, 4, 1"); a(f"v_lshl_add_u32 v{dst}, v5, 5, v{dst}")
    a(f"v_and_b32 v5, 3, v0"); a(f"v_lshl_add_u32 v{dst}, v5, 3, v{dst}")
    a(f"v_add_u32 v{dst}, {base_s}, v{dst}"); a(f"v_xor_b32 v{dst+1}, 64, v{dst}")

def attn_setup(a, cfg):
    sQ, sK, sV = R0, R2, R3
    a(f"s_lshl_b32 s{sHD}, s{sCBa}, 2"); a(f"s_add_u32 s{sHD}, s{sHD}, s{sw4}")
    a(f"s_lshl_b32 s{sTmp}, s{sHD}, 16")
    a(f"s_add_u32 s{sTmp2}, s{sTmp}, {WS_QK}"); sub_srd(a, sQ, f"s{sTmp2}", 65536)
    a(f"s_add_u32 s{sTmp2}, s{sTmp}, {WS_QK + 32*65536}"); sub_srd(a, sK, f"s{sTmp2}", 65536)
    a(f"s_add_u32 s{sTmp2}, s{sTmp}, {WS_V}"); sub_srd(a, sV, f"s{sTmp2}", 65536)
    a(f"s_lshl_b32 s{sM}, s{sTTa}, 10")
    a(f"s_lshr_b32 s{sTmp}, s{sRBa}, 1"); a(f"s_lshl_b32 s{sFQ}, s{sTmp}, 12")
    a(f"s_sub_u32 s{sTmp}, s{sTmp}, 2"); a(f"s_max_i32 s{sTmp}, s{sTmp}, 0"); a(f"s_lshl_b32 s{sFK}, s{sTmp}, 12"); a(f"s_mov_b32 s{sFV}, s{sFK}")
    a(f"s_and_b32 s{sTmp2}, s{sRBa}, 1"); a(f"s_lshl_b32 s{sTmp2}, s{sTmp2}, 3"); a(f"s_add_u32 s{sFQ}, s{sFQ}, s{sTmp2}")
    a(f"s_lshr_b32 s{sTmp}, s{sHD}, 1")
    for r, sec in ((sFQ, 0), (sFK, 16), (sFV, 32)):
        a(f"s_add_u32 s{sTmp2}, s{sTmp}, {sec}"); a(f"s_mul_i32 s{sTmp2}, s{sTmp2}, 43"); a(f"s_lshr_b32 s{sTmp2}, s{sTmp2}, 7"); a(f"s_lshl_b32 s{sTmp2}, s{sTmp2}, 8"); a(f"s_add_u32 s{r}, s{r}, s{sTmp2}")
    a("v_lshrrev_b32 v3, 5, v0"); a("v_lshlrev_b32 v3, 8, v3"); a("v_and_b32 v5, 15, v0"); a("v_lshl_add_u32 v3, v5, 4, v3")

def attn_setup_v(a, cfg):
    mapping_attn(a, cfg)
    a("v_and_b32 v3, 27, v0"); a("v_cmp_eq_u32 vcc, 16, v3")
    a("v_mov_b32 v4, 0x3f803f80"); a("v_cndmask_b32 v4, 0, v4, vcc")

    for j in range(10):
        if j < 8:
            if j % 2 == 0:
                a(f"s_add_i32 s{sTmp}, s{sTTa}, {j-8}"); a(f"s_cmp_ge_i32 s{sTmp}, 0"); a(f"s_cselect_b32 s{sTmp}, -1, 0")
                a(f"v_and_b32 v6, s{sTmp}, v4"); a("v_mov_b32 v7, v6")
        elif j == 8: a("v_mov_b32 v6, v4"); a("v_mov_b32 v7, v4")
        for q in range(4): a(f"v_mov_b64 {vr(VF+8*j+2*q,2)}, v[6:7]")
    a("v_and_b32 v5, 31, v0"); a("v_lshrrev_b32 v6, 5, v0"); a("v_lshlrev_b32 v6, 2, v6"); a("v_sub_u32 v5, v5, v6")
    a(f"v_mov_b32 v6, {f32(NEG)}")
    for r in range(16):
        a(f"v_cmp_le_i32 vcc, {8*(r>>2) + (r&3)}, v5")
        a(f"v_cndmask_b32_e64 v{CD+r}, v6, 0, vcc"); a(f"v_cndmask_b32_e64 v{CF+r}, 0, v6, vcc")

def p2_A(a, cfg):
    ax = "sc1"
    sQ, sK, sV = R0, R2, R3
    a.vm = []; a.lg = []
    stamp(a, cfg, 0)
    a(f"v_mov_b32 v10, {L_CNT}"); a("v_mov_b32 v11, 1")
    pair_poll(a, [((4, 12, 16)[k], 4, sFK, WS_F1 + k*4096) for k in range(3)] + [((44, 48, 52)[k], 4, sFV, WS_F1 + k*4096) for k in range(3)] + [(26, 2, sFQ, WS_F1)],
              int(cfg.get("sleep1", 8)), int(cfg.get("delay1", 0)), 10, 11, 12, C_P1, int(cfg.get("pmask1", 1)))
    a(f"v_mov_b32 v14, {L_CNT}"); a("v_mov_b32 v15, 1")
    if "prioA2" in cfg: a(f"s_setprio {cfg['prioA2']}")
    stamp(a, cfg, 2)
    for b in range(2):
        a.vmem(f"buffer_load_dwordx4 {vr(QF+4*b,4)}, v2, s[{sQ}:{sQ+3}], s{sM} offen offset:{b*1024} {ax}", "q")
    def kload(x, j):
        x(f"s_add_u32 s{sO}, s{sM}, {(j-8)*1024 & 0xffffffff}")
        x.vmem(f"buffer_load_dwordx4 {vr(KF+4*j,4)}, v2, s[{sK}:{sK+3}], s{sO} offen {ax}", ("k", j))
    def vload(x, j):
        x("s_mov_b32 exec_lo, 0xffff"); x("s_mov_b32 exec_hi, 0xffff")
        x(f"s_add_u32 s{sO}, s{sM}, {(j-8)*1024 & 0xffffffff}")
        for s in range(2):
            x.vmem(f"buffer_load_dwordx4 {vr(VF+8*j+4*s,4)}, v3, s[{sV}:{sV+3}], s{sO} offen offset:{s*512} {ax}", ("v", j))
        x("s_mov_b64 exec, -1")
    LA = int(cfg.get("attn_la", 4))
    kload(a, 0)
    for j in range(LA):
        if j < 9: kload(a, j + 1)
        vload(a, j)
    if cfg.get("hold") and LA >= 10: lds_count(a, 14, 15, C_HOLD)
    sched = {}
    for n in range(18):
        j = n + LA
        if j <= 9: sched[n] = ([lambda x, j=j: kload(x, j + 1)] if j < 9 else []) + [lambda x, j=j: vload(x, j)]
        if j == 9 and cfg.get("hold"): sched[n].append(lambda x: lds_count(x, 14, 15, C_HOLD))
    cfg["_sched"] = sched
    stamp(a, cfg, 3)
    saved = list(a.vm)
    attn_fast(a, cfg)
    a("L_attn_done:")
    stamp(a, cfg, 5)
    a.vm = ["x"]
    a(f"s_lshl_b32 s{sO}, s{sRBa}, 3"); a(f"s_add_u32 s{sO}, s{sO}, s{sCBa}"); a(f"s_lshl_b32 s{sO}, s{sO}, 5"); a(f"s_add_u32 s{sO}, s{sO}, s{sw4}"); a(f"s_lshl_b32 s{sO}, s{sO}, 2"); a(f"s_add_u32 s{sO}, s{sO}, {WS_F2}")
    publish(a, f"s{sO}", 4)
    a(f"v_mov_b32 v6, {L_CNT}")
    nl = a.label("noepoch"); lp = a.label("epoch")
    a(f"s_or_b32 s{sTmp}, s2, s{sW}"); a(f"s_cmp_lg_u32 s{sTmp}, 0"); a(f"s_cbranch_scc1 {nl}")
    srd(a, R6, pDBG, 256); a("v_lshlrev_b32 v7, 7, v0"); a("v_and_b32 v7, 128, v7"); a(f"s_mov_b32 s{sA}, 0")
    a(f"{lp}:")
    a(f"buffer_load_dword v8, v7, s[{R6}:{R6+3}], 0 offen sc1")
    a(f"s_add_u32 s{sA}, s{sA}, 1"); a(f"s_cmp_gt_u32 s{sA}, {SPIN_MAX}"); a(f"s_cbranch_scc1 {nl}")
    a("s_waitcnt vmcnt(0)"); a("v_cmp_gt_u32 vcc, 0x80, v8"); a("s_nop 4"); a("s_cmp_lg_u64 vcc, 0"); a(f"s_cbranch_scc1 {lp}")
    a(f"s_mov_b32 s{sTmp}, {WS_EPOCH}"); a("s_mov_b64 exec, 1")
    a(f"buffer_store_dword v4, v5, s[{sWS}:{sWS+3}], s{sTmp} offen sc1"); a("s_mov_b64 exec, -1")
    a(f"{nl}:")
    stamp(a, cfg, 6)
    OF, ACC, XR, WF = 16, 96, 128, 144
    a(f"s_lshr_b32 s{sKH}, s{sw4}, 1"); a(f"s_and_b32 s{sT1}, s{sw4}, 1"); a(f"s_add_u32 s{sT1}, s{sT1}, s{sTT}")
    a(f"s_lshl_b32 s{sTmp}, s{sCB2}, 7"); a(f"s_lshl_b32 s{sTmp2}, s{sKH}, 6"); a(f"s_add_u32 s{sTmp}, s{sTmp}, s{sTmp2}")
    a("v_lshrrev_b32 v7, 5, v0"); a("v_lshlrev_b32 v8, 4, v7"); a(f"v_add_u32 v8, s{sTmp}, v8")
    a("v_and_b32 v9, 31, v0"); a(f"s_lshl_b32 s{sTmp2}, s{sT1}, 5"); a(f"v_add_u32 v9, s{sTmp2}, v9")
    a("v_lshl_add_u32 v11, v9, 10, v8")
    a(f"s_lshl_b32 s{sFQ}, s{sRB2}, 1"); a(f"s_add_u32 s{sFQ}, s{sFQ}, s{sKH}"); a(f"s_lshl_b32 s{sFQ}, s{sFQ}, 9")
    a(f"s_mul_i32 s{sTmp}, s{sKH}, {WO_BASE[1] - WO_BASE[0]}"); a(f"s_add_u32 s{sTmp}, s{sTmp}, {WO_BASE[0]}")
    tr_addr2(a, 14, f"s{sTmp}")
    a(f"s_lshl_b32 s{sTmp}, s{sKH}, 6"); a(f"v_xor_b32 v14, s{sTmp}, v14"); a(f"v_xor_b32 v15, s{sTmp}, v15")
    a("v_mov_b32 v10, 1")
    if cfg.get("poll_first", True): lds_spin(a, 6, 7, C_POLL, 4, sleep=1)
    pair_poll(a, [((4, 12, 16, 44)[k], 4, sFQ, WS_F2 + k*128) for k in range(4)], int(cfg.get("sleep2", 8)), int(cfg.get("delay2", 0)), 6, 10, 12, C_P2, 1)
    stamp(a, cfg, 7)
    if not cfg.get("poll_first", True): lds_spin(a, 6, 7, C_POLL, 4, sleep=1)
    a(f"s_lshl_b32 s{sO}, s{sT1}, 5"); a(f"s_lshl_b32 s{sTmp}, s{sKH}, 4"); a(f"s_add_u32 s{sO}, s{sO}, s{sTmp}"); a(f"s_lshl_b32 s{sO}, s{sO}, 10"); a(f"s_add_u32 s{sO}, s{sO}, {WS_O}")
    for n in range(16):
        if n and n % 4 == 0: a(f"s_add_u32 s{sO}, s{sO}, 4096")
        a.vmem(f"buffer_load_dwordx4 {vr(OF+4*n,4)}, v2, s[{sWS}:{sWS+3}], s{sO} offen offset:{(n%4)*1024} sc1", ("o", n))
    stamp(a, cfg, 8)
    lds_spin(a, 6, 7, C_WO, 4)
    def reads(n):
        return [f"ds_read_b64_tr_b16 {vr(WF+8*(n%4)+4*t+2*sec,2)}, v{14+t} offset:{n*2048 + sec*1024}" for t in range(2) for sec in range(2)]
    for n in range(3):
        for r in reads(n): a.lds(r, ("f", n))
    for n in range(16):
        nxt = reads(n + 3) if n < 13 else []
        a.wait(vm=("o", n), lg=("f", n))
        for t in range(2):
            acc = vr(ACC + 16*t, 16)
            a(f"v_mfma_f32_32x32x16_bf16 {acc}, {vr(WF+8*(n%4)+4*t,4)}, {vr(OF+4*n,4)}, {'0' if n == 0 else acc}")
            for r in nxt[2*t:2*t+2]: a.lds(r, ("f", n + 3))
    stamp(a, cfg, 9)
    a(f"s_lshl_b32 s{sTmp}, s{sw4}, 12"); a(f"s_add_u32 s{sTmp}, s{sTmp}, {L_EX}"); a(f"v_add_u32 v12, s{sTmp}, v2"); a("v_xor_b32 v13, 0x2000, v12")
    for q in range(4): a.lds(f"ds_write_b128 v12, {vr(ACC+16+4*q,4)} offset:{q*1024}", "ex")
    a(f"s_and_b32 s{sTmp}, s{sw4}, 1"); a(f"s_lshl_b32 s{sTmp}, s{sTmp}, 1"); a(f"s_add_u32 s{sTmp}, s{sTmp}, s{sKH}"); a(f"s_lshl_b32 s{sTmp}, s{sTmp}, 12")
    a(f"v_add_u32 v12, s{sTmp}, v2")
    srd(a, R0, pOUT, 0x200000)
    a.wait(lg="all"); a("s_barrier")
    PT = 16
    for p in range(5):
        for q in range(4):
            if p < 4: a.lds(f"ds_read_b128 {vr(PT+16*p+4*q,4)}, v12 offset:{p*16384 + q*1024}", ("p", p))
            else: a.lds(f"ds_read_b128 {vr(PT+16*p+4*q,4)}, v13 offset:{q*1024}", ("p", p))
    for p in range(5):
        a.wait(lg=("p", p))
        for q in range(8): a(f"v_pk_add_f32 {vr(ACC+2*q,2)}, {vr(ACC+2*q,2)}, {vr(PT+16*p+2*q,2)}")
    for q in range(8): a(f"v_cvt_pk_bf16_f32 v{XR+q}, v{ACC+2*q}, v{ACC+2*q+1}")
    for jp in range(2):
        a(f"v_permlane32_swap_b32 v{XR+4*jp}, v{XR+4*jp+2}"); a(f"v_permlane32_swap_b32 v{XR+4*jp+1}, v{XR+4*jp+3}")
        a.vmem(f"buffer_store_dwordx4 {vr(XR+4*jp,4)}, v11, s[{R0}:{R0+3}], 0 offen offset:{jp*32} {cfg.get('aux_out', '')}", "out")
    return saved

def p2_B(a, cfg):
    ACC, HR, WF, XR = 16, 176, 160, 136
    D = 8
    sH0, sH1 = R5, R3
    if int(cfg.get("xb_n", 99)) > 31: xb_load(a, XR)
    a(f"s_mul_i32 s{sKHh}, s{sw4}, {22*1024}")
    def w_ops(n): return [lambda: w2_op(a, cfg, n, 0), lambda: w2_op(a, cfg, n, 1)]
    def h_ops(n):
        def h(t):
            if t == 0: a(f"s_add_u32 s{sM}, s{sKHh}, {n*1024}")
            a.vmem(f"buffer_load_dwordx4 {vr(HR+8*(n%D)+4*t,4)}, v2, s[{(sH0,sH1)[t]}:{(sH0,sH1)[t]+3}], s{sM} offen sc1", ("h", n))
        return [lambda: h(0), lambda: h(1)]
    WD = int(cfg.get("w2_pre", 7)); WP = int(cfg.get("w2_prefill", WD))
    a(f"s_mul_i32 s{sTmp}, s{sT1}, {86*1024}"); a(f"s_add_u32 s{sTmp}, s{sTmp}, {WS_H}")
    sub_srd(a, sH0, f"s{sTmp}", 86 * 1024)
    a(f"s_xor_b32 s{sTmp2}, s{sT1}, 1"); a(f"s_mul_i32 s{sTmp}, s{sTmp2}, {86*1024}"); a(f"s_add_u32 s{sTmp}, s{sTmp}, {WS_H}")
    sub_srd(a, sH1, f"s{sTmp}", 86 * 1024)
    tr_addr2(a, 10, f"s{sL2}")
    a(f"v_xor_b32 v10, s{sKH}, v10"); a(f"v_xor_b32 v11, s{sKH}, v11")
    a(f"s_mul_i32 s{sTmp}, s{sw4}, {11*43}"); a(f"s_lshr_b32 s{sTmp}, s{sTmp}, 7"); a(f"s_min_u32 s{sTmp}, s{sTmp}, 10"); a(f"s_lshl_b32 s{sTmp}, s{sTmp}, 8")
    a(f"s_lshr_b32 s{sHD}, s{sRB2}, 1"); a(f"s_lshl_b32 s{sHD}, s{sHD}, 12"); a(f"s_add_u32 s{sHD}, s{sHD}, s{sTmp}")
    a(f"s_and_b32 s{sTmp}, s{sRB2}, 1"); a(f"s_lshl_b32 s{sTmp}, s{sTmp}, 3"); a(f"s_add_u32 s{sHD}, s{sHD}, s{sTmp}")
    f1_addr(a, 1); publish(a, f"s{sO}", 6, "out")
    stamp(a, cfg, 9)
    stamp_dump(a, cfg, 0, 96)
    a.mute = False
    stamp(a, cfg, 0)
    lds_spin(a, 12, 7, C_RING, 4)
    if cfg.get("hold") == "2": lds_spin(a, 12, 7, C_HOLD, 4, sleep=1)
    early = cfg.get("early", True)
    for n in range(4 if early else 0, WP):
        for o in w_ops(n): o()
    wo_list = [(0, 3)] if early else [(h, g) for h in range(2) for g in range(4)]
    WOP = min(len(wo_list), int(cfg.get("wo_pre", 8)))
    for k in range(WOP): wo_op(a, cfg, *wo_list.pop(0))
    a.wait(vm="xb")
    for j in range(4):
        for d in range(2):
            x, bb, o = XR + 2*j + d, XR + 8 + 2*j + d, ACC + 4*j + 2*d
            a(f"v_lshlrev_b32 v14, 16, v{x}"); a(f"v_lshlrev_b32 v15, 16, v{bb}"); a(f"v_add_f32 v{o}, v14, v15")
            a(f"v_and_b32 v14, 0xffff0000, v{x}"); a(f"v_and_b32 v15, 0xffff0000, v{bb}"); a(f"v_add_f32 v{o+1}, v14, v15")
    if cfg.get("hold") == "1": lds_spin(a, 12, 7, C_HOLD, 4, sleep=1)
    stamp(a, cfg, 1)
    scalar_poll(a, [(4 + 2*k, 2, sHD, WS_F1 + 128 + k*256) for k in range(5)], int(cfg.get("sleep3", 8)))
    stamp(a, cfg, 2)
    if cfg.get("prio", True): a(f"s_setprio {cfg.get('prioB2', 0)}")
    DI = int(cfg.get("p2_depth", 5))
    for n in range(max(DI, WD)):
        if n < DI:
            for o in h_ops(n): o()
        if WP <= n < WD:
            for o in w_ops(n): o()
    def reads(n):
        return [f"ds_read_b64_tr_b16 {vr(WF+8*(n&1)+4*t+2*sec,2)}, v{10+t} offset:{(n%D)*8192 + sec*1024}" for t in range(2) for sec in range(2)]
    late_wo = bool(wo_list)
    if early: lds_spin(a, 12, 7, C_PRE, 4)
    a.wait(vm=("w", 0))
    for r in reads(0): a.lds(r, ("f", 0))
    for n in range(22):
        ops = (h_ops(n + DI) if n + DI < 22 else [None, None]) + (w_ops(n + WD) if n + WD < 22 else [None, None])
        if n + WD >= 22 and wo_list:
            g4 = [wo_list.pop(0) for k in range(min(2, len(wo_list)))]
            ops[2] = lambda g4=g4: wo_op(a, cfg, *g4[0])
            if len(g4) > 1: ops[3] = lambda g4=g4: wo_op(a, cfg, *g4[1])
        if n == (21 if late_wo else 1): a.wait(vm="wo"); lds_count(a, 12, 13, C_WO)
        if n == int(cfg.get('poll_n', 12)): lds_count(a, 12, 13, C_POLL)
        if n < 21:
            a.wait(vm=("w", n + 1))
            for r in reads(n + 1): a.lds(r, ("f", n + 1))
        a.wait(lg=("f", n), vm=("h", n))
        if n == 21: lds_count(a, 12, 13, C_D); sync_read(a, 12, 7, C_D)
        for tt in range(2):
            for ft in range(2):
                acc = vr(ACC + 16*(2*tt+ft), 16)
                a(f"v_mfma_f32_32x32x16_bf16 {acc}, {vr(WF+8*(n&1)+4*ft,4)}, {vr(HR+8*(n%D)+4*tt,4)}, {'0' if (n == 0 and tt+ft) else acc}")
                if ops[2*tt+ft]: ops[2*tt+ft]()
        if n in (0, 5, 10, 15, 21): stamp(a, cfg, 3 + (0, 5, 10, 15, 21).index(n))
    a(f"s_mul_i32 s{sTmp}, s{sw4}, {16384 + 4096}"); a(f"v_add_u32 v14, s{sTmp}, v2")
    sync_check(a, 12, 7, C_D, 4)
    for t in range(4):
        if t: a(f"v_xor_b32 v15, {t*4096}, v14")
        for q in range(4): a.lds(f"ds_write_b128 v{15 if t else 14}, {vr(ACC+16*t+4*q,4)} offset:{q*1024}", "d")
    a.wait(lg="all"); stamp(a, cfg, 8); a("s_barrier")

def build(cfg):
    cfg = dict(cfg)
    a = Asm()
    a("s_cmp_ge_u32 s2, 256"); a("s_cbranch_scc1 L_end")
    if cfg.get("stamp"):
        for i in range(NSTAMP): a(f"s_mov_b32 s{STAMP0+2*i}, 0")
    stamp(a, cfg, 0, True)
    prologue(a, cfg)
    a(f"s_cmp_lt_u32 s{sW}, 4"); a("s_cbranch_scc1 L_A")
    B = Asm(); B.uid = 1000
    p1_B(B, cfg); p2_B(B, cfg)
    if cfg.get("stamp"): B("s_waitcnt vmcnt(0)"); stamp(B, cfg, 10, True); stamp_dump(B, cfg, 0x20000, 16)
    B("s_endpgm")
    A = Asm(); A.uid = 2000
    A("L_A:"); p1_A(A, cfg); stamp_dump(A, cfg, 0, 16); saved = p2_A(A, cfg)
    if cfg.get("stamp"): A("s_waitcnt vmcnt(0)"); stamp(A, cfg, 10, True); stamp_dump(A, cfg, 0x20000, 16)
    A("s_endpgm")
    S = Asm(); S.uid = 5000; S.vm = saved
    S("L_attn_slow:"); attn_slow(S, cfg); S("s_branch L_attn_done")
    E = Asm(); E("L_end:"); E("s_endpgm")
    body = a.text() + B.text() + A.text() + S.text() + E.text()
    name = KN + "_kernel"
    if cfg.get("x_plainst"):
        body = "\n".join(l.replace(" sc1", "") if ("buffer_store_dwordx4" in l and ", v4, s[32:35]" not in l) else l for l in body.split("\n"))
    if cfg.get("x_nost"):
        body = "\n".join(("    s_nop 0" if ("buffer_store_dwordx4" in l and " sc1" in l and ", v4, s[32:35]" not in l) else l) for l in body.split("\n"))
    if cfg.get("x_plainld"):
        body = "\n".join(l.replace(" sc1", "") if ("buffer_load_dwordx4" in l and "v10, s[32" not in l and "v11, s[32" not in l) else l for l in body.split("\n"))
    return file_text([(name, body, 256, 102, 0)], [(name, 256, 512, LDS_BYTES)])

if __name__ == "__main__":
    import sys
    cfg = dict(map1="8x4", map2="8x4", aux_x="", aux_w="", aux_w2="", prio=True)
    for kv in sys.argv[2:]:
        k, v = kv.split("=", 1)
        cfg[k] = {"True": True, "False": False}.get(v, v)
    if "bound2" in cfg: cfg["bound2"] = float(cfg["bound2"])
    open(sys.argv[1], "w").write(build(cfg))
```

```python
from asmlib import *
from layout import *

L_X = 0x0; L_W = 0x10000
L_CS = 0x24000; L_CNT = 0x24c00; L_VS = 0x25000
L_EX = 0x18000
WO_BASE = (0x10000, 0x1c000)
LDS_BYTES = 0x27400
C_CS, C_S1, C_S2, C_S3, C_RING, C_WO, C_POLL, C_HOLD, C_P1, C_P2, C_X, C_PRE, C_D = 0, 4, 8, 12, 16, 20, 24, 28, 32, 48, 64, 68, 72
SPIN_MAX = 400000
BOUND2 = 64.0 * 64.0
NEG = float("-inf")
WS_ST = 0x60000
WS_EPOCH = 0x70000
WS_F1 = 0x80000
WS_F2 = 0xA0000

pX, pQKV, pWO, pW1, pB1, pW2, pB2, pOUT, pDBG, pWS = 4, 6, 8, 12, 14, 16, 18, 20, 22, 24
R0, sWS, R2, R3, R4, R5, R6 = 28, 32, 36, 40, 44, 48, 52
sW, sw4, sRB, sCB, sROT, sN = 56, 57, 58, 59, 60, 61
sO, sKC, sTmp, sTmp2, sA, sB = 62, 63, 64, 65, 66, 67
sCol, sT0, sLdsW, sLdsX, sTok = 68, 69, 70, 71, 72
sRB2, sCB2, sTT = 76, 77, 78
sHD, sM, sKH, sT1, sKHh = 68, 69, 70, 71, 73
sKW2, sL2, sWoG, sD = 26, 27, 79, 74
sRBa, sCBa, sTTa = 10, 11, 75
STAMP0 = 80; NSTAMP = 11
sFQ, sFK, sFV = 72, 73, 74

def stamp(a, cfg, i, force=False):
    if cfg.get("stamp") == "light" and not force: return
    if getattr(a, "mute", False) and not force: return
    if cfg.get("stamp"):
        a(f"{'s_memtime' if cfg.get('stamp') == 'cyc' else 's_memrealtime'} s[{STAMP0+2*i}:{STAMP0+2*i+1}]")
def stamp_dump(a, cfg, base, v):
    if not cfg.get("stamp") or (cfg.get("stamp") == "light" and base == 0): return
    a("s_waitcnt lgkmcnt(0)"); a.lg = []
    a(f"s_lshl_b32 s{sA}, s2, 3"); a(f"s_add_u32 s{sA}, s{sA}, s{sW}"); a(f"s_lshl_b32 s{sA}, s{sA}, 6"); a(f"s_add_u32 s{sA}, s{sA}, {base}")
    for i in range(12): a(f"v_mov_b32 v{v+i}, {'s%d' % (STAMP0+2*i) if i < NSTAMP else 0}")
    a(f"v_mov_b32 v{v+12}, 0"); a("s_mov_b64 exec, 1")
    for q in range(3): a.vmem(f"buffer_store_dwordx4 {vr(v+4*q,4)}, v{v+12}, s[{sWS}:{sWS+3}], s{sA} offen offset:{16*q}", "stamp")
    a("s_mov_b64 exec, -1")
    for i in range(NSTAMP): a(f"s_mov_b32 s{STAMP0+2*i}, 0")

def srd(a, d, p, size):
    a(f"s_mov_b32 s{d}, s{p}"); a(f"s_mov_b32 s{d+1}, s{p+1}"); a(f"s_mov_b32 s{d+2}, {size}"); a(f"s_mov_b32 s{d+3}, 0x20000")
def sub_srd(a, d, off_s, size):
    a(f"s_add_u32 s{d}, s{pWS}, {off_s}"); a(f"s_addc_u32 s{d+1}, s{pWS+1}, 0"); a(f"s_mov_b32 s{d+2}, {size}"); a(f"s_mov_b32 s{d+3}, 0x20000")
def lds_spin(a, vaddr, vtmp, off, target, sleep=0):
    lp = a.label("spin"); lq = a.label("spinx")
    a(f"s_mov_b32 s{sA}, 0")
    a(f"{lp}:")
    a(f"ds_read_b32 v{vtmp}, v{vaddr} offset:{off}")
    a(f"s_add_u32 s{sA}, s{sA}, 1"); a(f"s_cmp_gt_u32 s{sA}, {SPIN_MAX}"); a(f"s_cbranch_scc1 {lq}")
    a("s_waitcnt lgkmcnt(0)"); a(f"v_readfirstlane_b32 s{sB}, v{vtmp}"); a(f"s_cmp_ge_u32 s{sB}, {target}"); a(f"s_cbranch_scc1 {lq}")
    if sleep: a(f"s_sleep {sleep}")
    a(f"s_branch {lp}")
    a(f"{lq}:")
    a("s_waitcnt lgkmcnt(0)"); a.lg = []
def sync_read(a, vaddr, vtmp, off):
    a.lds(f"ds_read_b32 v{vtmp}, v{vaddr} offset:{off}", ("sy", off))
def sync_check(a, vaddr, vtmp, off, target):
    ok = a.label("syok")
    a.wait(lg=("sy", off))
    a(f"v_readfirstlane_b32 s{sB}, v{vtmp}"); a(f"s_cmp_ge_u32 s{sB}, {target}"); a(f"s_cbranch_scc1 {ok}")
    keep = list(a.lg); lds_spin(a, vaddr, vtmp, off, target); a.lg = keep
    a(f"{ok}:")
def lds_count(a, vaddr, vone, off):
    a("s_mov_b64 exec, 1"); a.lds(f"ds_add_u32 v{vaddr}, v{vone} offset:{off}", "cnt"); a("s_mov_b64 exec, -1")
def flag_poll(a, vaddr, vdat, sleep=2):
    lp = a.label("poll"); lq = a.label("pollx")
    a(f"s_mov_b32 s{sA}, 0")
    a(f"{lp}:")
    a(f"buffer_load_dword v{vdat}, v{vaddr}, s[{sWS}:{sWS+3}], 0 offen sc1")
    a(f"s_add_u32 s{sA}, s{sA}, 1"); a(f"s_cmp_gt_u32 s{sA}, {SPIN_MAX}"); a(f"s_cbranch_scc1 {lq}")
    a("s_waitcnt vmcnt(0)")
    a(f"v_cmp_ne_u32 vcc, s{sN}, v{vdat}")
    a("s_nop 4"); a("s_cmp_eq_u64 vcc, 0"); a(f"s_cbranch_scc1 {lq}")
    a(f"s_sleep {sleep}"); a(f"s_branch {lp}")
    a(f"{lq}:")
    a("s_waitcnt vmcnt(0)"); a.vm = []
def scalar_poll(a, loads, sleep=0):
    lp = a.label("spoll"); lq = a.label("spollx"); lr = a.label("spollr")
    a(f"s_mov_b32 s{sA}, 0"); a(f"s_mov_b32 s{sTmp}, s{sN}"); a(f"s_mov_b32 s{sTmp2}, s{sN}")
    a(f"{lp}:")
    for d, w, o, imm in loads: a(f"s_load_dwordx{w} s[{d}:{d+w-1}], s[{pWS}:{pWS+1}], s{o} offset:{imm} glc")
    a(f"s_add_u32 s{sA}, s{sA}, 1"); a(f"s_cmp_gt_u32 s{sA}, {SPIN_MAX}"); a(f"s_cbranch_scc1 {lq}")
    a("s_waitcnt lgkmcnt(0)")
    prs = [d + k for d, w, o, imm in loads for k in range(0, w, 2)]
    for p in prs[:-1]:
        a(f"s_cmp_eq_u64 s[{p}:{p+1}], s[{sTmp}:{sTmp2}]"); a(f"s_cbranch_scc0 {lr}")
    a(f"s_cmp_eq_u64 s[{prs[-1]}:{prs[-1]+1}], s[{sTmp}:{sTmp2}]"); a(f"s_cbranch_scc1 {lq}")
    a(f"{lr}:")
    if sleep: a(f"s_sleep {sleep}")
    a(f"s_branch {lp}")
    a(f"{lq}:")
    a("s_waitcnt lgkmcnt(0)"); a.lg = []
def pair_poll(a, loads, sleep, delay, vcnt, vone, vtmp, coff, mask):
    lo = a.label("pp_o"); le = a.label("pp_e")
    a(f"s_andn2_b32 s{sO}, s{sw4}, {mask}"); a(f"s_lshl_b32 s{sO}, s{sO}, 2"); a(f"v_add_u32 v{vtmp+1}, s{sO}, v{vcnt}")
    a(f"s_and_b32 s{sO}, s{sw4}, {mask}"); a(f"s_cbranch_scc1 {lo}")
    if delay: a(f"s_sleep {delay}")
    scalar_poll(a, loads, sleep)
    a("s_mov_b64 exec, 1"); a(f"ds_add_u32 v{vtmp+1}, v{vone} offset:{coff}"); a("s_mov_b64 exec, -1")
    a(f"s_branch {le}")
    a(f"{lo}:")
    lds_spin(a, vtmp + 1, vtmp, coff, 1, sleep=2)
    a(f"{le}:")
def group_poll(a, cfg, vaddr, vdat, vcnt, vone, coff, sleep):
    if str(coff) in cfg.get("x_nopoll", "").split(","):
        a("s_waitcnt vmcnt(0)"); a.vm = []; return
    if not cfg.get("poll1", True):
        flag_poll(a, vaddr, vdat, sleep); return
    lo = a.label("gp_o"); le = a.label("gp_e")
    a(f"s_cmp_lg_u32 s{sw4}, 0"); a(f"s_cbranch_scc1 {lo}")
    flag_poll(a, vaddr, vdat, sleep)
    a("s_mov_b64 exec, 1"); a(f"ds_add_u32 v{vcnt}, v{vone} offset:{coff}"); a("s_mov_b64 exec, -1")
    a(f"s_branch {le}")
    a(f"{lo}:")
    lds_spin(a, vcnt, vdat, coff, 1, sleep=1)
    a("s_waitcnt vmcnt(0)")
    a(f"{le}:")
    a.vm = []
def publish(a, off_s, v, tag="all"):
    a.wait(vm=tag)
    a(f"v_mov_b32 v{v}, s{sN}"); a(f"v_mov_b32 v{v+1}, 0"); a("s_mov_b64 exec, 1")
    a.vmem(f"buffer_store_dword v{v}, v{v+1}, s[{sWS}:{sWS+3}], {off_s} offen sc1", "flag")
    a("s_mov_b64 exec, -1")
def f1_addr(a, cls):
    a(f"s_lshl_b32 s{sO}, s{sRB}, 4"); a(f"s_add_u32 s{sO}, s{sO}, s{sCB}"); a(f"s_lshl_b32 s{sO}, s{sO}, 8")
    a(f"s_lshl_b32 s{sTmp}, s{sw4}, 2"); a(f"s_add_u32 s{sO}, s{sO}, s{sTmp}"); a(f"s_add_u32 s{sO}, s{sO}, {WS_F1 + cls*128}")
def tag_load(a):
    a(f"s_add_u32 s{sA}, s{pWS}, {WS_EPOCH}"); a(f"s_addc_u32 s{sB}, s{pWS+1}, 0"); a(f"s_load_dword s{sN}, s[{sA}:{sB}], 0")
def tag_make(a):
    a(f"s_mul_i32 s{sN}, s{sN}, 0x9e3779b1"); a(f"s_add_u32 s{sN}, s{sN}, 0x7f4a7c15")
def stats_issue(a, v, vaddr):
    a(f"v_and_b32 v{vaddr}, 31, v0"); a(f"s_lshl_b32 s{sTmp}, s{sTok}, 5"); a(f"v_add_u32 v{vaddr}, s{sTmp}, v{vaddr}"); a(f"v_lshlrev_b32 v{vaddr}, 4, v{vaddr}")
    a(f"v_add_u32 v{vaddr}, {WS_ST}, v{vaddr}")
    a.vmem(f"buffer_load_dwordx4 {vr(v,4)}, v{vaddr}, s[{sWS}:{sWS+3}], 0 offen sc1", "stats")
def stats_check(a, v, vaddr):
    a.wait(vm="stats")
    lp = a.label("stat"); lq = a.label("statx")
    a(f"s_mov_b32 s{sA}, 0")
    a(f"{lp}:")
    a(f"v_cmp_ne_u32 vcc, s{sN}, v{v+1}"); a(f"v_cmp_ne_u32_e64 s[{sTmp}:{sTmp2}], s{sN}, v{v+3}")
    a("s_nop 4"); a(f"s_or_b64 vcc, vcc, s[{sTmp}:{sTmp2}]"); a(f"s_cbranch_scc0 {lq}")
    a(f"s_add_u32 s{sA}, s{sA}, 1"); a(f"s_cmp_gt_u32 s{sA}, {SPIN_MAX}"); a(f"s_cbranch_scc1 {lq}")
    a(f"buffer_load_dwordx4 {vr(v,4)}, v{vaddr}, s[{sWS}:{sWS+3}], 0 offen sc1"); a("s_waitcnt vmcnt(0)")
    a(f"s_branch {lp}")
    a(f"{lq}:")

class Fill:
    def __init__(self, fn=None):
        self.q = []
        if fn: self.add(fn)
    def add(self, fn):
        t = Asm(); t.uid = 9000 + len(self.q); fn(t); self.q += t.lines
    def emit(self, a, k):
        for l in self.q[:k]: a(l)
        self.q = self.q[k:]
    def flush(self, a): self.emit(a, len(self.q))

def mapping(a, cfg):
    m1, m2 = cfg["map1"], cfg["map2"]
    a(f"s_and_b32 s{sA}, s2, 7"); a(f"s_lshr_b32 s{sB}, s2, 3")
    t, u = sTmp, sTmp2
    if m1 == "8x4":
        a(f"s_lshr_b32 s{t}, s{sA}, 2"); a(f"s_lshl_b32 s{t}, s{t}, 3"); a(f"s_lshr_b32 s{u}, s{sB}, 2"); a(f"s_add_u32 s{sRB}, s{t}, s{u}")
        a(f"s_and_b32 s{t}, s{sB}, 3"); a(f"s_lshl_b32 s{sROT}, s{t}, 1"); a(f"s_add_u32 s{sROT}, s{sROT}, s{u}")
        a(f"s_and_b32 s{u}, s{sA}, 3"); a(f"s_lshl_b32 s{u}, s{u}, 2"); a(f"s_add_u32 s{sCB}, s{t}, s{u}")
    elif m1 == "4x8":
        a(f"s_lshr_b32 s{t}, s{sA}, 1"); a(f"s_lshl_b32 s{t}, s{t}, 2"); a(f"s_lshr_b32 s{u}, s{sB}, 3"); a(f"s_add_u32 s{sRB}, s{t}, s{u}")
        a(f"s_and_b32 s{t}, s{sB}, 7"); a(f"s_lshl_b32 s{sROT}, s{u}, 1"); a(f"s_add_u32 s{sROT}, s{sROT}, s{t}")
        a(f"s_and_b32 s{u}, s{sA}, 1"); a(f"s_lshl_b32 s{u}, s{u}, 3"); a(f"s_add_u32 s{sCB}, s{t}, s{u}")
    elif m1 == "2x16":
        a(f"s_lshl_b32 s{t}, s{sA}, 1"); a(f"s_lshr_b32 s{u}, s{sB}, 4"); a(f"s_add_u32 s{sRB}, s{t}, s{u}")
        a(f"s_and_b32 s{sCB}, s{sB}, 15"); a(f"s_lshl_b32 s{sROT}, s{u}, 2"); a(f"s_add_u32 s{sROT}, s{sROT}, s{sCB}")
    a(f"s_and_b32 s{sROT}, s{sROT}, {int(cfg.get('rotmask', 7))}")
    if m2 == "4x8":
        a(f"s_lshl_b32 s{t}, s{sA}, 2"); a(f"s_lshr_b32 s{u}, s{sB}, 3"); a(f"s_add_u32 s{sRB2}, s{t}, s{u}"); a(f"s_and_b32 s{sCB2}, s{sB}, 7")
    elif m2 == "8x4":
        a(f"s_lshr_b32 s{t}, s{sA}, 1"); a(f"s_lshl_b32 s{t}, s{t}, 3"); a(f"s_lshr_b32 s{u}, s{sB}, 2"); a(f"s_add_u32 s{sRB2}, s{t}, s{u}")
        a(f"s_and_b32 s{t}, s{sA}, 1"); a(f"s_lshl_b32 s{t}, s{t}, 2"); a(f"s_and_b32 s{u}, s{sB}, 3"); a(f"s_add_u32 s{sCB2}, s{t}, s{u}")
    elif m2 == "16x2":
        a(f"s_lshr_b32 s{t}, s{sA}, 2"); a(f"s_lshl_b32 s{t}, s{t}, 4"); a(f"s_lshr_b32 s{u}, s{sB}, 1"); a(f"s_add_u32 s{sRB2}, s{t}, s{u}")
        a(f"s_and_b32 s{t}, s{sA}, 3"); a(f"s_lshl_b32 s{t}, s{t}, 1"); a(f"s_and_b32 s{u}, s{sB}, 1"); a(f"s_add_u32 s{sCB2}, s{t}, s{u}")
    a(f"s_lshl_b32 s{sTT}, s{sRB2}, 1")

def mapping_attn(a, cfg):
    m = cfg.get("mapa", "32x1")
    if m == "same":
        a(f"s_mov_b32 s{sRBa}, s{sRB2}"); a(f"s_mov_b32 s{sCBa}, s{sCB2}")
    elif m == "32x1":
        a(f"s_lshr_b32 s{sRBa}, s2, 3"); a(f"s_and_b32 s{sCBa}, s2, 7")
    elif m == "16x2":
        a(f"s_and_b32 s{sTmp}, s2, 7"); a(f"s_lshr_b32 s{sTmp2}, s2, 3")
        a(f"s_lshr_b32 s{sRBa}, s{sTmp}, 2"); a(f"s_lshl_b32 s{sRBa}, s{sRBa}, 4"); a(f"s_lshr_b32 s{sCBa}, s{sTmp2}, 1"); a(f"s_add_u32 s{sRBa}, s{sRBa}, s{sCBa}")
        a(f"s_and_b32 s{sCBa}, s{sTmp}, 3"); a(f"s_lshl_b32 s{sCBa}, s{sCBa}, 1"); a(f"s_and_b32 s{sTmp2}, s{sTmp2}, 1"); a(f"s_add_u32 s{sCBa}, s{sCBa}, s{sTmp2}")
    a(f"s_lshl_b32 s{sTTa}, s{sRBa}, 1")

def prologue(a, cfg):
    a("s_load_dwordx16 s[4:19], s[0:1], 0")
    a("s_load_dwordx4 s[20:23], s[0:1], 64")
    a("s_load_dwordx2 s[24:25], s[0:1], 80")
    a("v_lshrrev_b32 v1, 6, v0"); a("v_and_b32 v0, 63, v0"); a(f"v_readfirstlane_b32 s{sW}, v1")
    mapping(a, cfg)
    a(f"s_and_b32 s{sw4}, s{sW}, 3")
    a(f"s_mul_i32 s{sCol}, s{sCB}, 192"); a(f"s_mul_i32 s{sT0}, s{sCB}, 3")
    a(f"s_lshl_b32 s{sTok}, s{sRB}, 2"); a(f"s_add_u32 s{sTok}, s{sTok}, s{sw4}")

def read_addrs(a, vXA, vWA, base, tmp):
    a(f"v_lshrrev_b32 v{tmp}, 5, v0"); a(f"v_lshlrev_b32 v{tmp}, 3, v{tmp}"); a(f"v_bfe_u32 v{tmp+1}, v0, 2, 2"); a(f"v_add_u32 v{tmp}, v{tmp}, v{tmp+1}")
    a(f"v_mul_u32_u24 v{tmp+1}, 192, v{tmp}")
    a(f"v_bfe_u32 v{tmp}, v0, 4, 1"); a(f"v_lshl_add_u32 v{tmp+1}, v{tmp}, 5, v{tmp+1}")
    a(f"v_and_b32 v{tmp}, 3, v0"); a(f"v_lshl_add_u32 v{tmp+1}, v{tmp}, 3, v{tmp+1}")
    a(f"v_and_b32 v{tmp+2}, 31, v0"); a(f"v_lshlrev_b32 v{tmp+2}, 7, v{tmp+2}"); a(f"s_lshl_b32 s{sTmp}, s{sw4}, 12"); a(f"v_add_u32 v{tmp+2}, s{sTmp}, v{tmp+2}")
    a(f"v_lshrrev_b32 v{tmp}, 5, v0"); a(f"v_bfe_u32 v{tmp+3}, v0, 1, 3"); a(f"v_xor_b32 v{tmp+3}, v{tmp+3}, v{tmp}")
    for i in range(4):
        a(f"s_xor_b32 s{sTmp2}, s{sw4}, {i}")
        a(f"s_lshl_b32 s{sTmp}, s{sTmp2}, 1"); a(f"v_xor_b32 v{tmp}, s{sTmp}, v{tmp+3}"); a(f"v_lshl_add_u32 v{vXA+i}, v{tmp}, 4, v{tmp+2}")
        a(f"s_mul_i32 s{sTmp}, s{sTmp2}, 3072"); a(f"s_add_u32 s{sTmp}, s{sTmp}, {base}"); a(f"v_add_u32 v{vWA+i}, s{sTmp}, v{tmp+1}")
def split_hi_lo(a, v, hi, lo, t):
    a(f"v_cvt_pk_bf16_f32 v{hi}, v{v}, v{v}"); a(f"v_and_b32 v{t}, 0xffff0000, v{hi}"); a(f"v_sub_f32 v{t}, v{v}, v{t}"); a(f"v_cvt_pk_bf16_f32 v{lo}, v{t}, v{t}")
def w_aug(a, dst, cs, bias, t0, t1, t2, vM):
    split_hi_lo(a, cs, t0, t1, t2)
    a(f"v_bfi_b32 v{dst}, v{vM}, v{t0}, v{t1}")
    if bias is None: a(f"v_and_b32 v{dst+1}, 0xffff, v{t0}")
    else: a(f"v_bfi_b32 v{dst+1}, v{vM}, v{t0}, v{bias}")
def x_aug(a, dst, mean, inv, t0, t1, t2, t3, vM):
    a(f"v_mov_b32 v{vM}, 0xffff")
    a(f"v_sub_f32 v{t3}, 0, v{mean}")
    split_hi_lo(a, t3, dst, t1, t2)
    if inv is None:
        a(f"v_and_b32 v{dst+1}, 0xffff, v{t1}"); a(f"v_mov_b32 v{dst+2}, 0")
    else:
        split_hi_lo(a, inv, t0, t3, t2)
        a(f"v_bfi_b32 v{dst+1}, v{vM}, v{t1}, v{t0}"); a(f"v_and_b32 v{dst+2}, 0xffff, v{t3}")
    a(f"v_mov_b32 v{dst+3}, 0")
    a("v_cmp_gt_u32 vcc, 32, v0")
    for i in range(3): a(f"v_cndmask_b32 v{dst+i}, 0, v{dst+i}, vcc")
def selector(a, dst):
    a("v_bfe_u32 v5, v0, 4, 1"); a("v_and_b32 v7, 15, v0"); a("v_cmp_eq_u32 vcc, v5, v7")
    a("v_mov_b32 v5, 0x3f803f80"); a(f"v_cndmask_b32 v{dst}, 0, v5, vcc")
    for q in range(1, 4): a(f"v_mov_b32 v{dst+q}, v{dst}")
def cs_addr(a, vw, vrd, t0):
    a(f"s_mul_i32 s{sTmp}, s{sw4}, 768"); a(f"s_add_u32 s{sTmp}, s{sTmp}, {L_CS + t0*128}")
    a(f"v_lshlrev_b32 v{vw}, 2, v0"); a(f"v_and_b32 v{vrd}, 124, v{vw}"); a(f"v_add_u32 v{vw}, s{sTmp}, v{vw}"); a(f"v_add_u32 v{vrd}, {L_CS + t0*128}, v{vrd}")
def cs_publish(a, vCS, vw):
    a("s_mov_b64 exec, 0xffff")
    for t in range(3): a.lds(f"ds_write2_b32 v{vw}, v{vCS+4*t}, v{vCS+4*t+1} offset0:{t*32} offset1:{t*32+16}", "cs")
    a("s_mov_b64 exec, -1")
def cs_read(a, dst, vrd):
    for t in range(3):
        for w in range(4): a.lds(f"ds_read_b32 v{dst+4*t+w}, v{vrd} offset:{w*768 + t*128}", ("cs", t))
def cs_sum(a, d):
    a(f"v_add_f32 v{d}, v{d}, v{d+1}"); a(f"v_add_f32 v{d+2}, v{d+2}, v{d+3}"); a(f"v_add_f32 v{d}, v{d}, v{d+2}")
def mlp_scale(a, vRstd, vS, vInv, vA1, vB1):
    a(f"v_mul_f32 v{vS}, v{vRstd}, v{vRstd}"); a(f"v_mov_b32 v{vInv}, {f32(1.0+EPS)}")
    a(f"v_fmamk_f32 v{vS}, v{vS}, {f32(-EPS)}, v{vInv}"); a(f"v_rsq_f32 v{vS}, v{vS}")
    a(f"v_mul_f32 v{vS}, v{vS}, v{vRstd}"); a(f"v_rcp_f32 v{vInv}, v{vS}")
    a(f"v_mul_f32 v{vA1}, {f32(GELU_A)}, v{vS}")
    a(f"v_mul_f32 v{vB1}, v{vS}, v{vS}"); a(f"v_mul_f32 v{vB1}, v{vB1}, v{vS}"); a(f"v_mul_f32 v{vB1}, {f32(GELU_B)}, v{vB1}")
from fused_v2 import gelu_pk, gelu_sc
def h_store(a, pk, dt, vL16):
    a(f"s_add_u32 s{sTmp}, s{sT0}, {dt}"); a(f"s_cmp_lt_u32 s{sTmp}, 43")
    a(f"s_mov_b32 s{R5}, s{sWS}"); a(f"s_mov_b32 s{R5+1}, s{sWS+1}"); a(f"s_cselect_b32 s{R5+2}, s{sWS+2}, 0"); a(f"s_mov_b32 s{R5+3}, 0x20000")
    a(f"s_mul_i32 s{sO}, s{sTok}, 86"); a(f"s_lshl_b32 s{sTmp}, s{sTmp}, 1"); a(f"s_add_u32 s{sO}, s{sO}, s{sTmp}"); a(f"s_lshl_b32 s{sO}, s{sO}, 10"); a(f"s_add_u32 s{sO}, s{sO}, {WS_H}")
    for s in range(2):
        a.vmem(f"buffer_store_dwordx4 {vr(pk+4*s,4)}, v{vL16}, s[{R5}:{R5+3}], s{sO} offen offset:{s*1024} sc1", "out")
def l2_prefetch(a, cfg, v, RW, R2_):
    nsh = int(cfg["map2"].split("x")[0]); per = 1888 // nsh; nins = -(-per // 256); pw = -(-per // (4 * nins))
    a(f"s_and_b32 s{sTmp}, s{sRB2}, {nsh-1}"); a(f"s_mul_i32 s{sTmp}, s{sTmp}, {per}"); a(f"s_mul_i32 s{sTmp2}, s{sw4}, {pw}"); a(f"s_add_u32 s{sTmp}, s{sTmp}, s{sTmp2}")
    a(f"v_min_u32 v{v}, {pw-1}, v0"); a(f"v_add_u32 v{v}, s{sTmp}, v{v}"); a(f"v_lshlrev_b32 v{v}, 10, v{v}")
    a(f"s_lshl_b32 s{sTmp}, s{sCB2}, 7"); a(f"v_add_u32 v{v}, s{sTmp}, v{v}")
    for i in range(nins):
        if i: a(f"v_add_u32 v{v}, {4*pw*1024}, v{v}")
        a(f"v_add_u32 v{v+1}, {(-512*1024) & 0xffffffff}, v{v}")
        a.vmem(f"buffer_load_dword v1, v{v}, s[{RW}:{RW+3}], 0 offen {cfg.get('aux_pf', '')}", "pf")
        a.vmem(f"buffer_load_dword v1, v{v+1}, s[{R2_}:{R2_+3}], 0 offen {cfg.get('aux_pf', '')}", "pf")
def dpp_sum64(a, regs):
    for m in ("row_shr:1 row_mask:0xf bank_mask:0xf", "row_shr:2 row_mask:0xf bank_mask:0xf", "row_shr:4 row_mask:0xf bank_mask:0xf", "row_shr:8 row_mask:0xf bank_mask:0xf",
              "row_bcast:15 row_mask:0xa bank_mask:0xf", "row_bcast:31 row_mask:0xc bank_mask:0xf"):
        for v in regs: a(f"v_add_f32_dpp v{v}, v{v}, v{v} {m} bound_ctrl:0" if "shr" in m else f"v_add_f32_dpp v{v}, v{v}, v{v} {m}")

def p1_A(a, cfg):
    ACC, XF, WF, NB = 176, 224, 16, 3
    vXA, vWA, vCS, vSel, vSt, XA, WA, vM, T = 136, 140, 236, 248, 252, 52, 224, 11, 12
    PK, VT, RW = 16, 40, 16
    stamp(a, cfg, 1)
    a("s_waitcnt lgkmcnt(0)")
    tag_load(a)
    srd(a, R0, pX, 0x200000); srd(a, sWS, pWS, 0x10000000)
    a(f"s_lshl_b32 s{sTmp}, s{sRB}, 4"); a(f"s_add_u32 s{sTmp}, s{sTmp}, s{sCB}"); a(f"s_lshl_b32 s{sTmp}, s{sTmp}, 2"); a(f"s_add_u32 s{sTmp}, s{sTmp}, s{sw4}"); a(f"s_lshl_b32 s{sD}, s{sTmp}, 1")
    a(f"s_lshl_b32 s{sO}, s{sD}, 10"); a("v_lshlrev_b32 v2, 4, v0")
    for r in range(2): a.vmem(f"buffer_load_dwordx4 {vr(RW+4*r,4)}, v2, s[{R0}:{R0+3}], s{sO} offen offset:{r*1024}", "row")
    if cfg.get("codepf", True):
        nopf = a.label("nopf"); here = a.label("here")
        a(f"s_lshr_b32 s{sTmp}, s2, 3"); a(f"s_cmp_ge_u32 s{sTmp}, 4"); a(f"s_cbranch_scc1 {nopf}")
        a(f"s_cmp_lg_u32 s{sW}, 1"); a(f"s_cbranch_scc1 {nopf}")
        a(f"s_getpc_b64 s[{R6}:{R6+1}]"); a(f"{here}:")
        a(f"s_sub_u32 s{R6}, s{R6}, {here}-{KN}_kernel"); a(f"s_subb_u32 s{R6+1}, s{R6+1}, 0")
        a(f"s_lshl_b32 s{sTmp}, s{sTmp}, 13"); a("v_lshlrev_b32 v3, 7, v0"); a(f"v_add_u32 v3, s{sTmp}, v3")
        a(f"v_min_u32 v3, L_attn_slow-{KN}_kernel, v3")
        a(f"global_load_dword v1, v3, s[{R6}:{R6+1}]")
        a(f"{nopf}:")
    read_addrs(a, vXA, vWA, L_W, 4)
    selector(a, vSel)
    cs_addr(a, 8, 9, 0)
    attn_setup_v(a, cfg)
    a("s_waitcnt lgkmcnt(0)"); tag_make(a)
    a("s_waitcnt vmcnt(0)"); a.vm = []
    a("s_mov_b32 s62, 0x3f803f80")
    for r in range(2):
        a(f"v_dot2_f32_bf16 v{4+2*r}, v{RW+4*r}, s62, 0"); a(f"v_dot2_f32_bf16 v{5+2*r}, v{RW+4*r}, v{RW+4*r}, 0")
        for q in range(1, 4):
            a(f"v_dot2_f32_bf16 v{4+2*r}, v{RW+4*r+q}, s62, v{4+2*r}"); a(f"v_dot2_f32_bf16 v{5+2*r}, v{RW+4*r+q}, v{RW+4*r+q}, v{5+2*r}")
    dpp_sum64(a, [4, 5, 6, 7])
    for r in range(2):
        m, q = 4 + 2*r, 5 + 2*r; d = RW + 4*r
        a(f"v_mul_f32 v{d}, {f32(1/512)}, v{m}"); a(f"v_mul_f32 v{m}, v{d}, v{d}"); a(f"v_mul_f32 v{q}, {f32(1/512)}, v{q}"); a(f"v_sub_f32 v{q}, v{q}, v{m}")
        a(f"v_max_f32 v{q}, 0, v{q}"); a(f"v_add_f32 v{q}, {f32(EPS)}, v{q}"); a(f"v_rsq_f32 v{d+2}, v{q}")
        a(f"v_mov_b32 v{d+1}, s{sN}"); a(f"v_mov_b32 v{d+3}, s{sN}")
    a(f"s_lshl_b32 s{sO}, s{sD}, 4"); a(f"s_add_u32 s{sO}, s{sO}, {WS_ST}"); a("v_mov_b32 v4, 0")
    a("s_mov_b32 exec_lo, 0"); a("s_mov_b32 exec_hi, 0x80000000")
    for r in range(2): a.vmem(f"buffer_store_dwordx4 {vr(RW+4*r,4)}, v4, s[{sWS}:{sWS+3}], s{sO} offen offset:{r*16} sc1", "stst")
    a("s_mov_b64 exec, -1")
    def reads(n):
        c, i = n >> 2, n & 3; b = n % NB
        r = [f"ds_read_b128 {vr(XF+4*b,4)}, v{vXA+i} offset:{(c & 3)*16384}"]
        for t in range(3):
            for sec in range(2):
                r.append(f"ds_read_b64_tr_b16 {vr(WF+12*b+4*t+2*sec,2)}, v{vWA+i} offset:{(c & 3)*12288 + t*64 + sec*768}")
        return r
    a(f"s_mul_i32 s{sTmp}, s{sw4}, 2304"); a(f"s_add_u32 s{sTmp}, s{sTmp}, {L_VS}")
    a("v_and_b32 v4, 31, v0"); a("v_mul_u32_u24 v4, 72, v4"); a("v_lshrrev_b32 v5, 5, v0"); a("v_lshl_add_u32 v4, v5, 3, v4"); a(f"v_add_u32 v4, s{sTmp}, v4")
    a("v_lshlrev_b32 v6, 2, v5"); a("v_bfe_u32 v7, v0, 2, 2"); a("v_add_u32 v6, v6, v7"); a("v_mul_u32_u24 v6, 72, v6")
    a("v_bfe_u32 v7, v0, 4, 1"); a("v_lshl_add_u32 v6, v7, 5, v6"); a("v_and_b32 v13, 3, v0"); a("v_lshl_add_u32 v6, v13, 3, v6"); a(f"v_add_u32 v6, s{sTmp}, v6")
    a("v_lshlrev_b32 v7, 16, v7"); a("v_lshl_add_u32 v7, v5, 8, v7"); a("v_and_b32 v13, 15, v0"); a("v_lshl_add_u32 v7, v13, 4, v7")
    a("s_barrier")
    stamp(a, cfg, 2)
    for n in range(2):
        for r in reads(n): a.lds(r, ("f", n))
    fill = Fill()
    SN = int(cfg.get("st_n", 18))
    for n in range(32):
        c, i = n >> 2, n & 3; b = n % NB
        if i == 2 and c < 7:
            a("s_barrier")
            if c in (0, 3): stamp(a, cfg, 3 + c // 3)
        if n == SN: stats_issue(a, vSt, 10)
        if n == SN + 6:
            stats_check(a, vSt, 10)
            fill.add(lambda f: x_aug(f, XA, vSt, None, T, T + 1, T + 2, T + 3, vM))
        if n == 30: cs_publish(a, vCS, 8)
        a.wait(lg=("f", n))
        nxt = reads(n + 2) if n < 30 else []
        k = 0
        for t in range(3):
            wf = vr(WF + 12*b + 4*t, 4); xf = vr(XF + 4*b, 4); acc = vr(ACC + 16*t, 16)
            a(f"v_mfma_f32_32x32x16_bf16 {acc}, {wf}, {xf}, {'0' if n == 0 else acc}")
            take = 3 if t == 0 else 2
            for r in nxt[k:k+take]: a.lds(r, ("f", n + 2))
            k += take
            if i == 0: a(f"v_mfma_f32_16x16x32_bf16 {vr(vCS+4*t,4)}, {vr(vSel,4)}, {wf}, {'0' if n == 0 else vr(vCS+4*t,4)}")
            fill.emit(a, 2)
        if n == 30:
            a.wait(lg="all"); a("s_barrier")
            stamp(a, cfg, 5)
            cs_read(a, vCS, 9)
    fill.flush(a)
    for t in range(3):
        a(f"v_mov_b32 v{WA+4*t+2}, 0"); a(f"v_mov_b32 v{WA+4*t+3}, 0")
        a.wait(lg=("cs", t)); cs_sum(a, vCS + 4*t)
        w_aug(a, WA + 4*t, vCS + 4*t, None, T, T + 1, T + 2, vM)
        acc = vr(ACC + 16*t, 16)
        a(f"v_mfma_f32_32x32x16_bf16 {acc}, {vr(WA+4*t,4)}, {vr(XA,4)}, {acc}")
    stamp(a, cfg, 6)
    if cfg.get("prioA"): a(f"s_setprio {cfg['prioA']}")
    a(f"s_lshl_b32 s{sKC}, s{sTok}, 10"); a(f"s_add_u32 s{sKC}, s{sKC}, {WS_QK}")
    for t in range(3):
        z = ACC + 16*t; pk = PK + 8*t
        a(f"s_add_u32 s{sTmp}, s{sT0}, {t}"); a(f"s_cmp_lt_u32 s{sTmp}, 16"); a(f"s_cselect_b32 s{sTmp2}, {f32(QSCALE)}, 1.0")
        a(f"v_mul_f32 v9, s{sTmp2}, v{vSt+2}")
        a(f"s_lshl_b32 s{sO}, s{sTmp}, 17"); a(f"s_add_u32 s{sO}, s{sO}, s{sKC}")
        for q in range(16): a(f"v_mul_f32 v{z+q}, v{z+q}, v9")
        for q in range(8): a(f"v_cvt_pk_bf16_f32 v{pk+q}, v{z+2*q}, v{z+2*q+1}")
        lv = a.label("vt"); le = a.label("vte")
        a(f"s_cmp_ge_u32 s{sTmp}, 32"); a(f"s_cbranch_scc1 {lv}")
        a(f"buffer_store_dwordx4 {vr(pk,4)}, v2, s[{sWS}:{sWS+3}], s{sO} offen sc1")
        a(f"s_add_u32 s{sO}, s{sO}, 65536")
        a(f"buffer_store_dwordx4 {vr(pk+4,4)}, v2, s[{sWS}:{sWS+3}], s{sO} offen sc1")
        a(f"s_branch {le}")
        a(f"{lv}:")
        for j in range(4): a(f"ds_write_b64 v4, {vr(pk+2*j,2)} offset:{j*16}")
        for s in range(2):
            for sec in range(2): a(f"ds_read_b64_tr_b16 {vr(VT+8*(t&1)+4*s+2*sec,2)}, v6 offset:{(16*s + 8*sec)*72}")
        a("s_waitcnt lgkmcnt(0)")
        for s in range(2): a(f"buffer_store_dwordx4 {vr(VT+8*(t&1)+4*s,4)}, v7, s[{sWS}:{sWS+3}], s{sO} offen offset:{s*512} sc1")
        a(f"{le}:")
        a.vm += ["out", "out"]
    stamp(a, cfg, 7)
    if cfg.get("prioA"): a("s_setprio 0")
    attn_setup(a, cfg)
    stamp(a, cfg, 8)
    f1_addr(a, 0); publish(a, f"s{sO}", 14)
    if cfg.get("l2pf", "B8") == "A":
        srd(a, R4, pWO, 524288); srd(a, R5, pW2, 1409024); l2_prefetch(a, cfg, 14, R4, R5)
    if cfg.get("early", True):
        skip = a.label("noearly")
        odd = cfg.get("early_odd", True)
        if odd: a(f"s_bitcmp0_b32 s{sw4}, 0"); a(f"s_cbranch_scc1 {skip}")
        a("v_lshrrev_b32 v18, 3, v0"); a("v_bfe_u32 v19, v0, 4, 1"); a("v_lshlrev_b32 v19, 2, v19"); a("v_and_b32 v20, 7, v0"); a("v_xor_b32 v20, v20, v19"); a("v_lshlrev_b32 v20, 4, v20")
        a("v_lshl_add_u32 v16, v18, 10, v20"); a(f"s_lshl_b32 s{sTmp}, s{sCB2}, 7"); a(f"v_add_u32 v16, s{sTmp}, v16"); a("v_add_u32 v17, 7168, v16")
        srd(a, R4, pWO, 524288); srd(a, R5, pW2, 1409024)
        a(f"v_mov_b32 v10, {L_CNT}")
        for d in (1, 0):
            a(f"s_sub_u32 s{sWoG}, s{sw4}, {d}")
            for g in range(4): wo_op(a, cfg, 1, g, 16, R4, sKC, sWoG)
        lds_spin(a, 10, 11, C_X, 4, sleep=int(cfg.get("sleepx", 4)))
        a(f"s_lshr_b32 s{sWoG}, s{sw4}, 1"); a(f"s_mul_i32 s{sKW2}, s{sWoG}, {22*16*1024}"); a(f"s_lshl_b32 s{sL2}, s{sWoG}, 14")
        for n in range(int(cfg.get("w2_pre", 7))):
            for kb in range(2): w2_op(a, cfg, n, kb, 16, R5, sKC)
        for d in (1, 0):
            a(f"s_sub_u32 s{sWoG}, s{sw4}, {d}")
            for g in range(int(cfg.get("early_wo", 3))): wo_op(a, cfg, 0, g, 16, R4, sKC, sWoG)
        a(f"{skip}:")
    stamp(a, cfg, 9)

vW = 128
def p2w_setup(a):
    a("v_lshrrev_b32 v132, 3, v0"); a("v_bfe_u32 v133, v0, 4, 1"); a("v_lshlrev_b32 v133, 2, v133"); a("v_and_b32 v134, 7, v0"); a("v_xor_b32 v134, v134, v133"); a("v_lshlrev_b32 v134, 4, v134")
    a(f"v_lshl_add_u32 v{vW}, v132, 10, v134"); a(f"s_lshl_b32 s{sWoG}, s{sCB2}, 7"); a(f"v_add_u32 v{vW}, s{sWoG}, v{vW}")
    a(f"v_add_u32 v{vW+1}, 7168, v{vW}")
    a(f"s_mul_i32 s{sKW2}, s{sw4}, {22*16*1024}"); a(f"s_lshl_b32 s{sL2}, s{sw4}, 14")
    srd(a, R0, pW2, 1409024); srd(a, R2, pWO, 524288)
def wo_op(a, cfg, half, g, v=vW, R=R2, sD=sD, sw4=sw4):
    a(f"s_lshl_b32 s{sD}, s{sw4}, 11"); a(f"s_add_u32 m0, s{sD}, {WO_BASE[half] + g*8192}"); a(f"s_lshl_b32 s{sD}, s{sw4}, 14"); a(f"s_add_u32 s{sD}, s{sD}, {half*262144 + g*65536}")
    for kb in range(2): a.vmem(f"buffer_load_dwordx4 v{v+kb}, s[{R}:{R+3}], s{sD} offen offset:{kb*1024} {cfg['aux_w2']} lds", "wo")
def w2_op(a, cfg, n, kb, v=vW, R=R0, sD=sD):
    if kb == 0: a(f"s_add_u32 m0, s{sL2}, {(n % 8)*2048}"); a(f"s_add_u32 s{sD}, s{sKW2}, {n*16384}")
    a.vmem(f"buffer_load_dwordx4 v{v+kb}, s[{R}:{R+3}], s{sD} offen offset:{kb*1024} {cfg['aux_w2']} lds", ("w", n))
def xb_load(a, XR):
    sXO, sB2 = R3, R5
    srd(a, sXO, pX, 0x200000); srd(a, sB2, pB2, 1024)
    a(f"s_lshr_b32 s{sTmp2}, s{sw4}, 1"); a(f"s_add_u32 s{sT1}, s{sTT}, s{sTmp2}")
    a(f"s_and_b32 s{sKH}, s{sw4}, 1"); a(f"s_lshl_b32 s{sKH}, s{sKH}, 6"); a(f"s_lshl_b32 s{sTmp}, s{sCB2}, 7"); a(f"s_add_u32 s{sTmp}, s{sTmp}, s{sKH}")
    a("v_lshrrev_b32 v154, 5, v0"); a("v_lshlrev_b32 v152, 3, v154"); a(f"v_add_u32 v152, s{sTmp}, v152")
    a("v_and_b32 v155, 31, v0"); a(f"s_lshl_b32 s{sTmp}, s{sT1}, 5"); a(f"v_add_u32 v155, s{sTmp}, v155"); a("v_lshl_add_u32 v153, v155, 10, v152")
    for j in range(4):
        a.vmem(f"buffer_load_dwordx2 {vr(XR+2*j,2)}, v153, s[{sXO}:{sXO+3}], 0 offen offset:{j*16}", "xb")
        a.vmem(f"buffer_load_dwordx2 {vr(XR+8+2*j,2)}, v152, s[{sB2}:{sB2+3}], 0 offen offset:{j*16}", "xb")

def p1_B(a, cfg):
    XR, ACC, WF, NB = 128, 16, 64, 3
    vXs, vU, vWB = 16, 20, 124
    vXA, vWX, vWA, vCS, vSel = 24, 100, 104, 108, 120
    vSt, vBias = 4, 8
    sX, sU0, sUB = R0, R2, R4
    a("v_lshrrev_b32 v5, 3, v0"); a("v_lshrrev_b32 v6, 4, v0")
    a("v_and_b32 v7, 7, v0"); a("v_xor_b32 v7, v7, v6"); a("v_lshlrev_b32 v7, 4, v7")
    a(f"s_lshl_b32 s{sTmp}, s{sTok}, 5"); a(f"v_add_u32 v4, s{sTmp}, v5"); a(f"v_lshl_add_u32 v{vXs}, v4, 10, v7")
    a(f"v_xor_b32 v{vXs+1}, 64, v{vXs}"); a(f"v_add_u32 v{vXs+2}, {2*7168}, v{vXs}"); a(f"v_add_u32 v{vXs+3}, {3*7168}, v{vXs+1}"); a(f"v_add_u32 v{vXs+1}, 7168, v{vXs+1}")
    a(f"s_lshl_b32 s{sLdsX}, s{sw4}, 12"); a(f"s_mul_i32 s{sLdsW}, s{sw4}, 3072"); a(f"s_lshl_b32 s{sTmp}, s{sw4}, 4")
    for i in range(3):
        a(f"v_add_u32 v4, {64*i}, v0"); a("v_mul_u32_u24 v5, 43691, v4"); a("v_lshrrev_b32 v5, 19, v5"); a("v_mul_u32_u24 v6, 12, v5"); a("v_sub_u32 v4, v4, v6")
        a(f"v_add_u32 v5, s{sTmp}, v5"); a(f"v_lshlrev_b32 v4, 4, v4"); a(f"v_add_u32 v4, s{sCol}, v4")
        if i: a(f"v_add_u32 v4, {(-1024*i) & 0xffffffff}, v4")
        a(f"v_mul_u32_u24 v6, 3072, v5"); a(f"v_add_u32 v{vU+i}, v6, v4"); a(f"v_mul_u32_u24 v6, 2752, v5"); a(f"v_add_u32 v{vWB+i}, v6, v4")
    a("s_waitcnt lgkmcnt(0)")
    srd(a, sX, pX, 0x200000); srd(a, sU0, pQKV, 1572864)
    def dma_i(vaddr, srdreg, off, tag, aux):
        a.vmem(f"buffer_load_dwordx4 v{vaddr}, s[{srdreg}:{srdreg+3}], s{sO} offen offset:{off} {aux} lds".replace("  ", " "), tag)
    def stage(c):
        a(f"s_add_u32 s{sKC}, s{sROT}, {c}"); a(f"s_and_b32 s{sKC}, s{sKC}, 7")
        a(f"s_add_u32 m0, s{sLdsX}, {L_X + (c & 3)*16384}"); a(f"s_lshl_b32 s{sO}, s{sKC}, 7")
        for g in range(4): dma_i(vXs + g, sX, g * 1024, ("st", c), cfg["aux_x"])
        a(f"s_add_u32 m0, s{sLdsW}, {L_W + (c & 3)*12288}"); a(f"s_mul_i32 s{sO}, s{sKC}, {64*3072}")
        for g in range(3): dma_i(vU + g, sU0, g * 1024, ("st", c), cfg["aux_w"])
    def wb_base(cb): return (L_X + (cb >> 1)*16384) if cb & 1 else (L_W + (cb >> 1)*12288)
    def wb_op(cb, g):
        if g == 0:
            a(f"s_add_u32 s{sKC}, s{sROT}, {cb}"); a(f"s_and_b32 s{sKC}, s{sKC}, 7")
            a(f"s_add_u32 m0, s{sLdsW}, {wb_base(cb)}"); a(f"s_mul_i32 s{sO}, s{sKC}, {64*2752}")
        dma_i(vWB + g, sUB, g * 1024, ("wb", cb), cfg["aux_w"])
    stamp(a, cfg, 1)
    stage(0)
    tag_load(a)
    srd(a, sWS, pWS, 0x10000000); srd(a, sUB, pW1, 1409024)
    a(f"s_cmp_lt_u32 s{sT0}, 43"); a(f"s_cselect_b32 s{sUB+2}, s{sUB+2}, 0")
    a("v_mov_b32 v6, 0"); a("v_lshlrev_b32 v7, 2, v0"); a("v_and_b32 v7, 127, v7"); a(f"v_add_u32 v7, {L_CNT}, v7"); a("ds_write_b32 v7, v6")
    read_addrs(a, vXA, vWX, 0, 4)
    for i in range(4): a(f"v_add_u32 v{vWA+i}, {L_W}, v{vWX+i}")
    selector(a, vSel)
    cs_addr(a, 14, 15, 3)
    a(f"v_mov_b32 v12, {L_CNT}"); a("v_mov_b32 v13, 1")
    srd(a, R5, pB1, 2752)
    a("v_and_b32 v4, 31, v0"); a("v_lshlrev_b32 v4, 1, v4"); a(f"s_lshl_b32 s{sTmp}, s{sT0}, 6"); a(f"v_add_u32 v4, s{sTmp}, v4")
    for t in range(3): a(f"v_mov_b32 v{vBias+t}, 0")
    for t in range(3): a.vmem(f"buffer_load_short_d16_hi v{vBias+t}, v4, s[{R5}:{R5+3}], 0 offen offset:{t*64}", "bias")
    stage(1)
    a("s_waitcnt lgkmcnt(0)"); tag_make(a)
    a.wait(vm=("st", 0)); a("s_barrier")
    stamp(a, cfg, 2)
    SC = int(cfg.get("st_c", 4))
    for c in range(8):
        for i in range(4):
            a.lds(f"ds_read_b128 {vr(XR+16*c+4*i,4)}, v{vXA+i} offset:{(c&3)*16384}", ("x", c))
        if c < 6: stage(c + 2)
        else:
            for cb in (2*(c-6), 2*(c-6) + 1):
                for g in range(3): wb_op(cb, g)
        if c == SC: stats_issue(a, vSt, 11)
        if cfg.get("l2pf") == "C" and c == int(cfg.get("pf_c", 4)):
            srd(a, R3, pWO, 524288); srd(a, R6, pW2, 1409024); l2_prefetch(a, cfg, 2, R3, R6)
        a.wait(lg=("x", c))
        if c == 7: a.wait(vm=("wb", 1))
        else: a.wait(vm=("st", c + 1))
        a("s_barrier")
        if c in (0, 3): stamp(a, cfg, 3 + c // 3)
    stamp(a, cfg, 5)
    def reads(n):
        c, i = n >> 2, n & 3; b = n % NB
        base = (vWX if c & 1 else vWA); so = (c >> 1) * (16384 if c & 1 else 12288)
        return [f"ds_read_b64_tr_b16 {vr(WF+12*b+4*t+2*sec,2)}, v{base+i} offset:{so + t*64 + sec*768}" for t in range(3) for sec in range(2)]
    for n in range(2):
        for r in reads(n): a.lds(r, ("f", n))
    late = [(cb, g) for cb in range(4, 8) for g in range(3)]
    XA, vS, vInv, vA1, vB1, vM, T, WA = 156, 160, 162, 164, 166, 168, 170, 176
    fill = Fill()
    for n in range(32):
        c, i = n >> 2, n & 3; b = n % NB
        if n == int(cfg.get("prio_n", 2)) and cfg.get("prio", True): a(f"s_setprio {cfg.get('prioB1', 1)}")
        if n == 2: fill.add(p2w_setup)
        SD = int(cfg.get("sync_d", 2))
        if (n + 2 + SD) % 4 == 0 and 2 <= (n + 2 + SD) // 4 <= 7: a.wait(vm=("wb", (n + 2 + SD) // 4)); lds_count(a, 12, 13, C_S1)
        if (n + 3) % 4 == 0 and 2 <= (n + 3) // 4 <= 7: sync_read(a, 12, 3, C_S1)
        if (n + 2) % 4 == 0 and 2 <= (n + 2) // 4 <= 7: sync_check(a, 12, 3, C_S1, 4 * ((n + 2) // 4 - 1))
        if n == int(cfg.get("pf_n", 13)) and cfg.get("l2pf", "B8") == "B8":
            fill.flush(a); l2_prefetch(a, cfg, 2, R2, R0)
        if n == 16: lds_count(a, 12, 13, C_X)
        if n == 15:
            stats_check(a, vSt, 11)
            fill.add(lambda f: (mlp_scale(f, vSt + 2, vS, vInv, vA1, vB1), x_aug(f, XA, vSt, vInv, T, T + 1, T + 2, T + 3, vM)))
            fill.add(lambda f: [(f(f"v_lshrrev_b32 v{WA+4*t+2}, 16, v{vBias+t}"), f(f"v_mov_b32 v{WA+4*t+3}, 0")) for t in range(3)])
        if n == int(cfg.get("xb_n", 99)): xb_load(a, 136)
        if cfg.get("detB") and str(n) in cfg["detB"].split(","): stamp(a, cfg, (1, 2, 3, 4, 7, 8, 9)[cfg["detB"].split(",").index(str(n))], True)
        a.wait(lg=("f", n))
        nxt = reads(n + 2) if n < 30 else []
        for t in range(3):
            acc = vr(ACC + 16*t, 16); wf = vr(WF+12*b+4*t, 4)
            a(f"v_mfma_f32_32x32x16_bf16 {acc}, {wf}, {vr(XR+4*n,4)}, {'0' if n == 0 else acc}")
            for r in nxt[2*t:2*t+2]: a.lds(r, ("f", n + 2))
            if i == 0: a(f"v_mfma_f32_16x16x32_bf16 {vr(vCS+4*t,4)}, {vr(vSel,4)}, {wf}, {'0' if n == 0 else vr(vCS+4*t,4)}")
            if late and t < int(cfg.get("wb_rate", 1)): wb_op(*late.pop(0))
            fill.emit(a, 2)
        if n == 29: cs_publish(a, vCS, 14); lds_count(a, 12, 13, C_CS)
        if n == 31: sync_read(a, 12, 3, C_CS)
        if n == 31: lds_count(a, 12, 13, C_RING)
    fill.flush(a)
    stamp(a, cfg, 6)
    if cfg.get("detB"): a.mute = True
    if cfg.get("prio", True): a(f"s_setprio {cfg.get('prioB1b', 3)}")
    sync_check(a, 12, 3, C_CS, 4)
    cs_read(a, vCS, 15)
    for t in range(3):
        a.wait(lg=("cs", t)); cs_sum(a, vCS + 4*t)
        w_aug(a, WA + 4*t, vCS + 4*t, vBias + t, T, T + 1, T + 2, vM)
        acc = vr(ACC + 16*t, 16)
        a(f"v_mfma_f32_32x32x16_bf16 {acc}, {vr(WA+4*t,4)}, {vr(XA,4)}, {acc}")
    a("v_lshlrev_b32 v2, 4, v0")
    PK = 64
    stamp(a, cfg, 7)
    for t in range(3):
        if cfg.get("x_nogelu"):
            for q in range(8): a(f"v_cvt_pk_bf16_f32 v{PK+8*t+q}, v{ACC+16*t+2*q}, v{ACC+16*t+2*q+1}")
        else: (gelu_pk if cfg.get("geluB", "pk") == "pk" else gelu_sc)(a, ACC + 16*t, PK + 8*t, 100, vA1, vB1, vInv)
        h_store(a, PK + 8*t, t, 2)
    stamp(a, cfg, 8)

KF, VF, QF, CD, CF, SB, PB, OA = 16, 56, 136, 144, 160, 176, 208, 224
def attn_tiles(): return [(b, j) for b in range(2) for j in range(b, b + 9)]
def attn_epilogue(a, b):
    o = OA + 16 * b
    a(f"v_rcp_f32 v8, v{o+8}")
    for q in range(8): a(f"v_mul_f32 v{o+q}, v{o+q}, v8")
    for q in range(4): a(f"v_cvt_pk_bf16_f32 v{o+8+q}, v{o+2*q}, v{o+2*q+1}")
    a(f"s_add_u32 s{sO}, s{sTTa}, {b}"); a(f"s_lshl_b32 s{sO}, s{sO}, 5"); a(f"s_add_u32 s{sO}, s{sO}, s{sHD}"); a(f"s_lshl_b32 s{sO}, s{sO}, 10"); a(f"s_add_u32 s{sO}, s{sO}, {WS_O}")
    a.vmem(f"buffer_store_dwordx4 {vr(o+8,4)}, v2, s[{sWS}:{sWS+3}], s{sO} offen sc1", "ost")
def s_mfma(a, n, tiles):
    b, j = tiles[n]
    c = vr(CF, 16) if j == b else (vr(CD, 16) if j == b + 8 else "0")
    a(f"v_mfma_f32_32x32x16_bf16 {vr(SB+16*(n&1),16)}, {vr(KF+4*j,4)}, {vr(QF+4*b,4)}, {c}")
def pv_mfma(a, n, s, tiles):
    b, j = tiles[n]; o = vr(OA + 16 * b, 16)
    a(f"v_mfma_f32_32x32x16_bf16 {o}, {vr(VF+8*j+4*s,4)}, {vr(PB+8*(n&1)+4*s,4)}, {'0' if (j == b and s == 0) else o}")
def bound_check(a, cfg):
    a.wait(vm=("k", 9))
    a("v_mov_b32 v10, 0"); a("v_mov_b32 v11, 0")
    for j in range(12):
        base = (KF + 4*j) if j < 10 else (QF + 4*(j-10))
        t = 12 + (j & 1)
        a(f"v_dot2_f32_bf16 v{t}, v{base}, v{base}, 0")
        for q in range(1, 4): a(f"v_dot2_f32_bf16 v{t}, v{base+q}, v{base+q}, v{t}")
        if j > 0:
            pj = j - 1; d = 10 if pj < 10 else 11
            a(f"v_max_f32 v{d}, v{d}, v{12+(pj&1)}")
    a("v_max_f32 v11, v11, v13")
    wave_max32(a, 10); wave_max32(a, 11)
    a(f"v_readlane_b32 s{sA}, v10, 31"); a(f"v_readlane_b32 s{sB}, v10, 63"); a(f"v_readlane_b32 s{sTmp}, v11, 31"); a(f"v_readlane_b32 s{sTmp2}, v11, 63")
    a(f"v_mov_b32 v10, s{sA}"); a(f"v_mov_b32 v11, s{sTmp}"); a(f"v_add_f32 v10, s{sB}, v10"); a(f"v_add_f32 v11, s{sTmp2}, v11")
    a("v_mul_f32 v10, v10, v11")
    a(f"v_cmp_nge_f32 vcc, {f32(cfg.get('bound2', BOUND2))}, v10")
    a("s_nop 4"); a("s_cmp_lg_u64 vcc, 0"); a("s_nop 0" if cfg.get("x_nocheck") else "s_cbranch_scc1 L_attn_slow")

def attn_fast(a, cfg):
    tiles = attn_tiles()
    a.wait(vm=("k", 1))
    if cfg.get("early", True): lds_count(a, 14, 15, C_PRE)
    s_mfma(a, 0, tiles)
    for n in range(18):
        b, j = tiles[n]
        S = SB + 16 * (n & 1); P = PB + 8 * (n & 1)
        ex = lambda q: None if cfg.get("x_noexp") else a(f"v_exp_f32 v{S+q}, v{S+q}")
        cv = lambda q: a(f"v_cvt_pk_bf16_f32 v{P+q}, v{S+2*q}, v{S+2*q+1}")
        if n == 0: s_mfma(a, 1, tiles)
        ex(0); ex(1)
        if n > 0: pv_mfma(a, n - 1, 1, tiles)
        for q in range(2, 5): ex(q)
        ld = cfg["_sched"].get(n, [])
        for o in ld[:1]: o(a)
        for q in range(5, 8): ex(q)
        cv(0)
        if 0 < n < 17: a.wait(vm=("k", tiles[n+1][1])); s_mfma(a, n + 1, tiles)
        cv(1); cv(2); cv(3)
        for q in range(8, 12): ex(q)
        a.wait(vm=("v", j))
        pv_mfma(a, n, 0, tiles)
        for q in range(12, 14): ex(q)
        for o in ld[1:]: o(a)
        for q in range(14, 16): ex(q)
        for q in range(4, 8): cv(q)
        if n == 9: bound_check(a, cfg); attn_epilogue(a, 0)
    pv_mfma(a, 17, 1, tiles)
    attn_epilogue(a, 1)
def attn_slow(a, cfg):
    tiles = attn_tiles()
    for n in range(10, 18):
        for o in cfg["_sched"].get(n, []): o(a)
    a("s_waitcnt vmcnt(0)"); a("s_nop 15"); a.vm = []
    for b in range(2):
        a("v_mov_b32 v10, 0xff800000")
        for n, (bb, j) in enumerate(tiles):
            if bb != b: continue
            skip = a.label("skip")
            a(f"s_add_i32 s{sTmp}, s{sTTa}, {j-8}"); a(f"s_cmp_lt_i32 s{sTmp}, 0"); a(f"s_cbranch_scc1 {skip}")
            s_mfma(a, n, tiles)
            S = SB + 16 * (n & 1)
            for q in range(8): a(f"v_max3_f32 v10, v10, v{S+2*q}, v{S+2*q+1}")
            a(f"{skip}:")
            a("s_nop 7"); a("s_nop 7")
        a("v_mov_b32 v11, v10"); a("v_permlane32_swap_b32 v10, v11"); a("v_max_f32 v10, v10, v11")
        for n, (bb, j) in enumerate(tiles):
            if bb != b: continue
            s_mfma(a, n, tiles)
            S = SB + 16 * (n & 1); P = PB + 8 * (n & 1)
            for q in range(16):
                a(f"v_sub_f32 v{S+q}, v{S+q}, v10"); a(f"v_min_f32 v{S+q}, 0, v{S+q}"); a(f"v_exp_f32 v{S+q}, v{S+q}")
            for q in range(8): a(f"v_cvt_pk_bf16_f32 v{P+q}, v{S+2*q}, v{S+2*q+1}")
            pv_mfma(a, n, 0, tiles); pv_mfma(a, n, 1, tiles)
        attn_epilogue(a, b)
def wave_max32(a, v):
    for m in ("quad_perm:[1,0,3,2] row_mask:0xf bank_mask:0xf", "quad_perm:[2,3,0,1] row_mask:0xf bank_mask:0xf",
              "row_half_mirror row_mask:0xf bank_mask:0xf", "row_mirror row_mask:0xf bank_mask:0xf", "row_bcast:15 row_mask:0xa bank_mask:0xf"):
        a(f"v_max_f32_dpp v{v}, v{v}, v{v} {m}")
def tr_addr2(a, dst, base_s):
    a(f"v_lshrrev_b32 v5, 5, v0"); a(f"v_lshlrev_b32 v{dst}, 9, v5")
    a(f"v_bfe_u32 v5, v0, 2, 2"); a(f"v_lshl_add_u32 v{dst}, v5, 7, v{dst}")
    a(f"v_bfe_u32 v5, v0, 3, 1"); a(f"v_lshl_add_u32 v{dst}, v5, 6, v{dst}")
    a(f"v_bfe_u32 v5, v0, 4, 1"); a(f"v_lshl_add_u32 v{dst}, v5, 5, v{dst}")
    a(f"v_and_b32 v5, 3, v0"); a(f"v_lshl_add_u32 v{dst}, v5, 3, v{dst}")
    a(f"v_add_u32 v{dst}, {base_s}, v{dst}"); a(f"v_xor_b32 v{dst+1}, 64, v{dst}")

def attn_setup(a, cfg):
    sQ, sK, sV = R0, R2, R3
    a(f"s_lshl_b32 s{sHD}, s{sCBa}, 2"); a(f"s_add_u32 s{sHD}, s{sHD}, s{sw4}")
    a(f"s_lshl_b32 s{sTmp}, s{sHD}, 16")
    a(f"s_add_u32 s{sTmp2}, s{sTmp}, {WS_QK}"); sub_srd(a, sQ, f"s{sTmp2}", 65536)
    a(f"s_add_u32 s{sTmp2}, s{sTmp}, {WS_QK + 32*65536}"); sub_srd(a, sK, f"s{sTmp2}", 65536)
    a(f"s_add_u32 s{sTmp2}, s{sTmp}, {WS_V}"); sub_srd(a, sV, f"s{sTmp2}", 65536)
    a(f"s_lshl_b32 s{sM}, s{sTTa}, 10")
    a(f"s_lshr_b32 s{sTmp}, s{sRBa}, 1"); a(f"s_lshl_b32 s{sFQ}, s{sTmp}, 12")
    a(f"s_sub_u32 s{sTmp}, s{sTmp}, 2"); a(f"s_max_i32 s{sTmp}, s{sTmp}, 0"); a(f"s_lshl_b32 s{sFK}, s{sTmp}, 12"); a(f"s_mov_b32 s{sFV}, s{sFK}")
    a(f"s_and_b32 s{sTmp2}, s{sRBa}, 1"); a(f"s_lshl_b32 s{sTmp2}, s{sTmp2}, 3"); a(f"s_add_u32 s{sFQ}, s{sFQ}, s{sTmp2}")
    a(f"s_lshr_b32 s{sTmp}, s{sHD}, 1")
    for r, sec in ((sFQ, 0), (sFK, 16), (sFV, 32)):
        a(f"s_add_u32 s{sTmp2}, s{sTmp}, {sec}"); a(f"s_mul_i32 s{sTmp2}, s{sTmp2}, 43"); a(f"s_lshr_b32 s{sTmp2}, s{sTmp2}, 7"); a(f"s_lshl_b32 s{sTmp2}, s{sTmp2}, 8"); a(f"s_add_u32 s{r}, s{r}, s{sTmp2}")
    a("v_lshrrev_b32 v3, 5, v0"); a("v_lshlrev_b32 v3, 8, v3"); a("v_and_b32 v5, 15, v0"); a("v_lshl_add_u32 v3, v5, 4, v3")

def attn_setup_v(a, cfg):
    mapping_attn(a, cfg)
    a("v_and_b32 v3, 27, v0"); a("v_cmp_eq_u32 vcc, 16, v3")
    a("v_mov_b32 v4, 0x3f803f80"); a("v_cndmask_b32 v4, 0, v4, vcc")

    for j in range(10):
        if j < 8:
            if j % 2 == 0:
                a(f"s_add_i32 s{sTmp}, s{sTTa}, {j-8}"); a(f"s_cmp_ge_i32 s{sTmp}, 0"); a(f"s_cselect_b32 s{sTmp}, -1, 0")
                a(f"v_and_b32 v6, s{sTmp}, v4"); a("v_mov_b32 v7, v6")
        elif j == 8: a("v_mov_b32 v6, v4"); a("v_mov_b32 v7, v4")
        for q in range(4): a(f"v_mov_b64 {vr(VF+8*j+2*q,2)}, v[6:7]")
    a("v_and_b32 v5, 31, v0"); a("v_lshrrev_b32 v6, 5, v0"); a("v_lshlrev_b32 v6, 2, v6"); a("v_sub_u32 v5, v5, v6")
    a(f"v_mov_b32 v6, {f32(NEG)}")
    for r in range(16):
        a(f"v_cmp_le_i32 vcc, {8*(r>>2) + (r&3)}, v5")
        a(f"v_cndmask_b32_e64 v{CD+r}, v6, 0, vcc"); a(f"v_cndmask_b32_e64 v{CF+r}, 0, v6, vcc")

def p2_A(a, cfg):
    ax = "sc1"
    sQ, sK, sV = R0, R2, R3
    a.vm = []; a.lg = []
    stamp(a, cfg, 0)
    a(f"v_mov_b32 v10, {L_CNT}"); a("v_mov_b32 v11, 1")
    pair_poll(a, [((4, 12, 16)[k], 4, sFK, WS_F1 + k*4096) for k in range(3)] + [((44, 48, 52)[k], 4, sFV, WS_F1 + k*4096) for k in range(3)] + [(26, 2, sFQ, WS_F1)],
              int(cfg.get("sleep1", 8)), int(cfg.get("delay1", 0)), 10, 11, 12, C_P1, int(cfg.get("pmask1", 1)))
    a(f"v_mov_b32 v14, {L_CNT}"); a("v_mov_b32 v15, 1")
    if "prioA2" in cfg: a(f"s_setprio {cfg['prioA2']}")
    stamp(a, cfg, 2)
    for b in range(2):
        a.vmem(f"buffer_load_dwordx4 {vr(QF+4*b,4)}, v2, s[{sQ}:{sQ+3}], s{sM} offen offset:{b*1024} {ax}", "q")
    def kload(x, j):
        x(f"s_add_u32 s{sO}, s{sM}, {(j-8)*1024 & 0xffffffff}")
        x.vmem(f"buffer_load_dwordx4 {vr(KF+4*j,4)}, v2, s[{sK}:{sK+3}], s{sO} offen {ax}", ("k", j))
    def vload(x, j):
        x("s_mov_b32 exec_lo, 0xffff"); x("s_mov_b32 exec_hi, 0xffff")
        x(f"s_add_u32 s{sO}, s{sM}, {(j-8)*1024 & 0xffffffff}")
        for s in range(2):
            x.vmem(f"buffer_load_dwordx4 {vr(VF+8*j+4*s,4)}, v3, s[{sV}:{sV+3}], s{sO} offen offset:{s*512} {ax}", ("v", j))
        x("s_mov_b64 exec, -1")
    LA = int(cfg.get("attn_la", 4))
    kload(a, 0)
    for j in range(LA):
        if j < 9: kload(a, j + 1)
        vload(a, j)
    if cfg.get("hold") and LA >= 10: lds_count(a, 14, 15, C_HOLD)
    sched = {}
    for n in range(18):
        j = n + LA
        if j <= 9: sched[n] = ([lambda x, j=j: kload(x, j + 1)] if j < 9 else []) + [lambda x, j=j: vload(x, j)]
        if j == 9 and cfg.get("hold"): sched[n].append(lambda x: lds_count(x, 14, 15, C_HOLD))
    cfg["_sched"] = sched
    stamp(a, cfg, 3)
    saved = list(a.vm)
    attn_fast(a, cfg)
    a("L_attn_done:")
    stamp(a, cfg, 5)
    a.vm = ["x"]
    a(f"s_lshl_b32 s{sO}, s{sRBa}, 3"); a(f"s_add_u32 s{sO}, s{sO}, s{sCBa}"); a(f"s_lshl_b32 s{sO}, s{sO}, 5"); a(f"s_add_u32 s{sO}, s{sO}, s{sw4}"); a(f"s_lshl_b32 s{sO}, s{sO}, 2"); a(f"s_add_u32 s{sO}, s{sO}, {WS_F2}")
    publish(a, f"s{sO}", 4)
    a(f"v_mov_b32 v6, {L_CNT}")
    nl = a.label("noepoch"); lp = a.label("epoch")
    a(f"s_or_b32 s{sTmp}, s2, s{sW}"); a(f"s_cmp_lg_u32 s{sTmp}, 0"); a(f"s_cbranch_scc1 {nl}")
    a("v_lshlrev_b32 v7, 8, v0"); a(f"v_add_u32 v7, {WS_F1}, v7"); a(f"s_mov_b32 s{sA}, 0")
    a(f"{lp}:")
    for k in range(4):
        a(f"s_mov_b32 s{sTmp}, {k*16384}"); a(f"buffer_load_dword v{16+k}, v7, s[{sWS}:{sWS+3}], s{sTmp} offen sc1")
    a(f"s_add_u32 s{sA}, s{sA}, 1"); a(f"s_cmp_gt_u32 s{sA}, {SPIN_MAX}"); a(f"s_cbranch_scc1 {nl}")
    a("s_waitcnt vmcnt(0)")
    for k in range(4): a(f"v_xor_b32 v{16+k}, s{sN}, v{16+k}")
    a("v_or_b32 v16, v16, v17"); a("v_or3_b32 v16, v16, v18, v19"); a("v_cmp_ne_u32 vcc, 0, v16")
    a("s_nop 4"); a("s_cmp_lg_u64 vcc, 0"); a(f"s_cbranch_scc1 {lp}")
    a(f"s_mov_b32 s{sTmp}, {WS_EPOCH}"); a("s_mov_b64 exec, 1")
    a(f"buffer_store_dword v4, v5, s[{sWS}:{sWS+3}], s{sTmp} offen sc1"); a("s_mov_b64 exec, -1")
    a(f"{nl}:")
    a("s_waitcnt vmcnt(1)")
    stamp(a, cfg, 6)
    OF, ACC, XR, WF = 16, 96, 128, 144
    a(f"s_lshr_b32 s{sKH}, s{sw4}, 1"); a(f"s_and_b32 s{sT1}, s{sw4}, 1"); a(f"s_add_u32 s{sT1}, s{sT1}, s{sTT}")
    a(f"s_lshl_b32 s{sTmp}, s{sCB2}, 7"); a(f"s_lshl_b32 s{sTmp2}, s{sKH}, 6"); a(f"s_add_u32 s{sTmp}, s{sTmp}, s{sTmp2}")
    a("v_lshrrev_b32 v7, 5, v0"); a("v_lshlrev_b32 v8, 4, v7"); a(f"v_add_u32 v8, s{sTmp}, v8")
    a("v_and_b32 v9, 31, v0"); a(f"s_lshl_b32 s{sTmp2}, s{sT1}, 5"); a(f"v_add_u32 v9, s{sTmp2}, v9")
    a("v_lshl_add_u32 v11, v9, 10, v8")
    a(f"s_lshl_b32 s{sFQ}, s{sRB2}, 1"); a(f"s_add_u32 s{sFQ}, s{sFQ}, s{sKH}"); a(f"s_lshl_b32 s{sFQ}, s{sFQ}, 9")
    a(f"s_mul_i32 s{sTmp}, s{sKH}, {WO_BASE[1] - WO_BASE[0]}"); a(f"s_add_u32 s{sTmp}, s{sTmp}, {WO_BASE[0]}")
    tr_addr2(a, 14, f"s{sTmp}")
    a(f"s_lshl_b32 s{sTmp}, s{sKH}, 6"); a(f"v_xor_b32 v14, s{sTmp}, v14"); a(f"v_xor_b32 v15, s{sTmp}, v15")
    a("v_mov_b32 v10, 1")
    if cfg.get("poll_first", True): lds_spin(a, 6, 7, C_POLL, 4, sleep=1)
    pair_poll(a, [((4, 12, 16, 44)[k], 4, sFQ, WS_F2 + k*128) for k in range(4)], int(cfg.get("sleep2", 8)), int(cfg.get("delay2", 0)), 6, 10, 12, C_P2, 1)
    stamp(a, cfg, 7)
    if not cfg.get("poll_first", True): lds_spin(a, 6, 7, C_POLL, 4, sleep=1)
    a(f"s_lshl_b32 s{sO}, s{sT1}, 5"); a(f"s_lshl_b32 s{sTmp}, s{sKH}, 4"); a(f"s_add_u32 s{sO}, s{sO}, s{sTmp}"); a(f"s_lshl_b32 s{sO}, s{sO}, 10"); a(f"s_add_u32 s{sO}, s{sO}, {WS_O}")
    for n in range(16):
        if n and n % 4 == 0: a(f"s_add_u32 s{sO}, s{sO}, 4096")
        a.vmem(f"buffer_load_dwordx4 {vr(OF+4*n,4)}, v2, s[{sWS}:{sWS+3}], s{sO} offen offset:{(n%4)*1024} sc1", ("o", n))
    stamp(a, cfg, 8)
    presum = cfg.get("presum", True)
    a(f"s_lshl_b32 s{sTmp}, s{sw4}, 12"); a(f"s_add_u32 s{sTmp}, s{sTmp}, {L_EX}"); a(f"v_add_u32 v12, s{sTmp}, v2"); a("v_xor_b32 v13, 0x2000, v12")
    a(f"s_and_b32 s{sTmp}, s{sw4}, 1"); a(f"s_lshl_b32 s{sTmp}, s{sTmp}, 1"); a(f"s_add_u32 s{sTmp}, s{sTmp}, s{sKH}"); a(f"s_lshl_b32 s{sTmp}, s{sTmp}, 12")
    a(f"v_add_u32 v10, s{sTmp}, v2")
    srd(a, R0, pOUT, 0x200000)
    PT = 176
    if presum:
        a("s_barrier")
        for p in range(4):
            for q in range(4): a.lds(f"ds_read_b128 {vr((ACC if p == 0 else PT+16*(p-1))+4*q,4)}, v10 offset:{p*16384 + q*1024}", ("p", p))
    else: lds_spin(a, 6, 7, C_WO, 4)
    def reads(n):
        return [f"ds_read_b64_tr_b16 {vr(WF+8*(n%4)+4*t+2*sec,2)}, v{14+t} offset:{n*2048 + sec*1024}" for t in range(2) for sec in range(2)]
    if presum:
        a.wait(lg=("p", 2))
        for q in range(8): a(f"v_pk_add_f32 {vr(ACC+2*q,2)}, {vr(ACC+2*q,2)}, {vr(PT+2*q,2)}")
    for n in range(3):
        for r in reads(n): a.lds(r, ("f", n))
    if presum:
        a.wait(lg=("p", 3))
        for q in range(8): a(f"v_pk_add_f32 {vr(PT+16+2*q,2)}, {vr(PT+16+2*q,2)}, {vr(PT+32+2*q,2)}")
        for q in range(8): a(f"v_pk_add_f32 {vr(ACC+2*q,2)}, {vr(ACC+2*q,2)}, {vr(PT+16+2*q,2)}")
    for n in range(16):
        nxt = reads(n + 3) if n < 13 else []
        a.wait(vm=("o", n), lg=("f", n))
        for t in (1, 0):
            acc = vr(ACC + 16*t, 16)
            a(f"v_mfma_f32_32x32x16_bf16 {acc}, {vr(WF+8*(n%4)+4*t,4)}, {vr(OF+4*n,4)}, {'0' if (n == 0 and (t == 1 or not presum)) else acc}")
            for r in nxt[2*t:2*t+2]: a.lds(r, ("f", n + 3))
    stamp(a, cfg, 9)
    for q in range(4): a.lds(f"ds_write_b128 v12, {vr(ACC+16+4*q,4)} offset:{q*1024}", "ex")
    a.wait(lg="all"); a("s_barrier")
    PT = 16
    for p in ([4] if presum else range(5)):
        for q in range(4):
            if p < 4: a.lds(f"ds_read_b128 {vr(PT+16*p+4*q,4)}, v10 offset:{p*16384 + q*1024}", ("p", p))
            else: a.lds(f"ds_read_b128 {vr(PT+16*p+4*q,4)}, v13 offset:{q*1024}", ("p", p, q))
    for p in ([4] if presum else range(5)):
        if p < 4: a.wait(lg=("p", p))
        for q in range(8):
            if p == 4 and q % 2 == 0: a.wait(lg=("p", 4, q // 2))
            a(f"v_pk_add_f32 {vr(ACC+2*q,2)}, {vr(ACC+2*q,2)}, {vr(PT+16*p+2*q,2)}")
    for q in range(8): a(f"v_cvt_pk_bf16_f32 v{XR+q}, v{ACC+2*q}, v{ACC+2*q+1}")
    for jp in range(2):
        a(f"v_permlane32_swap_b32 v{XR+4*jp}, v{XR+4*jp+2}"); a(f"v_permlane32_swap_b32 v{XR+4*jp+1}, v{XR+4*jp+3}")
        a.vmem(f"buffer_store_dwordx4 {vr(XR+4*jp,4)}, v11, s[{R0}:{R0+3}], 0 offen offset:{jp*32} {cfg.get('aux_out', '')}", "out")
    return saved

def p2_B(a, cfg):
    ACC, HR, WF, XR = 16, 176, 160, 136
    D = 8
    sH0, sH1 = R5, R3
    if int(cfg.get("xb_n", 99)) > 31: xb_load(a, XR)
    a(f"s_mul_i32 s{sKHh}, s{sw4}, {22*1024}")
    def w_ops(n): return [lambda: w2_op(a, cfg, n, 0), lambda: w2_op(a, cfg, n, 1)]
    def h_ops(n):
        def h(t):
            if t == 0: a(f"s_add_u32 s{sM}, s{sKHh}, {n*1024}")
            a.vmem(f"buffer_load_dwordx4 {vr(HR+8*(n%D)+4*t,4)}, v2, s[{(sH0,sH1)[t]}:{(sH0,sH1)[t]+3}], s{sM} offen sc1", ("h", n))
        return [lambda: h(0), lambda: h(1)]
    WD = int(cfg.get("w2_pre", 7)); WP = int(cfg.get("w2_prefill", WD))
    a(f"s_mul_i32 s{sTmp}, s{sT1}, {86*1024}"); a(f"s_add_u32 s{sTmp}, s{sTmp}, {WS_H}")
    sub_srd(a, sH0, f"s{sTmp}", 86 * 1024)
    a(f"s_xor_b32 s{sTmp2}, s{sT1}, 1"); a(f"s_mul_i32 s{sTmp}, s{sTmp2}, {86*1024}"); a(f"s_add_u32 s{sTmp}, s{sTmp}, {WS_H}")
    sub_srd(a, sH1, f"s{sTmp}", 86 * 1024)
    tr_addr2(a, 10, f"s{sL2}")
    a(f"v_xor_b32 v10, s{sKH}, v10"); a(f"v_xor_b32 v11, s{sKH}, v11")
    a(f"s_mul_i32 s{sTmp}, s{sw4}, {11*43}"); a(f"s_lshr_b32 s{sTmp}, s{sTmp}, 7"); a(f"s_min_u32 s{sTmp}, s{sTmp}, 10"); a(f"s_lshl_b32 s{sTmp}, s{sTmp}, 8")
    a(f"s_lshr_b32 s{sHD}, s{sRB2}, 1"); a(f"s_lshl_b32 s{sHD}, s{sHD}, 12"); a(f"s_add_u32 s{sHD}, s{sHD}, s{sTmp}")
    a(f"s_and_b32 s{sTmp}, s{sRB2}, 1"); a(f"s_lshl_b32 s{sTmp}, s{sTmp}, 3"); a(f"s_add_u32 s{sHD}, s{sHD}, s{sTmp}")
    f1_addr(a, 1); publish(a, f"s{sO}", 6, "out")
    stamp(a, cfg, 9)
    stamp_dump(a, cfg, 0, 96)
    a.mute = False
    stamp(a, cfg, 0)
    lds_spin(a, 12, 7, C_RING, 4)
    if cfg.get("hold") == "2": lds_spin(a, 12, 7, C_HOLD, 4, sleep=1)
    early = cfg.get("early", True)
    nopre = a.label("nopre")
    if early: a(f"s_cmp_lt_u32 s{sw4}, 2"); a(f"s_cbranch_scc1 {nopre}")
    for n in range(WP):
        for o in w_ops(n): o()
    a(f"{nopre}:")
    wo_list = [(0, g) for g in range(int(cfg.get("early_wo", 3)), 4)] if early else [(h, g) for h in range(2) for g in range(4)]
    WOP = min(len(wo_list), int(cfg.get("wo_pre", 8)))
    for k in range(WOP): wo_op(a, cfg, *wo_list.pop(0))
    a.wait(vm="xb")
    for j in range(4):
        for d in range(2):
            x, bb, o = XR + 2*j + d, XR + 8 + 2*j + d, ACC + 4*j + 2*d
            a(f"v_lshlrev_b32 v14, 16, v{x}"); a(f"v_lshlrev_b32 v15, 16, v{bb}"); a(f"v_add_f32 v{o}, v14, v15")
            a(f"v_and_b32 v14, 0xffff0000, v{x}"); a(f"v_and_b32 v15, 0xffff0000, v{bb}"); a(f"v_add_f32 v{o+1}, v14, v15")
    if cfg.get("hold") == "1": lds_spin(a, 12, 7, C_HOLD, 4, sleep=1)
    stamp(a, cfg, 1)
    scalar_poll(a, [(4 + 2*k, 2, sHD, WS_F1 + 128 + k*256) for k in range(5)], int(cfg.get("sleep3", 8)))
    stamp(a, cfg, 2)
    if cfg.get("prio", True): a(f"s_setprio {cfg.get('prioB2', 0)}")
    DI = int(cfg.get("p2_depth", 5))
    for n in range(max(DI, WD)):
        if n < DI:
            for o in h_ops(n): o()
        if WP <= n < WD:
            for o in w_ops(n): o()
    def reads(n):
        return [f"ds_read_b64_tr_b16 {vr(WF+8*(n&1)+4*t+2*sec,2)}, v{10+t} offset:{(n%D)*2048 + sec*1024}" for t in range(2) for sec in range(2)]
    late_wo = bool(wo_list)
    if early: lds_spin(a, 12, 7, C_PRE, 4)
    a.wait(vm=("w", 0))
    for r in reads(0): a.lds(r, ("f", 0))
    for n in range(22):
        ops = (h_ops(n + DI) if n + DI < 22 else [None, None]) + (w_ops(n + WD) if n + WD < 22 else [None, None])
        if n + WD >= 22 and wo_list:
            g4 = [wo_list.pop(0) for k in range(min(2, len(wo_list)))]
            ops[2] = lambda g4=g4: wo_op(a, cfg, *g4[0])
            if len(g4) > 1: ops[3] = lambda g4=g4: wo_op(a, cfg, *g4[1])
        if n == (21 if late_wo else 1): a.wait(vm="wo"); lds_count(a, 12, 13, C_WO)
        if n == int(cfg.get('poll_n', 12)): lds_count(a, 12, 13, C_POLL)
        if n < 21:
            a.wait(vm=("w", n + 1))
            for r in reads(n + 1): a.lds(r, ("f", n + 1))
        a.wait(lg=("f", n), vm=("h", n))
        for tt in range(2):
            for ft in range(2):
                acc = vr(ACC + 16*(2*tt+ft), 16)
                a(f"v_mfma_f32_32x32x16_bf16 {acc}, {vr(WF+8*(n&1)+4*ft,4)}, {vr(HR+8*(n%D)+4*tt,4)}, {'0' if (n == 0 and tt+ft) else acc}")
                if ops[2*tt+ft]: ops[2*tt+ft]()
        if n in (0, 5, 10, 15, 21): stamp(a, cfg, 3 + (0, 5, 10, 15, 21).index(n))
    a(f"s_mul_i32 s{sTmp}, s{sw4}, {16384 + 4096}"); a(f"v_add_u32 v14, s{sTmp}, v2")
    for t in range(4):
        if t: a(f"v_xor_b32 v15, {t*4096}, v14")
        for q in range(4): a.lds(f"ds_write_b128 v{15 if t else 14}, {vr(ACC+16*t+4*q,4)} offset:{q*1024}", "d")
    a.wait(lg="all"); stamp(a, cfg, 8); a("s_barrier")

def build(cfg):
    cfg = dict(cfg)
    a = Asm()
    a("s_cmp_ge_u32 s2, 256"); a("s_cbranch_scc1 L_end")
    if cfg.get("stamp"):
        for i in range(NSTAMP): a(f"s_mov_b32 s{STAMP0+2*i}, 0")
    stamp(a, cfg, 0, True)
    prologue(a, cfg)
    a(f"s_cmp_lt_u32 s{sW}, 4"); a("s_cbranch_scc1 L_A")
    B = Asm(); B.uid = 1000
    p1_B(B, cfg); p2_B(B, cfg)
    if cfg.get("stamp"): B("s_waitcnt vmcnt(0)"); stamp(B, cfg, 10, True); stamp_dump(B, cfg, 0x20000, 16)
    B("s_endpgm")
    A = Asm(); A.uid = 2000
    A("L_A:"); p1_A(A, cfg); stamp_dump(A, cfg, 0, 16); saved = p2_A(A, cfg)
    if cfg.get("stamp"): A("s_waitcnt vmcnt(0)"); stamp(A, cfg, 10, True); stamp_dump(A, cfg, 0x20000, 16)
    A("s_endpgm")
    S = Asm(); S.uid = 5000; S.vm = saved
    S("L_attn_slow:"); attn_slow(S, cfg); S("s_branch L_attn_done")
    E = Asm(); E("L_end:"); E("s_endpgm")
    body = a.text() + B.text() + A.text() + S.text() + E.text()
    name = KN + "_kernel"
    if cfg.get("x_plainst"):
        body = "\n".join(l.replace(" sc1", "") if ("buffer_store_dwordx4" in l and ", v4, s[32:35]" not in l) else l for l in body.split("\n"))
    if cfg.get("x_nost"):
        body = "\n".join(("    s_nop 0" if ("buffer_store_dwordx4" in l and " sc1" in l and ", v4, s[32:35]" not in l) else l) for l in body.split("\n"))
    if cfg.get("x_plainld"):
        body = "\n".join(l.replace(" sc1", "") if ("buffer_load_dwordx4" in l and "v10, s[32" not in l and "v11, s[32" not in l) else l for l in body.split("\n"))
    return file_text([(name, body, 256, 102, 0)], [(name, 256, 512, LDS_BYTES)])

if __name__ == "__main__":
    import sys
    cfg = dict(map1="8x4", map2="8x4", aux_x="", aux_w="", aux_w2="", prio=True)
    for kv in sys.argv[2:]:
        k, v = kv.split("=", 1)
        cfg[k] = {"True": True, "False": False}.get(v, v)
    if "bound2" in cfg: cfg["bound2"] = float(cfg["bound2"])
    open(sys.argv[1], "w").write(build(cfg))
```
